```python
import torch

def _softmax(x, axis=-1):
    return torch.softmax(x, dim=axis)
def _gelu(x):
    return torch.nn.functional.gelu(x, approximate="tanh")
def _silu(x):
    return torch.nn.functional.silu(x)
def _sigmoid(x):
    return torch.sigmoid(x)
def _layernorm(x, axis=-1, eps=1e-5):
    m = x.mean(dim=axis, keepdim=True)
    v = x.var(dim=axis, keepdim=True, unbiased=False)
    return (x - m) / torch.sqrt(v + eps)
def _scatter_add(tgt, idx, src, axis=0):
    return tgt.clone().index_add_(axis, idx, src)
def _segment_sum(src, seg, n):
    out = torch.zeros((n,) + src.shape[1:], dtype=src.dtype)
    return out.index_add_(0, seg, src)
def _pad(x, pw):
    flat = tuple(v for pair in reversed(pw) for v in pair)
    return torch.nn.functional.pad(x, flat)

kernel_name = 'sequential_preLN__gqa_block_cached__glu_gated_glu__decode'

def setup_inputs():

    _w = (lambda a: (lambda t: t.to(torch.bfloat16) if t.is_floating_point() else t)(torch.as_tensor(a)))
    def _A_setup():
        B, Sq, D = 1, 1, 512
        Hq, Hkv, Sk, Dh = 32, 8, 32768, 128
        assert Hq % Hkv == 0, (Hq, Hkv)
        return {
            "x": _w((lambda *s: torch.randn(*s, dtype=torch.bfloat16) * 0.05)(B, Sq, D)),
            "k_cache": _w((lambda *s: torch.randn(*s, dtype=torch.bfloat16) * 3.2)(B, Hkv, Sk, Dh)),
            "v_cache": _w((lambda *s: torch.randn(*s, dtype=torch.bfloat16) * 0.4)(B, Hkv, Sk, Dh)),
            "wq": _w((lambda *s: torch.randn(*s, dtype=torch.bfloat16) * 3.2)(D, Hq * Dh) * (D ** -0.5)),
            "wo": _w((lambda *s: torch.randn(*s, dtype=torch.bfloat16) * 0.4)(Hq * Dh, D) * ((Hq * Dh) ** -0.5)),
        }
    _A_in = _A_setup()

    def _B_setup():
        B, S, D, F = 1, 1, 512, 1792
        return {
            "x": _w((lambda *s: torch.randn(*s, dtype=torch.bfloat16) * 0.05)(B, S, D)),
            "w_gate": _w((lambda *s: torch.randn(*s, dtype=torch.bfloat16) * 0.05)(D, F)),
            "w_up": _w((lambda *s: torch.randn(*s, dtype=torch.bfloat16) * 0.05)(D, F)),
            "w_down": _w((lambda *s: torch.randn(*s, dtype=torch.bfloat16) * 0.05)(F, D)),
        }
    _B_in = _B_setup()

    return {
        "A_x": _A_in["x"],
        "A_k_cache": _A_in["k_cache"],
        "A_v_cache": _A_in["v_cache"],
        "A_wq": _A_in["wq"],
        "A_wo": _A_in["wo"],
        "B_x": _B_in["x"],
        "B_w_gate": _B_in["w_gate"],
        "B_w_up": _B_in["w_up"],
        "B_w_down": _B_in["w_down"],
    }

def reference(A_x, A_k_cache, A_v_cache, A_wq, A_wo, B_x, B_w_gate, B_w_up, B_w_down):
    def _A_ref(x, k_cache, v_cache, wq, wo):
        B, Sq, D = x.shape
        Hq, Dh = 32, 128
        Hkv = k_cache.shape[1]
        rep = Hq // Hkv
        q = (lambda x, *d: x.permute(*d))((x @ wq).reshape(B, Sq, Hq, Dh), 0, 2, 1, 3)
        k = (lambda x, n, axis: torch.repeat_interleave(x, n, dim=axis))(k_cache, rep, axis=1)
        v = (lambda x, n, axis: torch.repeat_interleave(x, n, dim=axis))(v_cache, rep, axis=1)
        scores = torch.einsum("bhqd,bhkd->bhqk", q, k) * (Dh ** -0.5)
        p = _softmax(scores, axis=-1)
        o = torch.einsum("bhqk,bhkd->bhqd", p, v)
        return (lambda x, *d: x.permute(*d))(o, 0, 2, 1, 3).reshape(B, Sq, Hq * Dh) @ wo

    def _B_ref(x, w_gate, w_up, w_down):
        g = torch.einsum("bsd,df->bsf", x, w_gate)
        u = torch.einsum("bsd,df->bsf", x, w_up)
        h = _sigmoid(g) * u
        return torch.einsum("bsf,fd->bsd", h, w_down)

    x = A_x
    h = x + _A_ref(_layernorm(x, axis=-1), A_k_cache, A_v_cache, A_wq, A_wo)
    h2 = h + _B_ref(_layernorm(h, axis=-1), B_w_gate, B_w_up, B_w_down)
    return h2
```

```python
import sys
KN = "sequential_preLN__gqa_block_cached__glu_gated_glu__decode"

QX = 0x0000
SX = 0x2000
AX = 0x4000
DX = 0x10000
OX = 0x80000
WS_USED = 0x100000
STAMP = 0x200000
LW   = 0
LACT = 0x8000
LACT2= 0x8400
LST  = 0x8800
LST2 = 0x8840
LRED = 0x8900
LS2  = 0x8A00
LRED2= 0x8B00
LO   = 0x9000
LDS_SIZE = 0xB000

LOG2E = 0x3FB8AA3B
SCALE = 0x3DB504F3
EPS   = 0x3727C5AC

class G:
    def __init__(s):
        s.L = []; s.q = []; s.nlab = 0; s.vn = 0; s.names = {}
    def a(s, x): s.L.append("  " + x)
    def lab(s, x): s.L.append(x + ":")
    def newlab(s, p="L"):
        s.nlab += 1; return "%s_%d" % (p, s.nlab)
    def v(s, name, n=1, align=1):
        if n > 1: align = max(align, 2)
        s.vn = (s.vn + align - 1)//align*align
        r = s.vn; s.vn += n; s.names[name] = r
        assert s.vn <= 256
        return r
    def vm(s, txt, tag):
        s.a(txt); s.q.append(tag)
    def wait(s, tag):
        if tag not in s.q: return
        i = s.q.index(tag); n = len(s.q) - 1 - i
        assert n <= 63
        s.a("s_waitcnt vmcnt(%d)" % n); s.q = s.q[i+1:]
    def waitall(s):
        s.a("s_waitcnt vmcnt(0)"); s.q = []

def r(a, n): return "v[%d:%d]" % (a, a+n-1)
def ar(a, n): return "a[%d:%d]" % (a, a+n-1)
DPP = " row_mask:0xf bank_mask:0xf"

def gen(D=8, pol="nt", vpol=None, wpol="nt", exactP=True, stamps=False, n_cnt=40, n_q=48, n_qk=56, n_sg=100, n_pv=108, pv_rate=6,
        wo_at=128, spin=1<<16, codewarm=False, dbgstamp=False):
    g = G(); a = g.a
    sW, sG, sS = 3, 4, 5
    sK, sV, sWS, sX, sWQ, sWO, sWG, sWU, sWD, sOUT, sDBG = 8, 12, 16, 20, 24, 28, 32, 36, 40, 44, 48
    sB0, sB1 = 52, 54
    sR1, sR2 = 56, 58
    sT, sT2, sOFF, sCNT = 60, 61, 62, 63
    sM = 64
    sKB, sCB, sCI = 66, 67, 68
    sL2E, sSC = 69, 70
    sST = 72
    nst = [0]; stn = []
    def stamp(name):
        if stamps:
            a("s_memrealtime s[%d:%d]" % (sST + 2*nst[0], sST + 2*nst[0] + 1)); nst[0] += 1; stn.append(name)
            assert sST + 2*nst[0] <= 102
    def srd(b): return "s[%d:%d]" % (b, b+3)
    g.v("tid"); vL = g.v("lane"); vKo = g.v("koff"); vVo = g.v("voff")
    vM0 = g.v("m0"); vM1 = g.v("m1")
    vT = [g.v("t%d" % i) for i in range(12)]
    vX = g.v("x", 4, 2)
    vQ = g.v("q", 4, 2)
    vS = g.v("S", 16, 2)
    vD = g.v("D", 16, 2)
    vO = g.v("O", 8, 2)
    vTP = g.v("TP", 8, 2)
    vA = g.v("A", 16, 2)
    vW = g.v("W", 32, 2)
    vWD = g.v("WD", 16, 2)
    vG = g.v("G", 32, 2)
    vH = g.v("H", 4, 2)
    vP = g.v("P", 8, 2)
    vAd = [g.v("ad%d" % i) for i in range(8)]
    vMx = g.v("mx"); vRl = g.v("rl"); vCn = g.v("cn")
    vSG = g.v("sg", 4, 2)
    vSen = g.v("sen", 4, 2)

    def nop(n): a("s_nop %d" % (n-1))
    def dpp(op, d, s0, s1, ctl): a("%s_dpp v%d, v%d, v%d %s%s" % (op, d, s0, s1, ctl, DPP))
    def red_quad(op, x):
        nop(2); dpp(op, x, x, x, "quad_perm:[1,0,3,2]"); nop(2); dpp(op, x, x, x, "quad_perm:[2,3,0,1]")
    def red_swap(op, x, t, which):
        a("v_mov_b32 v%d, v%d" % (t, x)); nop(2); a("v_permlane%d_swap_b32 v%d, v%d" % (which, x, t)); a("%s v%d, v%d, v%d" % (op, x, x, t))
    def red_swap_n(op, xs, ts, which):
        for x, t in zip(xs, ts): a("v_mov_b32 v%d, v%d" % (t, x))
        if len(xs) < 3: nop(2)
        for x, t in zip(xs, ts): a("v_permlane%d_swap_b32 v%d, v%d" % (which, x, t))
        for x, t in zip(xs, ts): a("%s v%d, v%d, v%d" % (op, x, x, t))
    def red32(x, t):
        red_quad("v_add_f32", x); nop(2); dpp("v_add_f32", x, x, x, "row_half_mirror"); nop(2); dpp("v_add_f32", x, x, x, "row_mirror")
        red_swap("v_add_f32", x, t, 16)
    def rbf(d, s_, t=None):
        a("v_cvt_pk_bf16_f32 v%d, v%d, v%d" % (d, s_, s_)); a("v_lshlrev_b32 v%d, 16, v%d" % (d, d))
    def rbf2(d0, d1, s0, s1, t):
        a("v_cvt_pk_bf16_f32 v%d, v%d, v%d" % (t, s0, s1)); a("v_lshlrev_b32 v%d, 16, v%d" % (d0, t)); a("v_and_b32 v%d, 0xffff0000, v%d" % (d1, t))
    def expsub(d, x, m):
        a("v_sub_f32 v%d, v%d, v%d" % (d, x, m)); a("v_mul_f32 v%d, s%d, v%d" % (d, sL2E, d)); a("v_exp_f32 v%d, v%d" % (d, d))

    a("s_cmp_ge_u32 s2, 256"); a("s_cbranch_scc1 L_end")
    stamp("start")
    for b, off in ((sK, 8), (sX, 0), (sWQ, 24), (sWS, 88), (sV, 16), (sDBG, 80), (sWO, 32), (sWG, 48), (sWU, 56), (sWD, 64), (sOUT, 72)):
        a("s_load_dwordx2 s[%d:%d], s[0:1], %d" % (b, b+1, off))
    a("v_lshrrev_b32 v%d, 6, v0" % vT[0]); a("v_and_b32 v%d, 63, v0" % vL)
    a("s_and_b32 s%d, s2, 7" % sG); a("v_readfirstlane_b32 s%d, v%d" % (sW, vT[0])); a("s_lshr_b32 s%d, s2, 3" % sS)
    for b, n in ((sK, 1 << 26), (sV, 1 << 26), (sX, 1024), (sWQ, 1 << 22), (sWS, WS_USED if not stamps else 1 << 28), (sDBG, 256), (sWO, 1 << 22),
                 (sWG, 512*3584), (sWU, 512*3584), (sWD, 1792*1024), (sOUT, 1024)):
        a("s_mov_b32 s%d, 0x%x" % (b+2, n)); a("s_mov_b32 s%d, 0x20000" % (b+3))
    a("s_lshl_b32 s%d, s%d, 23" % (sT, sG)); a("s_lshl_b32 s%d, s%d, 14" % (sT2, sS)); a("s_add_u32 s%d, s%d, s%d" % (sT, sT, sT2))
    a("s_lshl_b32 s%d, s%d, 12" % (sT2, sW)); a("s_add_u32 s%d, s%d, s%d" % (sT, sT, sT2))
    vN, vSl = vT[1], vT[2]
    a("v_and_b32 v%d, 15, v%d" % (vN, vL)); a("v_lshrrev_b32 v%d, 4, v%d" % (vSl, vL))
    a("v_lshlrev_b32 v%d, 6, v%d" % (vAd[0], vN)); a("v_lshl_add_u32 v%d, v%d, 4, v%d" % (vAd[0], vSl, vAd[0]))
    a("v_add_u32 v%d, s%d, v%d" % (vKo, sT, vAd[0]))
    a("v_lshlrev_b32 v%d, 4, v%d" % (vVo, vL)); a("v_add_u32 v%d, s%d, v%d" % (vVo, sT, vVo))
    a("v_and_b32 v%d, 31, v%d" % (vT[3], vL)); a("s_lshl_b32 s%d, s%d, 8" % (sT, sW)); a("v_lshl_add_u32 v%d, v%d, 3, s%d" % (vAd[1], vT[3], sT))
    a("s_lshl_b32 s%d, s%d, 20" % (sT, sW)); a("s_lshl_b32 s%d, s%d, 10" % (sT2, sG)); a("s_add_u32 s%d, s%d, s%d" % (sT, sT, sT2))
    a("s_lshl_b32 s%d, s%d, 5" % (sT2, sS)); a("s_add_u32 s%d, s%d, s%d" % (sT, sT, sT2))
    a("v_lshrrev_b32 v%d, 1, v%d" % (vT[4], vL)); a("v_and_b32 v%d, 1, v%d" % (vT[5], vL))
    a("v_lshlrev_b32 v%d, 13, v%d" % (vAd[2], vT[4])); a("v_lshl_add_u32 v%d, v%d, 4, v%d" % (vAd[2], vT[5], vAd[2])); a("v_add_u32 v%d, s%d, v%d" % (vAd[2], sT, vAd[2]))
    for i in range(4): a("v_mov_b32 v%d, -1" % (vSen + i))
    a("s_lshr_b32 s%d, s%d, 3" % (sT, sS)); a("s_lshl_b32 s%d, s%d, 1" % (sKB, sG)); a("s_add_u32 s%d, s%d, s%d" % (sKB, sKB, sT))
    a("s_and_b32 s%d, s%d, 7" % (sCB, sS))
    a("s_mul_i32 s%d, s%d, 14" % (sCI, sG)); a("s_add_u32 s%d, s%d, s%d" % (sCI, sCI, sS)); a("s_sub_u32 s%d, s%d, 16" % (sCI, sCI))
    a("s_waitcnt lgkmcnt(0)")
    g.vm("buffer_load_dwordx2 %s, v%d, %s, 0 offen" % (r(vT[6], 2), vAd[1], srd(sX)), "x")
    assert vT[6] % 2 == 0
    lc = g.newlab("L_noclr")
    a("s_cmp_lg_u32 s%d, 3" % sW); a("s_cbranch_scc1 " + lc)
    a("s_lshl_b32 s%d, s%d, 5" % (sT, sG)); a("s_add_u32 s%d, s%d, s%d" % (sT, sT, sS))
    a("s_lshl_b32 s%d, s%d, 11" % (sT2, sT)); a("s_add_u32 s%d, s%d, 0x%x" % (sT2, sT2, OX))
    a("v_lshlrev_b32 v%d, 4, v%d" % (vT[8], vL))
    a("buffer_store_dwordx4 %s, v%d, %s, s%d offen sc1" % (r(vSen, 4), vT[8], srd(sWS), sT2))
    a("buffer_store_dwordx4 %s, v%d, %s, s%d offen offset:1024 sc1" % (r(vSen, 4), vT[8], srd(sWS), sT2))
    a("s_lshl_b32 s%d, s%d, 5" % (sT2, sT))
    a("v_lshlrev_b32 v%d, 13, v%d" % (vT[9], vT[4])); a("v_lshl_add_u32 v%d, v%d, 4, v%d" % (vT[9], vT[5], vT[9]))
    assert SX - QX == 0x2000 and QX == 0
    a("s_mov_b64 exec, 15")
    a("buffer_store_dwordx4 %s, v%d, %s, s%d offen sc1" % (r(vSen, 4), vT[9], srd(sWS), sT2))
    a("s_mov_b64 exec, -1")
    lC = g.newlab("L_clrC")
    a("s_cmp_ge_u32 s%d, 16" % sS); a("s_cbranch_scc1 " + lC)
    a("s_lshl_b32 s%d, s%d, 11" % (sT, sKB)); a("s_lshl_b32 s%d, s%d, 8" % (sT2, sCB)); a("s_add_u32 s%d, s%d, s%d" % (sT, sT, sT2)); a("s_add_u32 s%d, s%d, 0x%x" % (sT, sT, AX))
    a("s_mov_b64 exec, 0xffff")
    a("buffer_store_dwordx4 %s, v%d, %s, s%d offen sc1" % (r(vSen, 4), vT[8], srd(sWS), sT))
    a("s_mov_b64 exec, -1"); a("s_branch " + lc)
    g.lab(lC)
    a("s_cmp_ge_u32 s%d, 30" % sS); a("s_cbranch_scc1 " + lc)
    a("s_lshl_b32 s%d, s%d, 11" % (sT, sCI)); a("s_add_u32 s%d, s%d, 0x%x" % (sT, sT, DX))
    a("buffer_store_dwordx4 %s, v%d, %s, s%d offen sc1" % (r(vSen, 4), vT[8], srd(sWS), sT))
    a("buffer_store_dwordx4 %s, v%d, %s, s%d offen offset:1024 sc1" % (r(vSen, 4), vT[8], srd(sWS), sT))
    g.lab(lc)
    a("s_lshl_b32 s%d, s%d, 12" % (sT, sW))
    for i in range(4):
        a("s_add_u32 m0, s%d, %d" % (sT, LW + i*1024)); a("s_mov_b32 s%d, %d" % (sOFF, i*262144))
        g.vm("buffer_load_dwordx4 v%d, %s, s%d offen %s lds" % (vAd[2], srd(sWQ), sOFF, wpol), "wq%d" % i)

    def issue(n):
        t, j = divmod(n, 64); st, c = divmod(j, 4)
        if c == 0: a("s_mov_b32 s%d, 0x%x" % (sOFF, st << 19))
        g.vm("buffer_load_dwordx4 %s, v%d, %s, s%d offen offset:%d %s" % (ar(4*j, 4), vVo if t else vKo, srd(sV if t else sK), sOFF, c*1024, (pol if (t == 0 or vpol is None) else vpol)), "n%d" % n)

    def ln_part1(x, lst):
        t0, t1, t2 = vT[0], vT[1], vT[2]
        a("v_add_f32 v%d, v%d, v%d" % (t0, x, x+1)); a("v_add_f32 v%d, v%d, v%d" % (t1, x+2, x+3)); a("v_add_f32 v%d, v%d, v%d" % (t0, t0, t1))
        red32(t0, t1)
        a("v_mul_f32 v%d, 0x3c000000, v%d" % (vT[4], t0))
        for e in range(4): a("v_sub_f32 v%d, v%d, v%d" % (vT[6+e], x+e, vT[4]))
        a("v_mul_f32 v%d, v%d, v%d" % (vT[5], vT[6], vT[6]))
        for e in range(1, 4): a("v_fmac_f32 v%d, v%d, v%d" % (vT[5], vT[6+e], vT[6+e]))
        red32(vT[5], t1)
        assert vT[4] % 2 == 0
        a("s_lshl_b32 s%d, s%d, 3" % (sT, sW)); a("s_add_u32 s%d, s%d, %d" % (sT, sT, lst)); a("v_mov_b32 v%d, s%d" % (t2, sT))
        a("s_mov_b64 exec, 1"); a("ds_write_b64 v%d, %s" % (t2, r(vT[4], 2))); a("s_mov_b64 exec, -1")
        a("s_waitcnt lgkmcnt(0)"); a("s_barrier")
    def ln_part2(x, lst, lact, nks):
        a("v_mov_b32 v%d, %d" % (vT[0], lst))
        a("ds_read_b128 %s, v%d" % (r(vD, 4), vT[0])); a("ds_read_b128 %s, v%d offset:16" % (r(vD+4, 4), vT[0]))
        a("v_and_b32 v%d, 31, v%d" % (vT[1], vL)); a("s_lshl_b32 s%d, s%d, 8" % (sT, sW)); a("s_add_u32 s%d, s%d, %d" % (sT, sT, lact))
        a("v_lshl_add_u32 v%d, v%d, 3, s%d" % (vT[10], vT[1], sT))
        a("v_lshrrev_b32 v%d, 4, v%d" % (vT[1], vL)); a("v_lshl_add_u32 v%d, v%d, 3, s%d" % (vT[11], vT[1], sT))
        a("s_waitcnt lgkmcnt(0)")
        m = [vD, vD+2, vD+4, vD+6]; q2 = [vD+1, vD+3, vD+5, vD+7]
        a("v_add_f32 v%d, v%d, v%d" % (vT[0], m[0], m[1])); a("v_add_f32 v%d, v%d, v%d" % (vT[1], m[2], m[3])); a("v_add_f32 v%d, v%d, v%d" % (vT[0], vT[0], vT[1]))
        a("v_mul_f32 v%d, 0.25, v%d" % (vT[0], vT[0]) if False else "v_mul_f32 v%d, 0x3e800000, v%d" % (vT[0], vT[0]))
        a("v_add_f32 v%d, v%d, v%d" % (vT[2], q2[0], q2[1])); a("v_add_f32 v%d, v%d, v%d" % (vT[3], q2[2], q2[3]))
        for e in range(4): a("v_sub_f32 v%d, v%d, v%d" % (m[e], m[e], vT[0]))
        a("v_add_f32 v%d, v%d, v%d" % (vT[2], vT[2], vT[3]))
        a("v_mul_f32 v%d, v%d, v%d" % (vT[3], m[0], m[0]))
        for e in range(1, 4): a("v_fmac_f32 v%d, v%d, v%d" % (vT[3], m[e], m[e]))
        a("v_fmac_f32 v%d, 0x43000000, v%d" % (vT[2], vT[3]))
        a("v_mul_f32 v%d, 0x3b000000, v%d" % (vT[2], vT[2]))
        rbf2(vT[0], vT[2], vT[0], vT[2], vT[1])
        a("v_add_f32 v%d, 0x%x, v%d" % (vT[2], EPS, vT[2]))
        for e in range(4): a("v_sub_f32 v%d, v%d, v%d" % (vT[6+e], x+e, vT[0]))
        rbf(vT[2], vT[2])
        a("v_sqrt_f32 v%d, v%d" % (vT[2], vT[2]))
        rbf2(vT[6], vT[7], vT[6], vT[7], vT[1])
        rbf(vT[2], vT[2])
        a("v_rcp_f32 v%d, v%d" % (vT[2], vT[2]))
        rbf2(vT[8], vT[9], vT[8], vT[9], vT[1])
        for e in range(4): a("v_mul_f32 v%d, v%d, v%d" % (vT[6+e], vT[6+e], vT[2]))
        a("v_cvt_pk_bf16_f32 v%d, v%d, v%d" % (vT[4], vT[6], vT[7])); a("v_cvt_pk_bf16_f32 v%d, v%d, v%d" % (vT[5], vT[8], vT[9]))
        a("ds_write_b64 v%d, %s" % (vT[10], r(vT[4], 2)))
        for ks in range(nks):
            a("ds_read2_b64 %s, v%d offset0:%d offset1:%d" % (r(vA + 4*ks, 4), vT[11], ks*8, ks*8 + 4))
    def tr_linear(dst, base, nks):
        for ks in range(nks):
            for rr in range(2):
                a("ds_read_b64_tr_b16 %s, v%d offset:%d" % (r(dst + 4*ks + 2*rr, 2), vT[3], base + ks*1024 + rr*512))

    work = {}
    def at(n, f): work.setdefault(n, []).append(f)

    def c_ln1():
        stamp("first")
        a("v_lshlrev_b32 v%d, 16, v%d" % (vX, vT[6])); a("v_and_b32 v%d, 0xffff0000, v%d" % (vX+1, vT[6]))
        a("v_lshlrev_b32 v%d, 16, v%d" % (vX+2, vT[7])); a("v_and_b32 v%d, 0xffff0000, v%d" % (vX+3, vT[7]))
        l2 = g.newlab("L_nosig")
        a("s_cmp_lg_u32 s%d, 3" % sW); a("s_cbranch_scc1 " + l2)
        a("s_and_b32 s%d, s2, 63" % sT); a("s_lshl_b32 s%d, s%d, 2" % (sT, sT)); a("v_mov_b32 v%d, s%d" % (vT[0], sT)); a("v_mov_b32 v%d, 1" % vT[1])
        a("s_mov_b64 exec, 1"); a("buffer_atomic_add v%d, v%d, %s, 0 offen sc1" % (vT[1], vT[0], srd(sDBG))); a("s_mov_b64 exec, -1")
        nop(2)
        g.lab(l2)
        ln_part1(vX, LST)
    def c_ln2():
        a("s_lshl_b32 s%d, s%d, 12" % (sT, sW)); a("v_lshl_add_u32 v%d, v%d, 3, s%d" % (vT[3], vL, sT))
        tr_linear(vW, LW, 4)
        ln_part2(vX, LST, LACT, 4)
    def c_q():
        a("s_waitcnt lgkmcnt(0)")
        for ks in range(4):
            a("v_mfma_f32_16x16x32_bf16 %s, %s, %s, %s" % (r(vD, 4), r(vA + 4*ks, 4), r(vW + 4*ks, 4), r(vD, 4) if ks else "0"))
        a("v_and_b32 v%d, 15, v%d" % (vT[0], vL)); a("s_lshl_b32 s%d, s%d, 2" % (sT, sW)); a("s_add_u32 s%d, s%d, %d" % (sT, sT, LRED))
        a("v_lshl_add_u32 v%d, v%d, 4, s%d" % (vT[0], vT[0], sT)); nop(8)
        a("s_mov_b64 exec, 0xffff"); a("ds_write_b32 v%d, v%d" % (vT[0], vD)); a("s_mov_b64 exec, -1")
        a("s_waitcnt lgkmcnt(0)"); a("s_barrier")
        l2 = g.newlab("L_noq")
        a("s_cmp_lg_u32 s%d, 0" % sW); a("s_cbranch_scc1 " + l2)
        a("s_mov_b64 exec, 0xff")
        a("v_lshlrev_b32 v%d, 5, v%d" % (vT[0], vL))
        a("ds_read_b128 %s, v%d offset:%d" % (r(vD, 4), vT[0], LRED)); a("ds_read_b128 %s, v%d offset:%d" % (r(vD+4, 4), vT[0], LRED+16))
        a("s_lshl_b32 s%d, s%d, 5" % (sT, sG)); a("s_add_u32 s%d, s%d, s%d" % (sT, sT, sS)); a("s_lshl_b32 s%d, s%d, 5" % (sT, sT))
        a("v_lshlrev_b32 v%d, 2, v%d" % (vT[1], vL))
        a("s_waitcnt lgkmcnt(0)")
        for b in (vD, vD+4):
            a("v_add_f32 v%d, v%d, v%d" % (b, b, b+1)); a("v_add_f32 v%d, v%d, v%d" % (b+2, b+2, b+3)); a("v_add_f32 v%d, v%d, v%d" % (b, b, b+2))
        a("v_cvt_pk_bf16_f32 v%d, v%d, v%d" % (vT[0], vD, vD+4)); a("v_min_u32 v%d, -2, v%d" % (vT[0], vT[0]))
        a("buffer_store_dword v%d, v%d, %s, s%d offen sc1" % (vT[0], vT[1], srd(sWS), sT))
        a("s_mov_b64 exec, -1")
        g.lab(l2)
        stamp("qpub")
        a("s_mov_b32 s%d, 0x%x" % (sL2E, LOG2E)); a("s_mov_b32 s%d, 0x%x" % (sSC, SCALE))
        a("v_and_b32 v%d, 1, v%d" % (vT[0], vL)); a("v_cmp_ne_u32 s[%d:%d], 0, v%d" % (sB0, sB0+1, vT[0]))
        a("v_and_b32 v%d, 2, v%d" % (vT[0], vL)); a("v_cmp_ne_u32 s[%d:%d], 0, v%d" % (sB1, sB1+1, vT[0]))
        a("v_and_b32 v%d, 16, v%d" % (vT[0], vL)); a("v_cmp_ne_u32 s[%d:%d], 0, v%d" % (sR1, sR1+1, vT[0]))
        a("v_and_b32 v%d, 32, v%d" % (vT[0], vL)); a("v_cmp_ne_u32 s[%d:%d], 0, v%d" % (sR2, sR2+1, vT[0]))
        a("v_mov_b32 v%d, 0xffff" % vT[0]); a("v_mov_b32 v%d, 0xffff0000" % vT[1])
        a("v_cndmask_b32 v%d, v%d, v%d, s[%d:%d]" % (vT[0], vT[0], vT[1], sB0, sB0+1))
        a("v_cndmask_b32 v%d, v%d, 0, s[%d:%d]" % (vM0, vT[0], sB1, sB1+1))
        a("v_cndmask_b32 v%d, 0, v%d, s[%d:%d]" % (vM1, vT[0], sB1, sB1+1))
        for i in range(8): a("v_mov_b32 v%d, 0" % (vO + i))
    at(D, c_ln1); at(D+1, c_ln2); at(D+2, c_q)

    def retry(check, reload):
        lp, ok = g.newlab("L_retry"), g.newlab("L_ok")
        check()
        a("s_cbranch_vccz " + ok)
        a("s_mov_b32 s%d, 0" % sCNT)
        g.lab(lp)
        a("s_mov_b64 exec, vcc")
        reload()
        a("s_mov_b64 exec, -1")
        a("s_waitcnt vmcnt(0)")
        check()
        a("s_add_u32 s%d, s%d, 1" % (sCNT, sCNT)); a("s_cmp_ge_u32 s%d, %d" % (sCNT, spin)); a("s_cbranch_scc1 " + ok)
        a("s_cbranch_vccnz " + lp)
        g.lab(ok)
    def chk_sen(base, n):
        def f():
            t = vT[0]
            if n == 4:
                a("v_max3_u32 v%d, v%d, v%d, v%d" % (t, base, base+1, base+2)); a("v_max_u32 v%d, v%d, v%d" % (t, t, base+3))
            else:
                t2 = vT[1]; h = n//2
                a("v_max_u32 v%d, v%d, v%d" % (t, base, base+1)); a("v_max_u32 v%d, v%d, v%d" % (t2, base+h, base+h+1))
                for i in range(2, h, 2):
                    a("v_max3_u32 v%d, v%d, v%d, v%d" % (t, t, base+i, base+i+1)); a("v_max3_u32 v%d, v%d, v%d, v%d" % (t2, t2, base+h+i, base+h+i+1))
                a("v_max_u32 v%d, v%d, v%d" % (t, t, t2))
            a("v_cmp_eq_u32 vcc, -1, v%d" % t)
        return f

    ld_cnt = lambda: "buffer_load_dword v%d, v%d, %s, 0 offen sc1" % (vCn, vAd[3], srd(sDBG))
    def c_cnt():
        a("v_lshlrev_b32 v%d, 2, v%d" % (vAd[3], vL)); g.vm(ld_cnt(), "cnt")
    ld_q = lambda: "buffer_load_dwordx4 %s, v%d, %s, s%d offen sc1" % (r(vQ, 4), vAd[0], srd(sWS), sT2)
    def c_qld():
        g.wait("cnt")
        retry(lambda: a("v_cmp_gt_u32 vcc, 4, v%d" % vCn), lambda: a(ld_cnt()))
        stamp("cntok")
        a("s_lshl_b32 s%d, s%d, 10" % (sT2, sG)); g.vm(ld_q(), "q")
    def c_qchk():
        g.wait("q")
        a("s_lshl_b32 s%d, s%d, 10" % (sT2, sG))
        retry(chk_sen(vQ, 4), lambda: a(ld_q()))
        stamp("qok")
    at(n_cnt, c_cnt); at(n_q, c_qld); at(n_qk, c_qchk)

    def qk_step(T):
        def f():
            g.wait("n%d" % (4*T + 3))
            for u in range(4):
                a("v_mfma_f32_16x16x32_bf16 %s, %s, %s, 0" % (r(vD + 4*u, 4), ar(16*T + 4*u, 4), r(vQ, 4)))
            nop(8)
            Dv = lambda u, j: vD + 4*u + j
            for rr in (3, 2, 1, 0):
                X = [Dv(aa ^ rr, aa) for aa in range(4)]
                a("v_cndmask_b32 v%d, v%d, v%d, s[%d:%d]" % (vT[4], X[0], X[1], sB0, sB0+1))
                a("v_cndmask_b32 v%d, v%d, v%d, s[%d:%d]" % (vT[5], X[2], X[3], sB0, sB0+1))
                a("v_cndmask_b32 v%d, v%d, v%d, s[%d:%d]" % (vT[rr], vT[4], vT[5], sB1, sB1+1))
            dpp("v_add_f32", vT[2], vT[3], vT[2], "quad_perm:[1,0,3,2]"); nop(1)
            dpp("v_add_f32", vT[0], vT[1], vT[0], "quad_perm:[1,0,3,2]"); nop(2)
            dpp("v_add_f32", vT[0], vT[2], vT[0], "quad_perm:[2,3,0,1]")
            rbf(vT[0], vT[0]); a("v_mul_f32 v%d, s%d, v%d" % (vT[0], sSC, vT[0])); rbf(vS + T, vT[0])
        return f
    nq = n_qk
    for T in range(16):
        nq = max(nq, 4*T + 3 + D)
        assert nq < 64 + 4*T, "QK step must precede the V load that reuses its slots"
        at(nq, qk_step(T)); nq += 1
    n_st = nq

    def red_hs(op, x, t):
        red_quad(op, x); red_swap(op, x, t, 16); red_swap(op, x, t, 32)
    def c_stat1():
        stamp("qkdone")
        a("v_max3_f32 v%d, v%d, v%d, v%d" % (vMx, vS, vS+1, vS+2))
        for i in range(3, 15, 2): a("v_max3_f32 v%d, v%d, v%d, v%d" % (vMx, vMx, vS+i, vS+i+1))
        a("v_max_f32 v%d, v%d, v%d" % (vMx, vMx, vS+15))
        red_hs("v_max_f32", vMx, vT[0])
    def c_stat2():
        for i in range(16): expsub(vD + i, vS + i, vMx)
        nop(1)
        for st in (8, 4, 2, 1):
            for i in range(st): a("v_add_f32 v%d, v%d, v%d" % (vD+i, vD+i, vD+i+st))
        red_hs("v_add_f32", vD, vT[0])
        a("v_mov_b32 v%d, v%d" % (vT[4], vMx)); a("v_mov_b32 v%d, v%d" % (vT[5], vD))
        a("v_bfe_u32 v%d, v%d, 2, 2" % (vT[0], vL)); a("s_lshl_b32 s%d, s%d, 3" % (sT, sW)); a("s_add_u32 s%d, s%d, %d" % (sT, sT, LS2))
        a("v_lshl_add_u32 v%d, v%d, 5, s%d" % (vT[1], vT[0], sT))
        a("s_mov_b64 exec, 0x1111"); a("ds_write_b64 v%d, %s" % (vT[1], r(vT[4], 2))); a("s_mov_b64 exec, -1")
        a("s_waitcnt lgkmcnt(0)"); a("s_barrier")
        l2 = g.newlab("L_nost")
        a("s_cmp_lg_u32 s%d, 0" % sW); a("s_cbranch_scc1 " + l2)
        a("s_mov_b64 exec, 0x1111")
        a("v_lshlrev_b32 v%d, 5, v%d" % (vT[1], vT[0]))
        a("ds_read_b128 %s, v%d offset:%d" % (r(vD, 4), vT[1], LS2)); a("ds_read_b128 %s, v%d offset:%d" % (r(vD+4, 4), vT[1], LS2+16))
        a("s_lshl_b32 s%d, s%d, 5" % (sT, sG)); a("s_add_u32 s%d, s%d, s%d" % (sT, sT, sS)); a("s_lshl_b32 s%d, s%d, 5" % (sT, sT)); a("s_add_u32 s%d, s%d, 0x%x" % (sT, sT, SX))
        a("v_lshlrev_b32 v%d, 3, v%d" % (vT[1], vT[0]))
        a("s_waitcnt lgkmcnt(0)")
        a("v_max3_f32 v%d, v%d, v%d, v%d" % (vT[4], vD, vD+2, vD+4)); a("v_max_f32 v%d, v%d, v%d" % (vT[4], vT[4], vD+6))
        for i in range(4): expsub(vD + 2*i, vD + 2*i, vT[4])
        nop(1)
        a("v_mul_f32 v%d, v%d, v%d" % (vT[5], vD, vD+1))
        for i in range(1, 4): a("v_fmac_f32 v%d, v%d, v%d" % (vT[5], vD+2*i, vD+2*i+1))
        a("v_min_u32 v%d, -2, v%d" % (vT[4], vT[4])); a("v_min_u32 v%d, -2, v%d" % (vT[5], vT[5]))
        a("buffer_store_dwordx2 %s, v%d, %s, s%d offen sc1" % (r(vT[4], 2), vT[1], srd(sWS), sT))
        a("s_mov_b64 exec, -1")
        g.lab(l2)
        stamp("spub")
    at(n_st, c_stat1); at(n_st+1, c_stat2)
    assert n_sg > n_st + 1
    def ld_sg(emit):
        emit("buffer_load_dwordx2 %s, v%d, %s, s%d offen sc1" % (r(vSG, 2), vAd[4], srd(sWS), sT2), "sg0")
        emit("buffer_load_dwordx2 %s, v%d, %s, s%d offen offset:512 sc1" % (r(vSG+2, 2), vAd[4], srd(sWS), sT2), "sg1")
    def sg_base(): a("s_lshl_b32 s%d, s%d, 10" % (sT2, sG)); a("s_add_u32 s%d, s%d, 0x%x" % (sT2, sT2, SX))
    def c_sg():
        a("v_lshrrev_b32 v%d, 4, v%d" % (vT[0], vL)); a("v_and_b32 v%d, 3, v%d" % (vT[1], vL)); a("v_lshl_add_u32 v%d, v%d, 2, v%d" % (vT[0], vT[0], vT[1]))
        a("v_bfe_u32 v%d, v%d, 2, 2" % (vT[1], vL)); a("v_lshlrev_b32 v%d, 3, v%d" % (vT[1], vT[1])); a("v_lshl_add_u32 v%d, v%d, 5, v%d" % (vAd[4], vT[0], vT[1]))
        sg_base(); ld_sg(g.vm)
    def c_p():
        g.wait("sg1"); sg_base()
        retry(chk_sen(vSG, 4), lambda: ld_sg(lambda t, tag: a(t)))
        stamp("sgok")
        a("v_max_f32 v%d, v%d, v%d" % (vMx, vSG, vSG+2)); red_hs("v_max_f32", vMx, vT[0])
        expsub(vSG, vSG, vMx); expsub(vSG+2, vSG+2, vMx); nop(1)
        a("v_mul_f32 v%d, v%d, v%d" % (vRl, vSG, vSG+1)); a("v_fmac_f32 v%d, v%d, v%d" % (vRl, vSG+2, vSG+3))
        red_hs("v_add_f32", vRl, vT[0]); a("v_rcp_f32 v%d, v%d" % (vRl, vRl))
    def c_p2():
        for i in range(16): expsub(vS + i, vS + i, vMx)
        nop(1)
        for i in range(16):
            a("v_mul_f32 v%d, v%d, v%d" % (vS+i, vS+i, vRl))
        for i in range(16):
            a("v_cvt_pk_bf16_f32 v%d, v%d, v%d" % (vS+i, vS+i, vS+i))
        nop(2)
    at(n_sg, c_sg); at(n_pv, c_p); at(n_pv+1, c_p2)

    pvn = [0]
    def pv_prep(j):
        T, u = divmod(j, 4); tp = vTP + 2*(j % 4)
        ctl = "quad_perm:[%d,%d,%d,%d]" % (u, u, u, u)
        dpp("v_and_b32", tp, vS + T, vM0, ctl); dpp("v_and_b32", tp+1, vS + T, vM1, ctl)
    def pv_mma(j):
        tp = vTP + 2*(j % 4)
        a("v_mfma_f32_16x16x16_bf16 %s, %s, %s, %s" % (r(vO, 4), r(tp, 2), ar(4*j, 2), r(vO, 4)))
        a("v_mfma_f32_16x16x16_bf16 %s, %s, %s, %s" % (r(vO+4, 4), r(tp, 2), ar(4*j+2, 2), r(vO+4, 4)))
    def pv_upto(jmax):
        while pvn[0] < jmax:
            j = pvn[0]
            if j == 0: pv_prep(0)
            if j + 1 < 64: pv_prep(j + 1)
            else: nop(1)
            g.wait("n%d" % (64 + j))
            pv_mma(j); pvn[0] += 1
    for n in range(n_pv + 2, 128):
        at(n, (lambda n: lambda: pv_upto(min(pvn[0] + pv_rate, n - D - 64 + 1)))(n))

    def b_addr():
        a("v_bfe_u32 v%d, v%d, 1, 3" % (vT[0], vL)); a("v_lshlrev_b32 v%d, 10, v%d" % (vT[0], vT[0]))
        a("v_lshrrev_b32 v%d, 4, v%d" % (vT[1], vL)); a("v_lshl_add_u32 v%d, v%d, 5, v%d" % (vT[0], vT[1], vT[0]))
        a("v_and_b32 v%d, 1, v%d" % (vT[1], vL)); a("v_lshl_add_u32 v%d, v%d, 4, v%d" % (vT[0], vT[1], vT[0]))
        a("s_lshl_b32 s%d, s%d, 18" % (sT, sKB)); a("s_lshl_b32 s%d, s%d, 16" % (sT2, sW)); a("s_add_u32 s%d, s%d, s%d" % (sT, sT, sT2))
        a("s_lshl_b32 s%d, s%d, 7" % (sT2, sCB)); a("s_add_u32 s%d, s%d, s%d" % (sT, sT, sT2))
        a("v_add_u32 v%d, s%d, v%d" % (vAd[5], sT, vT[0]))
    def b_loads(emit):
        a("s_lshl_b32 s%d, s%d, 13" % (sT, sW))
        for i in range(8):
            a("s_add_u32 m0, s%d, %d" % (sT, LW + i*1024)); a("s_mov_b32 s%d, %d" % (sT2, i*8192))
            emit("buffer_load_dwordx4 v%d, %s, s%d offen %s lds" % (vAd[5], srd(sWO), sT2, wpol), "wo%d" % i)

    for n in range(128):
        if n >= D: g.wait("n%d" % (n - D))
        issue(n)
        for f in work.get(n, []): f()
    stamp("lastissue")
    LB, LC, LD = "L_roleB", "L_roleC", "L_roleD"
    a("s_cmp_ge_u32 s%d, 30" % sS); a("s_cbranch_scc1 " + LD)
    a("s_cmp_ge_u32 s%d, 16" % sS); a("s_cbranch_scc1 " + LC)
    q_save = list(g.q); pv_save = pvn[0]; nst_save = nst[0]

    def drain_publish():
        pv_upto(64)
        stamp("pvdone")
        a("s_lshl_b32 s%d, s%d, 11" % (sT, sW)); a("s_add_u32 s%d, s%d, %d" % (sT, sT, LO))
        a("v_lshl_add_u32 v%d, v%d, 5, s%d" % (vT[0], vL, sT))
        a("s_lshl_b32 s%d, s%d, 9" % (sT, sW)); a("v_and_b32 v%d, 31, v%d" % (vT[1], vL)); a("v_lshl_add_u32 v%d, v%d, 4, s%d" % (vT[1], vT[1], sT))
        a("v_lshrrev_b32 v%d, 5, v%d" % (vT[2], vL)); a("v_lshl_add_u32 v%d, v%d, 12, v%d" % (vT[2], vT[2], vT[1]))
        nop(2)
        a("ds_write_b128 v%d, %s" % (vT[0], r(vO, 4))); a("ds_write_b128 v%d, %s offset:16" % (vT[0], r(vO+4, 4)))
        a("s_lshl_b32 s%d, s%d, 5" % (sT, sG)); a("s_add_u32 s%d, s%d, s%d" % (sT, sT, sS)); a("s_lshl_b32 s%d, s%d, 11" % (sT, sT)); a("s_add_u32 s%d, s%d, 0x%x" % (sT, sT, OX))
        a("s_waitcnt lgkmcnt(0)"); a("s_barrier")
        a("ds_read_b128 %s, v%d offset:%d" % (r(vD, 4), vT[2], LO)); a("ds_read_b128 %s, v%d offset:%d" % (r(vD+4, 4), vT[2], LO + 2048))
        a("s_waitcnt lgkmcnt(0)")
        a("v_pk_add_f32 %s, %s, %s" % (r(vD, 2), r(vD, 2), r(vD+4, 2))); a("v_pk_add_f32 %s, %s, %s" % (r(vD+2, 2), r(vD+2, 2), r(vD+6, 2)))
        red_swap_n("v_add_f32", [vD+i for i in range(4)], [vD+4+i for i in range(4)], 32)
        for i in range(4): a("v_min_u32 v%d, -2, v%d" % (vD+i, vD+i))
        a("s_mov_b64 exec, 0xffffffff")
        a("buffer_store_dwordx4 %s, v%d, %s, s%d offen sc1" % (r(vD, 4), vT[1], srd(sWS), sT))
        a("s_mov_b64 exec, -1")
        stamp("opub")
    def gather(n, addr, soffs, pre=None):
        def lds_(emit):
            for i in range(n):
                a("s_mov_b32 s%d, 0x%x" % (sT2, soffs[i]))
                emit("buffer_load_dwordx4 %s, v%d, %s, s%d offen sc1" % (r(vG + 4*i, 4), addr, srd(sWS), sT2), "g%d" % i)
        lds_(g.vm)
        if pre: pre()
        g.waitall()
        retry(chk_sen(vG, 4*n), lambda: lds_(lambda t, tag: a(t)))
    def sum_g(n):
        st = 1
        while st < n:
            for i in range(0, n, 2*st):
                if i + st < n:
                    for h in range(2): a("v_pk_add_f32 %s, %s, %s" % (r(vG+4*i+2*h, 2), r(vG+4*i+2*h, 2), r(vG+4*(i+st)+2*h, 2)))
            st *= 2
    def attn_to_h(x):
        red_swap_n("v_add_f32", [vG+i for i in range(4)], [vG+4+i for i in range(4)], 32)
        rbf2(vG, vG+1, vG, vG+1, vT[0]); rbf2(vG+2, vG+3, vG+2, vG+3, vT[1])
        for e in range(4): a("v_add_f32 v%d, v%d, v%d" % (vG+e, vG+e, x+e))
        rbf2(vH, vH+1, vG, vG+1, vT[0]); rbf2(vH+2, vH+3, vG+2, vG+3, vT[1])
    def finish():
        if stamps:
            a("s_waitcnt lgkmcnt(0)")
            a("s_lshl_b32 s%d, s2, 2" % sT); a("s_add_u32 s%d, s%d, s%d" % (sT, sT, sW)); a("s_lshl_b32 s%d, s%d, 6" % (sT, sT)); a("s_add_u32 s%d, s%d, 0x%x" % (sT, sT, STAMP))
            a("s_mov_b64 exec, 1"); a("v_mov_b32 v%d, s%d" % (vT[0], sT))
            for i in range(16):
                a("v_mov_b32 v%d, %s" % (vG + i, ("s%d" % (sST + 2*i)) if i < nst[0] else "0"))
            for i in range(4): a("buffer_store_dwordx4 %s, v%d, %s, 0 offen offset:%d" % (r(vG+4*i, 4), vT[0], srd(sWS), 16*i))
        a("s_endpgm")

    g.lab(LB)
    b_addr(); b_loads(g.vm)
    drain_publish()
    a("s_lshl_b32 s%d, s%d, 16" % (sT, sG)); a("s_lshr_b32 s%d, s%d, 3" % (sT2, sS)); a("s_lshl_b32 s%d, s%d, 10" % (sT2, sT2)); a("s_add_u32 s%d, s%d, s%d" % (sT, sT, sT2))
    a("s_lshl_b32 s%d, s%d, 8" % (sT2, sW)); a("s_add_u32 s%d, s%d, s%d" % (sT, sT, sT2))
    a("v_lshrrev_b32 v%d, 4, v%d" % (vT[2], vL)); a("v_and_b32 v%d, 15, v%d" % (vT[4], vL))
    a("v_lshlrev_b32 v%d, 11, v%d" % (vT[0], vT[2])); a("v_lshl_add_u32 v%d, v%d, 4, v%d" % (vT[0], vT[4], vT[0])); a("v_add_u32 v%d, s%d, v%d" % (vAd[6], sT, vT[0]))
    def b_pre():
        a("s_lshl_b32 s%d, s%d, 13" % (sT, sW))
        a("v_lshrrev_b32 v%d, 5, v%d" % (vT[0], vL)); a("v_lshlrev_b32 v%d, 10, v%d" % (vT[0], vT[0]))
        a("v_and_b32 v%d, 31, v%d" % (vT[1], vL)); a("v_lshl_add_u32 v%d, v%d, 3, v%d" % (vT[0], vT[1], vT[0])); a("v_add_u32 v%d, s%d, v%d" % (vT[3], sT, vT[0]))
        a("s_lshl_b32 s%d, s%d, 8" % (sT, sW)); a("s_add_u32 s%d, s%d, %d" % (sT, sT, LACT2))
        a("v_lshl_add_u32 v%d, v%d, 3, s%d" % (vT[10], vT[4], sT)); a("v_lshl_add_u32 v%d, v%d, 3, s%d" % (vT[11], vT[2], sT))
        a("s_lshl_b32 s%d, s%d, 2" % (sT, sW)); a("s_add_u32 s%d, s%d, %d" % (sT, sT, LRED2)); a("v_lshl_add_u32 v%d, v%d, 4, s%d" % (vT[9], vL, sT))
        g.wait("wo7")
        for ks in range(2):
            for c in range(4):
                for rr in range(2):
                    a("ds_read_b64_tr_b16 %s, v%d offset:%d" % (r(vW + 16*ks + 4*c + 2*rr, 2), vT[3], LW + (4*ks + 2*rr)*1024 + c*256))
    gather(8, vAd[6], [OX + 4*i*2048 for i in range(8)], b_pre)
    stamp("x1ok")
    sum_g(8)
    red_swap_n("v_add_f32", [vG+i for i in range(4)], [vG+4+i for i in range(4)], 16)
    red_swap_n("v_add_f32", [vG+i for i in range(4)], [vG+4+i for i in range(4)], 32)
    a("v_cvt_pk_bf16_f32 v%d, v%d, v%d" % (vT[4], vG, vG+1)); a("v_cvt_pk_bf16_f32 v%d, v%d, v%d" % (vT[5], vG+2, vG+3))
    a("ds_write_b64 v%d, %s" % (vT[10], r(vT[4], 2)))
    for ks in range(2): a("ds_read2_b64 %s, v%d offset0:%d offset1:%d" % (r(vA + 4*ks, 4), vT[11], ks*8, ks*8 + 4))
    a("s_waitcnt lgkmcnt(0)")
    for ks in range(2):
        for c in range(4):
            a("v_mfma_f32_16x16x32_bf16 %s, %s, %s, %s" % (r(vD + 4*c, 4), r(vA + 4*ks, 4), r(vW + 16*ks + 4*c, 4), r(vD + 4*c, 4) if ks else "0"))
    a("s_lshl_b32 s%d, s%d, 11" % (sT, sKB)); a("s_lshl_b32 s%d, s%d, 8" % (sT2, sCB)); a("s_add_u32 s%d, s%d, s%d" % (sT, sT, sT2)); a("s_add_u32 s%d, s%d, 0x%x" % (sT, sT, AX))
    nop(4)
    a("v_cndmask_b32 v%d, v%d, v%d, s[%d:%d]" % (vT[0], vD, vD+4, sR1, sR1+1)); a("v_cndmask_b32 v%d, v%d, v%d, s[%d:%d]" % (vT[1], vD+8, vD+12, sR1, sR1+1))
    a("v_cndmask_b32 v%d, v%d, v%d, s[%d:%d]" % (vT[0], vT[0], vT[1], sR2, sR2+1))
    a("ds_write_b32 v%d, v%d" % (vT[9], vT[0]))
    a("v_lshlrev_b32 v%d, 4, v%d" % (vT[2], vL)); a("v_lshlrev_b32 v%d, 2, v%d" % (vT[3], vL))
    a("s_waitcnt lgkmcnt(0)"); a("s_barrier")
    lb = g.newlab("L_bdone")
    a("s_cmp_lg_u32 s%d, 0" % sW); a("s_cbranch_scc1 " + lb)
    a("ds_read_b128 %s, v%d offset:%d" % (r(vD, 4), vT[2], LRED2)); a("s_waitcnt lgkmcnt(0)")
    a("v_add_f32 v%d, v%d, v%d" % (vD, vD, vD+1)); a("v_add_f32 v%d, v%d, v%d" % (vD+2, vD+2, vD+3)); a("v_add_f32 v%d, v%d, v%d" % (vD, vD, vD+2))
    a("v_min_u32 v%d, -2, v%d" % (vD, vD))
    a("buffer_store_dword v%d, v%d, %s, s%d offen sc1" % (vD, vT[3], srd(sWS), sT))
    g.lab(lb)
    stamp("bpub")
    finish()
    stB = list(stn)

    g.lab(LC); g.q = list(q_save); pvn[0] = pv_save; nst[0] = nst_save; del stn[nst_save:]
    drain_publish()
    a("v_lshrrev_b32 v%d, 1, v%d" % (vT[0], vL)); a("v_mul_u32_u24 v%d, 3584, v%d" % (vT[0], vT[0])); a("v_and_b32 v%d, 1, v%d" % (vT[1], vL)); a("v_lshl_add_u32 v%d, v%d, 4, v%d" % (vT[0], vT[1], vT[0]))
    a("s_mul_i32 s%d, s%d, %d" % (sT, sW, 128*3584)); a("s_lshl_b32 s%d, s%d, 5" % (sT2, sCI)); a("s_add_u32 s%d, s%d, s%d" % (sT, sT, sT2)); a("v_add_u32 v%d, s%d, v%d" % (vAd[5], sT, vT[0]))
    a("s_lshl_b32 s%d, s%d, 13" % (sT, sW))
    for mi, sb in enumerate((sWG, sWU)):
        for i in range(4):
            a("s_add_u32 m0, s%d, %d" % (sT, LW + mi*4096 + i*1024)); a("s_mov_b32 s%d, %d" % (sT2, i*32*3584))
            g.vm("buffer_load_dwordx4 v%d, %s, s%d offen %s lds" % (vAd[5], srd(sb), sT2, wpol), "gu%d" % (4*mi + i))
    a("v_lshrrev_b32 v%d, 4, v%d" % (vT[2], vL)); a("v_and_b32 v%d, 15, v%d" % (vT[4], vL))
    a("s_lshl_b32 s%d, s%d, 14" % (sT, sCI)); a("s_lshl_b32 s%d, s%d, 8" % (sT2, sW)); a("s_add_u32 s%d, s%d, s%d" % (sT, sT, sT2))
    a("v_lshlrev_b32 v%d, 12, v%d" % (vT[0], vT[2])); a("v_lshl_add_u32 v%d, v%d, 4, v%d" % (vT[0], vT[4], vT[0])); a("v_add_u32 v%d, s%d, v%d" % (vAd[7], sT, vT[0]))
    for t in range(4):
        g.vm("buffer_load_dwordx4 %s, v%d, %s, 0 offen offset:%d %s" % (r(vWD + 4*t, 4), vAd[7], srd(sWD), t*1024, wpol), "wd%d" % t)
    a("s_lshl_b32 s%d, s%d, 9" % (sT, sW)); a("v_lshrrev_b32 v%d, 5, v%d" % (vT[0], vL)); a("v_and_b32 v%d, 31, v%d" % (vT[1], vL))
    a("v_lshlrev_b32 v%d, 11, v%d" % (vT[0], vT[0])); a("v_lshl_add_u32 v%d, v%d, 4, v%d" % (vT[0], vT[1], vT[0])); a("v_add_u32 v%d, s%d, v%d" % (vAd[6], sT, vT[0]))
    a("v_and_b32 v%d, 4, v%d" % (vT[0], vL)); a("v_cmp_ne_u32 vcc, 0, v%d" % vT[0]); nop(2)
    a("v_cndmask_b32 v%d, v%d, 0, vcc" % (vP, vM0) if False else "v_cndmask_b32_e64 v%d, v%d, 0, vcc" % (vP, vM0))
    a("v_cndmask_b32_e64 v%d, v%d, 0, vcc" % (vP+1, vM1)); a("v_cndmask_b32_e64 v%d, 0, v%d, vcc" % (vP+2, vM0)); a("v_cndmask_b32_e64 v%d, 0, v%d, vcc" % (vP+3, vM1))
    a("s_lshl_b32 s%d, s%d, 13" % (sT, sW)); a("v_lshl_add_u32 v%d, v%d, 3, s%d" % (vT[3], vL, sT))
    g.wait("gu7")
    tr_linear(vW, LW, 4); tr_linear(vW + 16, LW + 4096, 4)
    stamp("cwok")
    gather(8, vAd[6], [AX + 2*i*2048 for i in range(8)])
    stamp("x2ok")
    sum_g(8); attn_to_h(vX)
    ln_part1(vH, LST2)
    ln_part2(vH, LST2, LACT2, 4)
    a("v_and_b32 v%d, 31, v%d" % (vT[0], vL)); a("s_lshl_b32 s%d, s%d, 2" % (sT, sW)); a("s_add_u32 s%d, s%d, %d" % (sT, sT, LRED2)); a("v_lshl_add_u32 v%d, v%d, 4, s%d" % (vT[9], vT[0], sT))
    a("v_lshrrev_b32 v%d, 4, v%d" % (vT[0], vL)); a("v_and_b32 v%d, 3, v%d" % (vT[1], vL)); a("v_lshl_add_u32 v%d, v%d, 2, v%d" % (vT[0], vT[0], vT[1])); a("v_lshlrev_b32 v%d, 4, v%d" % (vT[8], vT[0]))
    a("s_waitcnt lgkmcnt(0)")
    for ks in range(4):
        for mi in range(2):
            a("v_mfma_f32_16x16x32_bf16 %s, %s, %s, %s" % (r(vD + 4*mi, 4), r(vA + 4*ks, 4), r(vW + 16*mi + 4*ks, 4), r(vD + 4*mi, 4) if ks else "0"))
    a("s_lshl_b32 s%d, s%d, 11" % (sT, sCI)); a("s_lshl_b32 s%d, s%d, 9" % (sT2, sW)); a("s_add_u32 s%d, s%d, s%d" % (sT, sT, sT2)); a("s_add_u32 s%d, s%d, 0x%x" % (sT, sT, DX))
    nop(4)
    a("v_cndmask_b32 v%d, v%d, v%d, s[%d:%d]" % (vT[0], vD, vD+4, sR1, sR1+1))
    a("ds_write_b32 v%d, v%d" % (vT[9], vT[0]))
    a("v_and_b32 v%d, 15, v%d" % (vT[0], vL)); a("v_bfe_u32 v%d, v%d, 4, 1" % (vT[1], vL)); a("v_lshlrev_b32 v%d, 5, v%d" % (vT[0], vT[0])); a("v_lshl_add_u32 v%d, v%d, 4, v%d" % (vT[7], vT[1], vT[0]))
    a("s_waitcnt lgkmcnt(0)"); a("s_barrier")
    a("ds_read_b128 %s, v%d offset:%d" % (r(vD, 4), vT[8], LRED2)); a("ds_read_b128 %s, v%d offset:%d" % (r(vD+4, 4), vT[8], LRED2 + 256))
    a("s_waitcnt lgkmcnt(0)")
    for b in (vD, vD+4): a("v_add_f32 v%d, v%d, v%d" % (b, b, b+1))
    for b in (vD, vD+4): a("v_add_f32 v%d, v%d, v%d" % (b+2, b+2, b+3))
    for b in (vD, vD+4): a("v_add_f32 v%d, v%d, v%d" % (b, b, b+2))
    rbf2(vT[0], vT[1], vD, vD+4, vT[2])
    a("v_mul_f32 v%d, s%d, v%d" % (vT[0], sL2E, vT[0])); a("v_exp_f32 v%d, -v%d" % (vT[0], vT[0])); nop(1)
    a("v_add_f32 v%d, 1.0, v%d" % (vT[0], vT[0])); a("v_rcp_f32 v%d, v%d" % (vT[0], vT[0])); nop(1)
    rbf(vT[0], vT[0]); a("v_mul_f32 v%d, v%d, v%d" % (vT[0], vT[0], vT[1])); a("v_cvt_pk_bf16_f32 v%d, v%d, v%d" % (vT[0], vT[0], vT[0])); nop(2)
    for t in range(4):
        for j in range(4): dpp("v_and_b32", vA + 4*t + j, vT[0], vP + j, "quad_perm:[%d,%d,%d,%d]" % (t, t, t, t))
        if t >= 1: a("v_mfma_f32_16x16x32_bf16 %s, %s, %s, %s" % (r(vD, 4), r(vA + 4*(t-1), 4), r(vWD + 4*(t-1), 4), r(vD, 4) if t > 1 else "0"))
    nop(1)
    a("v_mfma_f32_16x16x32_bf16 %s, %s, %s, %s" % (r(vD, 4), r(vA + 12, 4), r(vWD + 12, 4), r(vD, 4)))
    nop(8)
    for i in range(4): a("v_min_u32 v%d, -2, v%d" % (vD+i, vD+i))
    a("s_mov_b64 exec, 0xffffffff")
    a("buffer_store_dwordx4 %s, v%d, %s, s%d offen sc1" % (r(vD, 4), vT[7], srd(sWS), sT))
    a("s_mov_b64 exec, -1")
    stamp("cpub")
    finish()
    stC = list(stn)

    g.lab(LD); g.q = list(q_save); pvn[0] = pv_save; nst[0] = nst_save; del stn[nst_save:]
    drain_publish()
    sDJ = sKB
    a("s_lshl_b32 s%d, s%d, 1" % (sDJ, sG)); a("s_add_u32 s%d, s%d, s%d" % (sDJ, sDJ, sS)); a("s_sub_u32 s%d, s%d, 30" % (sDJ, sDJ))
    a("v_and_b32 v%d, 7, v%d" % (vT[4], vL)); a("s_lshl_b32 s%d, s%d, 6" % (sT, sDJ)); a("v_lshl_add_u32 v%d, v%d, 3, s%d" % (vAd[7], vT[4], sT))
    g.vm("buffer_load_dwordx2 %s, v%d, %s, 0 offen" % (r(vT[6], 2), vAd[7], srd(sX)), "x2")
    a("s_lshl_b32 s%d, s%d, 7" % (sT, sDJ)); a("v_lshrrev_b32 v%d, 5, v%d" % (vT[0], vL)); a("v_lshlrev_b32 v%d, 11, v%d" % (vT[0], vT[0]))
    a("v_lshl_add_u32 v%d, v%d, 4, v%d" % (vT[0], vT[4], vT[0])); a("v_add_u32 v%d, s%d, v%d" % (vAd[6], sT, vT[0]))
    a("s_lshl_b32 s%d, s%d, 14" % (sT2, sW)); a("s_add_u32 s%d, s%d, s%d" % (sT, sT, sT2))
    a("v_lshrrev_b32 v%d, 3, v%d" % (vT[0], vL)); a("v_lshlrev_b32 v%d, 11, v%d" % (vT[0], vT[0])); a("v_lshl_add_u32 v%d, v%d, 4, v%d" % (vT[0], vT[4], vT[0])); a("v_add_u32 v%d, s%d, v%d" % (vAd[5], sT, vT[0]))
    gather(8, vAd[6], [AX + 2*i*2048 for i in range(8)])
    stamp("x2ok")
    a("v_lshlrev_b32 v%d, 16, v%d" % (vX, vT[6])); a("v_and_b32 v%d, 0xffff0000, v%d" % (vX+1, vT[6]))
    a("v_lshlrev_b32 v%d, 16, v%d" % (vX+2, vT[7])); a("v_and_b32 v%d, 0xffff0000, v%d" % (vX+3, vT[7]))
    sum_g(8); attn_to_h(vX)
    a("s_lshl_b32 s%d, s%d, 7" % (sT, sW)); a("s_add_u32 s%d, s%d, %d" % (sT, sT, LRED2)); a("v_lshl_add_u32 v%d, v%d, 4, s%d" % (vT[9], vT[4], sT))
    a("v_lshlrev_b32 v%d, 4, v%d" % (vT[8], vT[4]))
    l3, l4 = g.newlab("L_d3"), g.newlab("L_d4")
    a("s_cmp_ge_u32 s%d, 2" % sW); a("s_cbranch_scc1 " + l3)
    gather(4, vAd[5], [DX + 32*i*2048 for i in range(4)]); sum_g(4)
    a("s_branch " + l4)
    g.lab(l3)
    gather(3, vAd[5], [DX + 32*i*2048 for i in range(3)]); sum_g(3)
    g.lab(l4)
    stamp("x3ok")
    nop(1)
    for i in range(4): dpp("v_add_f32", vG+i, vG+i, vG+i, "row_ror:8")
    red_swap_n("v_add_f32", [vG+i for i in range(4)], [vG+4+i for i in range(4)], 16)
    red_swap_n("v_add_f32", [vG+i for i in range(4)], [vG+4+i for i in range(4)], 32)
    a("s_mov_b64 exec, 0xff"); a("ds_write_b128 v%d, %s" % (vT[9], r(vG, 4))); a("s_mov_b64 exec, -1")
    a("s_waitcnt lgkmcnt(0)"); a("s_barrier")
    ld = g.newlab("L_ddone")
    a("s_cmp_lg_u32 s%d, 0" % sW); a("s_cbranch_scc1 " + ld)
    a("s_mov_b64 exec, 0xff")
    for w in range(4): a("ds_read_b128 %s, v%d offset:%d" % (r(vG + 4*w, 4), vT[8], LRED2 + 128*w))
    a("s_waitcnt lgkmcnt(0)")
    sum_g(4)
    rbf2(vG, vG+1, vG, vG+1, vT[0]); rbf2(vG+2, vG+3, vG+2, vG+3, vT[1])
    for e in range(4): a("v_add_f32 v%d, v%d, v%d" % (vG+e, vG+e, vH+e))
    a("v_cvt_pk_bf16_f32 v%d, v%d, v%d" % (vT[4], vG, vG+1)); a("v_cvt_pk_bf16_f32 v%d, v%d, v%d" % (vT[5], vG+2, vG+3))
    a("buffer_store_dwordx2 %s, v%d, %s, 0 offen" % (r(vT[4], 2), vAd[7], srd(sOUT)))
    a("s_mov_b64 exec, -1")
    g.lab(ld)
    stamp("out")
    finish()
    stD = list(stn)
    g.lab("L_end"); a("s_endpgm")

    hdr = """; Fused decode layer: LN -> q proj -> GQA attention over the KV cache -> out proj -> LN -> GLU MLP, one persistent launch.
; 256 workgroups (one per CU) x 4 waves. Hand-offs through d_ws carry self-validating words (cleared at entry, clear counted in d_debug).
; @launch grid=(256,1,1) block=(256,1,1) lds=%d
.amdgcn_target "amdgcn-amd-amdhsa--gfx950"
.text
.globl %s_kernel
.p2align 8
.type %s_kernel,@function
%s_kernel:
""" % (LDS_SIZE, KN, KN, KN)
    ftr = """
.section .rodata,"a"
.p2align 6
.amdhsa_kernel %s_kernel
  .amdhsa_next_free_vgpr 512
  .amdhsa_next_free_sgpr 102
  .amdhsa_accum_offset 256
  .amdhsa_group_segment_fixed_size 0
  .amdhsa_kernarg_size 96
  .amdhsa_user_sgpr_count 2
  .amdhsa_user_sgpr_kernarg_segment_ptr 1
  .amdhsa_system_sgpr_workgroup_id_x 1
  .amdhsa_float_denorm_mode_32 3
.end_amdhsa_kernel
""" % KN
    return hdr + "\n".join(g.L) + ftr, dict(B=stB, C=stC, D=stD, nv=g.vn)

if __name__ == "__main__":
    kw = eval("dict(%s)" % (sys.argv[2] if len(sys.argv) > 2 else ""))
    src, info = gen(**kw)
    open(sys.argv[1], "w").write(src); print(info, len(src))
```

```python
import sys
KN = "sequential_preLN__gqa_block_cached__glu_gated_glu__decode"

QX = 0x0000
SX = 0x2000
AX = 0x4000
DX = 0x10000
OX = 0x80000
WS_USED = 0x100000
STAMP = 0x200000
LW   = 0
LACT = 0x8000
LACT2= 0x8400
LST  = 0x8800
LST2 = 0x8840
LRED = 0x8900
LS2  = 0x8A00
LRED2= 0x8B00
LO   = 0x9000
LDS_SIZE = 0xB000

LOG2E = 0x3FB8AA3B
SCALE = 0x3DB504F3
EPS   = 0x3727C5AC

class G:
    def __init__(s):
        s.L = []; s.q = []; s.nlab = 0; s.vn = 0; s.names = {}
    def a(s, x): s.L.append("  " + x)
    def lab(s, x): s.L.append(x + ":")
    def newlab(s, p="L"):
        s.nlab += 1; return "%s_%d" % (p, s.nlab)
    def v(s, name, n=1, align=1):
        if n > 1: align = max(align, 2)
        s.vn = (s.vn + align - 1)//align*align
        r = s.vn; s.vn += n; s.names[name] = r
        assert s.vn <= 256
        return r
    def vm(s, txt, tag):
        s.a(txt); s.q.append(tag)
    def wait(s, tag):
        if tag not in s.q: return
        i = s.q.index(tag); n = len(s.q) - 1 - i
        assert n <= 63
        s.a("s_waitcnt vmcnt(%d)" % n); s.q = s.q[i+1:]
    def waitall(s):
        s.a("s_waitcnt vmcnt(0)"); s.q = []

def r(a, n): return "v[%d:%d]" % (a, a+n-1)
def ar(a, n): return "a[%d:%d]" % (a, a+n-1)
DPP = " row_mask:0xf bank_mask:0xf"

def gen(D=8, pol="nt", vpol=None, wpol="nt", exactP=True, stamps=False, n_cnt=40, n_q=48, n_qk=56, n_sg=100, n_pv=108, pv_rate=6,
        wo_at=128, spin=1<<16, codewarm=False, probe=None):
    g = G(); a = g.a
    sW, sG, sS = 3, 4, 5
    sK, sV, sWS, sX, sWQ, sWO, sWG, sWU, sWD, sOUT, sDBG = 8, 12, 16, 20, 24, 28, 32, 36, 40, 44, 48
    sB0, sB1 = 52, 54
    sR1, sR2 = 56, 58
    sT, sT2, sOFF, sCNT = 60, 61, 62, 63
    sM = 64
    sKB, sCB, sCI = 66, 67, 68
    sL2E, sSC = 69, 70
    sST = 72
    nst = [0]; stn = []
    def stamp(name):
        if stamps or probe:
            a("s_memrealtime s[%d:%d]" % (sST + 2*nst[0], sST + 2*nst[0] + 1)); nst[0] += 1; stn.append(name)
            assert sST + 2*nst[0] <= 102
    def srd(b): return "s[%d:%d]" % (b, b+3)
    g.v("tid"); vL = g.v("lane"); vKo = g.v("koff"); vVo = g.v("voff")
    vM0 = g.v("m0"); vM1 = g.v("m1")
    vT = [g.v("t%d" % i) for i in range(12)]
    vX = g.v("x", 4, 2)
    vQ = g.v("q", 4, 2)
    vS = g.v("S", 16, 2)
    vD = g.v("D", 16, 2)
    vO = g.v("O", 8, 2)
    vTP = g.v("TP", 8, 2)
    vA = g.v("A", 16, 2)
    vW = g.v("W", 32, 2)
    vWD = g.v("WD", 16, 2)
    vG = g.v("G", 32, 2)
    vH = g.v("H", 4, 2)
    vP = g.v("P", 8, 2)
    vAd = [g.v("ad%d" % i) for i in range(8)]
    vMx = g.v("mx"); vRl = g.v("rl"); vCn = g.v("cn")
    vSG = g.v("sg", 4, 2)
    vSen = g.v("sen", 4, 2)

    def nop(n): a("s_nop %d" % (n-1))
    def dpp(op, d, s0, s1, ctl): a("%s_dpp v%d, v%d, v%d %s%s" % (op, d, s0, s1, ctl, DPP))
    def red_quad(op, x):
        nop(2); dpp(op, x, x, x, "quad_perm:[1,0,3,2]"); nop(2); dpp(op, x, x, x, "quad_perm:[2,3,0,1]")
    def red_swap(op, x, t, which):
        a("v_mov_b32 v%d, v%d" % (t, x)); nop(2); a("v_permlane%d_swap_b32 v%d, v%d" % (which, x, t)); a("%s v%d, v%d, v%d" % (op, x, x, t))
    def red_swap_n(op, xs, ts, which):
        for x, t in zip(xs, ts): a("v_mov_b32 v%d, v%d" % (t, x))
        if len(xs) < 3: nop(2)
        for x, t in zip(xs, ts): a("v_permlane%d_swap_b32 v%d, v%d" % (which, x, t))
        for x, t in zip(xs, ts): a("%s v%d, v%d, v%d" % (op, x, x, t))
    def red32(x, t):
        red_quad("v_add_f32", x); nop(2); dpp("v_add_f32", x, x, x, "row_half_mirror"); nop(2); dpp("v_add_f32", x, x, x, "row_mirror")
        red_swap("v_add_f32", x, t, 16)
    def rbf(d, s_, t=None):
        a("v_cvt_pk_bf16_f32 v%d, v%d, v%d" % (d, s_, s_)); a("v_lshlrev_b32 v%d, 16, v%d" % (d, d))
    def rbf2(d0, d1, s0, s1, t):
        a("v_cvt_pk_bf16_f32 v%d, v%d, v%d" % (t, s0, s1)); a("v_lshlrev_b32 v%d, 16, v%d" % (d0, t)); a("v_and_b32 v%d, 0xffff0000, v%d" % (d1, t))
    def expsub(d, x, m):
        a("v_sub_f32 v%d, v%d, v%d" % (d, x, m)); a("v_mul_f32 v%d, s%d, v%d" % (d, sL2E, d)); a("v_exp_f32 v%d, v%d" % (d, d))

    a("s_cmp_ge_u32 s2, 256"); a("s_cbranch_scc1 L_end")
    stamp("start")
    for b, off in ((sK, 8), (sX, 0), (sWQ, 24), (sWS, 88), (sV, 16), (sDBG, 80), (sWO, 32), (sWG, 48), (sWU, 56), (sWD, 64), (sOUT, 72)):
        a("s_load_dwordx2 s[%d:%d], s[0:1], %d" % (b, b+1, off))
    a("v_lshrrev_b32 v%d, 6, v0" % vT[0]); a("v_and_b32 v%d, 63, v0" % vL)
    a("s_and_b32 s%d, s2, 7" % sG); a("v_readfirstlane_b32 s%d, v%d" % (sW, vT[0])); a("s_lshr_b32 s%d, s2, 3" % sS)
    for b, n in ((sK, 1 << 26), (sV, 1 << 26), (sX, 1024), (sWQ, 1 << 22), (sWS, WS_USED if not stamps else 1 << 28), (sDBG, 256), (sWO, 1 << 22),
                 (sWG, 512*3584), (sWU, 512*3584), (sWD, 1792*1024), (sOUT, 1024)):
        a("s_mov_b32 s%d, 0x%x" % (b+2, n)); a("s_mov_b32 s%d, 0x20000" % (b+3))
    a("s_lshl_b32 s%d, s%d, 23" % (sT, sG)); a("s_lshl_b32 s%d, s%d, 14" % (sT2, sS)); a("s_add_u32 s%d, s%d, s%d" % (sT, sT, sT2))
    a("s_lshl_b32 s%d, s%d, 12" % (sT2, sW)); a("s_add_u32 s%d, s%d, s%d" % (sT, sT, sT2))
    vN, vSl = vT[1], vT[2]
    a("v_and_b32 v%d, 15, v%d" % (vN, vL)); a("v_lshrrev_b32 v%d, 4, v%d" % (vSl, vL))
    a("v_lshlrev_b32 v%d, 6, v%d" % (vAd[0], vN)); a("v_lshl_add_u32 v%d, v%d, 4, v%d" % (vAd[0], vSl, vAd[0]))
    a("v_add_u32 v%d, s%d, v%d" % (vKo, sT, vAd[0]))
    a("v_lshlrev_b32 v%d, 4, v%d" % (vVo, vL)); a("v_add_u32 v%d, s%d, v%d" % (vVo, sT, vVo))
    a("v_and_b32 v%d, 31, v%d" % (vT[3], vL)); a("s_lshl_b32 s%d, s%d, 8" % (sT, sW)); a("v_lshl_add_u32 v%d, v%d, 3, s%d" % (vAd[1], vT[3], sT))
    a("s_lshl_b32 s%d, s%d, 20" % (sT, sW)); a("s_lshl_b32 s%d, s%d, 10" % (sT2, sG)); a("s_add_u32 s%d, s%d, s%d" % (sT, sT, sT2))
    a("s_lshl_b32 s%d, s%d, 5" % (sT2, sS)); a("s_add_u32 s%d, s%d, s%d" % (sT, sT, sT2))
    a("v_lshrrev_b32 v%d, 1, v%d" % (vT[4], vL)); a("v_and_b32 v%d, 1, v%d" % (vT[5], vL))
    a("v_lshlrev_b32 v%d, 13, v%d" % (vAd[2], vT[4])); a("v_lshl_add_u32 v%d, v%d, 4, v%d" % (vAd[2], vT[5], vAd[2])); a("v_add_u32 v%d, s%d, v%d" % (vAd[2], sT, vAd[2]))
    for i in range(4): a("v_mov_b32 v%d, -1" % (vSen + i))
    a("s_lshr_b32 s%d, s%d, 3" % (sT, sS)); a("s_lshl_b32 s%d, s%d, 1" % (sKB, sG)); a("s_add_u32 s%d, s%d, s%d" % (sKB, sKB, sT))
    a("s_and_b32 s%d, s%d, 7" % (sCB, sS))
    a("s_mul_i32 s%d, s%d, 14" % (sCI, sG)); a("s_add_u32 s%d, s%d, s%d" % (sCI, sCI, sS)); a("s_sub_u32 s%d, s%d, 16" % (sCI, sCI))
    a("s_waitcnt lgkmcnt(0)")
    g.vm("buffer_load_dwordx2 %s, v%d, %s, 0 offen" % (r(vT[6], 2), vAd[1], srd(sX)), "x")
    assert vT[6] % 2 == 0
    lc = g.newlab("L_noclr")
    a("s_cmp_lg_u32 s%d, 3" % sW); a("s_cbranch_scc1 " + lc)
    a("s_lshl_b32 s%d, s%d, 5" % (sT, sG)); a("s_add_u32 s%d, s%d, s%d" % (sT, sT, sS))
    a("s_lshl_b32 s%d, s%d, 11" % (sT2, sT)); a("s_add_u32 s%d, s%d, 0x%x" % (sT2, sT2, OX))
    a("v_lshlrev_b32 v%d, 4, v%d" % (vT[8], vL))
    a("buffer_store_dwordx4 %s, v%d, %s, s%d offen sc1" % (r(vSen, 4), vT[8], srd(sWS), sT2))
    a("buffer_store_dwordx4 %s, v%d, %s, s%d offen offset:1024 sc1" % (r(vSen, 4), vT[8], srd(sWS), sT2))
    a("s_lshl_b32 s%d, s%d, 5" % (sT2, sT))
    a("v_lshlrev_b32 v%d, 13, v%d" % (vT[9], vT[4])); a("v_lshl_add_u32 v%d, v%d, 4, v%d" % (vT[9], vT[5], vT[9]))
    assert SX - QX == 0x2000 and QX == 0
    a("s_mov_b64 exec, 15")
    a("buffer_store_dwordx4 %s, v%d, %s, s%d offen sc1" % (r(vSen, 4), vT[9], srd(sWS), sT2))
    a("s_mov_b64 exec, -1")
    lC = g.newlab("L_clrC")
    a("s_cmp_ge_u32 s%d, 16" % sS); a("s_cbranch_scc1 " + lC)
    a("s_lshl_b32 s%d, s%d, 11" % (sT, sKB)); a("s_lshl_b32 s%d, s%d, 8" % (sT2, sCB)); a("s_add_u32 s%d, s%d, s%d" % (sT, sT, sT2)); a("s_add_u32 s%d, s%d, 0x%x" % (sT, sT, AX))
    a("s_mov_b64 exec, 0xffff")
    a("buffer_store_dwordx4 %s, v%d, %s, s%d offen sc1" % (r(vSen, 4), vT[8], srd(sWS), sT))
    a("s_mov_b64 exec, -1"); a("s_branch " + lc)
    g.lab(lC)
    a("s_cmp_ge_u32 s%d, 30" % sS); a("s_cbranch_scc1 " + lc)
    a("s_lshl_b32 s%d, s%d, 11" % (sT, sCI)); a("s_add_u32 s%d, s%d, 0x%x" % (sT, sT, DX))
    a("buffer_store_dwordx4 %s, v%d, %s, s%d offen sc1" % (r(vSen, 4), vT[8], srd(sWS), sT))
    a("buffer_store_dwordx4 %s, v%d, %s, s%d offen offset:1024 sc1" % (r(vSen, 4), vT[8], srd(sWS), sT))
    g.lab(lc)
    a("s_lshl_b32 s%d, s%d, 12" % (sT, sW))
    for i in range(4):
        a("s_add_u32 m0, s%d, %d" % (sT, LW + i*1024)); a("s_mov_b32 s%d, %d" % (sOFF, i*262144))
        g.vm("buffer_load_dwordx4 v%d, %s, s%d offen %s lds" % (vAd[2], srd(sWQ), sOFF, wpol), "wq%d" % i)

    def issue(n):
        t, j = divmod(n, 64); st, c = divmod(j, 4)
        if c == 0: a("s_mov_b32 s%d, 0x%x" % (sOFF, st << 19))
        g.vm("buffer_load_dwordx4 %s, v%d, %s, s%d offen offset:%d %s" % (ar(4*j, 4), vVo if t else vKo, srd(sV if t else sK), sOFF, c*1024, (pol if (t == 0 or vpol is None) else vpol)), "n%d" % n)

    def ln_part1(x, lst):
        t0, t1, t2 = vT[0], vT[1], vT[2]
        a("v_add_f32 v%d, v%d, v%d" % (t0, x, x+1)); a("v_add_f32 v%d, v%d, v%d" % (t1, x+2, x+3)); a("v_add_f32 v%d, v%d, v%d" % (t0, t0, t1))
        red32(t0, t1)
        a("v_mul_f32 v%d, 0x3c000000, v%d" % (vT[4], t0))
        for e in range(4): a("v_sub_f32 v%d, v%d, v%d" % (vT[6+e], x+e, vT[4]))
        a("v_mul_f32 v%d, v%d, v%d" % (vT[5], vT[6], vT[6]))
        for e in range(1, 4): a("v_fmac_f32 v%d, v%d, v%d" % (vT[5], vT[6+e], vT[6+e]))
        red32(vT[5], t1)
        assert vT[4] % 2 == 0
        a("s_lshl_b32 s%d, s%d, 3" % (sT, sW)); a("s_add_u32 s%d, s%d, %d" % (sT, sT, lst)); a("v_mov_b32 v%d, s%d" % (t2, sT))
        a("s_mov_b64 exec, 1"); a("ds_write_b64 v%d, %s" % (t2, r(vT[4], 2))); a("s_mov_b64 exec, -1")
        a("s_waitcnt lgkmcnt(0)"); a("s_barrier")
    def ln_part2(x, lst, lact, nks):
        a("v_mov_b32 v%d, %d" % (vT[0], lst))
        a("ds_read_b128 %s, v%d" % (r(vD, 4), vT[0])); a("ds_read_b128 %s, v%d offset:16" % (r(vD+4, 4), vT[0]))
        a("v_and_b32 v%d, 31, v%d" % (vT[1], vL)); a("s_lshl_b32 s%d, s%d, 8" % (sT, sW)); a("s_add_u32 s%d, s%d, %d" % (sT, sT, lact))
        a("v_lshl_add_u32 v%d, v%d, 3, s%d" % (vT[10], vT[1], sT))
        a("v_lshrrev_b32 v%d, 4, v%d" % (vT[1], vL)); a("v_lshl_add_u32 v%d, v%d, 3, s%d" % (vT[11], vT[1], sT))
        a("s_waitcnt lgkmcnt(0)")
        m = [vD, vD+2, vD+4, vD+6]; q2 = [vD+1, vD+3, vD+5, vD+7]
        a("v_add_f32 v%d, v%d, v%d" % (vT[0], m[0], m[1])); a("v_add_f32 v%d, v%d, v%d" % (vT[1], m[2], m[3])); a("v_add_f32 v%d, v%d, v%d" % (vT[0], vT[0], vT[1]))
        a("v_mul_f32 v%d, 0.25, v%d" % (vT[0], vT[0]) if False else "v_mul_f32 v%d, 0x3e800000, v%d" % (vT[0], vT[0]))
        a("v_add_f32 v%d, v%d, v%d" % (vT[2], q2[0], q2[1])); a("v_add_f32 v%d, v%d, v%d" % (vT[3], q2[2], q2[3]))
        for e in range(4): a("v_sub_f32 v%d, v%d, v%d" % (m[e], m[e], vT[0]))
        a("v_add_f32 v%d, v%d, v%d" % (vT[2], vT[2], vT[3]))
        a("v_mul_f32 v%d, v%d, v%d" % (vT[3], m[0], m[0]))
        for e in range(1, 4): a("v_fmac_f32 v%d, v%d, v%d" % (vT[3], m[e], m[e]))
        a("v_fmac_f32 v%d, 0x43000000, v%d" % (vT[2], vT[3]))
        a("v_mul_f32 v%d, 0x3b000000, v%d" % (vT[2], vT[2]))
        rbf2(vT[0], vT[2], vT[0], vT[2], vT[1])
        a("v_add_f32 v%d, 0x%x, v%d" % (vT[2], EPS, vT[2]))
        for e in range(4): a("v_sub_f32 v%d, v%d, v%d" % (vT[6+e], x+e, vT[0]))
        rbf(vT[2], vT[2])
        a("v_sqrt_f32 v%d, v%d" % (vT[2], vT[2]))
        rbf2(vT[6], vT[7], vT[6], vT[7], vT[1])
        rbf(vT[2], vT[2])
        a("v_rcp_f32 v%d, v%d" % (vT[2], vT[2]))
        rbf2(vT[8], vT[9], vT[8], vT[9], vT[1])
        for e in range(4): a("v_mul_f32 v%d, v%d, v%d" % (vT[6+e], vT[6+e], vT[2]))
        a("v_cvt_pk_bf16_f32 v%d, v%d, v%d" % (vT[4], vT[6], vT[7])); a("v_cvt_pk_bf16_f32 v%d, v%d, v%d" % (vT[5], vT[8], vT[9]))
        a("ds_write_b64 v%d, %s" % (vT[10], r(vT[4], 2)))
        for ks in range(nks):
            a("ds_read2_b64 %s, v%d offset0:%d offset1:%d" % (r(vA + 4*ks, 4), vT[11], ks*8, ks*8 + 4))
    def tr_linear(dst, base, nks):
        for ks in range(nks):
            for rr in range(2):
                a("ds_read_b64_tr_b16 %s, v%d offset:%d" % (r(dst + 4*ks + 2*rr, 2), vT[3], base + ks*1024 + rr*512))

    work = {}
    def at(n, f): work.setdefault(n, []).append(f)

    def c_ln1():
        stamp("first")
        a("v_lshlrev_b32 v%d, 16, v%d" % (vX, vT[6])); a("v_and_b32 v%d, 0xffff0000, v%d" % (vX+1, vT[6]))
        a("v_lshlrev_b32 v%d, 16, v%d" % (vX+2, vT[7])); a("v_and_b32 v%d, 0xffff0000, v%d" % (vX+3, vT[7]))
        l2 = g.newlab("L_nosig")
        a("s_cmp_lg_u32 s%d, 3" % sW); a("s_cbranch_scc1 " + l2)
        a("s_and_b32 s%d, s2, 63" % sT); a("s_lshl_b32 s%d, s%d, 2" % (sT, sT)); a("v_mov_b32 v%d, s%d" % (vT[0], sT)); a("v_mov_b32 v%d, 1" % vT[1])
        a("s_mov_b64 exec, 1"); a("buffer_atomic_add v%d, v%d, %s, 0 offen sc1" % (vT[1], vT[0], srd(sDBG))); a("s_mov_b64 exec, -1")
        nop(2)
        g.lab(l2)
        ln_part1(vX, LST)
    def c_ln2():
        a("s_lshl_b32 s%d, s%d, 12" % (sT, sW)); a("v_lshl_add_u32 v%d, v%d, 3, s%d" % (vT[3], vL, sT))
        tr_linear(vW, LW, 4)
        ln_part2(vX, LST, LACT, 4)
    def c_q():
        a("s_waitcnt lgkmcnt(0)")
        for ks in range(4):
            a("v_mfma_f32_16x16x32_bf16 %s, %s, %s, %s" % (r(vD, 4), r(vA + 4*ks, 4), r(vW + 4*ks, 4), r(vD, 4) if ks else "0"))
        a("v_and_b32 v%d, 15, v%d" % (vT[0], vL)); a("s_lshl_b32 s%d, s%d, 2" % (sT, sW)); a("s_add_u32 s%d, s%d, %d" % (sT, sT, LRED))
        a("v_lshl_add_u32 v%d, v%d, 4, s%d" % (vT[0], vT[0], sT)); nop(8)
        a("s_mov_b64 exec, 0xffff"); a("ds_write_b32 v%d, v%d" % (vT[0], vD)); a("s_mov_b64 exec, -1")
        a("s_waitcnt lgkmcnt(0)"); a("s_barrier")
        l2 = g.newlab("L_noq")
        a("s_cmp_lg_u32 s%d, 0" % sW); a("s_cbranch_scc1 " + l2)
        a("s_mov_b64 exec, 0xff")
        a("v_lshlrev_b32 v%d, 5, v%d" % (vT[0], vL))
        a("ds_read_b128 %s, v%d offset:%d" % (r(vD, 4), vT[0], LRED)); a("ds_read_b128 %s, v%d offset:%d" % (r(vD+4, 4), vT[0], LRED+16))
        a("s_lshl_b32 s%d, s%d, 5" % (sT, sG)); a("s_add_u32 s%d, s%d, s%d" % (sT, sT, sS)); a("s_lshl_b32 s%d, s%d, 5" % (sT, sT))
        a("v_lshlrev_b32 v%d, 2, v%d" % (vT[1], vL))
        a("s_waitcnt lgkmcnt(0)")
        for b in (vD, vD+4):
            a("v_add_f32 v%d, v%d, v%d" % (b, b, b+1)); a("v_add_f32 v%d, v%d, v%d" % (b+2, b+2, b+3)); a("v_add_f32 v%d, v%d, v%d" % (b, b, b+2))
        a("v_cvt_pk_bf16_f32 v%d, v%d, v%d" % (vT[0], vD, vD+4)); a("v_min_u32 v%d, -2, v%d" % (vT[0], vT[0]))
        a("buffer_store_dword v%d, v%d, %s, s%d offen sc1" % (vT[0], vT[1], srd(sWS), sT))
        a("s_mov_b64 exec, -1")
        g.lab(l2)
        stamp("qpub")
        a("s_mov_b32 s%d, 0x%x" % (sL2E, LOG2E)); a("s_mov_b32 s%d, 0x%x" % (sSC, SCALE))
        a("v_and_b32 v%d, 1, v%d" % (vT[0], vL)); a("v_cmp_ne_u32 s[%d:%d], 0, v%d" % (sB0, sB0+1, vT[0]))
        a("v_and_b32 v%d, 2, v%d" % (vT[0], vL)); a("v_cmp_ne_u32 s[%d:%d], 0, v%d" % (sB1, sB1+1, vT[0]))
        a("v_and_b32 v%d, 16, v%d" % (vT[0], vL)); a("v_cmp_ne_u32 s[%d:%d], 0, v%d" % (sR1, sR1+1, vT[0]))
        a("v_and_b32 v%d, 32, v%d" % (vT[0], vL)); a("v_cmp_ne_u32 s[%d:%d], 0, v%d" % (sR2, sR2+1, vT[0]))
        a("v_mov_b32 v%d, 0xffff" % vT[0]); a("v_mov_b32 v%d, 0xffff0000" % vT[1])
        a("v_cndmask_b32 v%d, v%d, v%d, s[%d:%d]" % (vT[0], vT[0], vT[1], sB0, sB0+1))
        a("v_cndmask_b32 v%d, v%d, 0, s[%d:%d]" % (vM0, vT[0], sB1, sB1+1))
        a("v_cndmask_b32 v%d, 0, v%d, s[%d:%d]" % (vM1, vT[0], sB1, sB1+1))
        for i in range(8): a("v_mov_b32 v%d, 0" % (vO + i))
    at(D, c_ln1); at(D+1, c_ln2); at(D+2, c_q)

    def retry(check, reload):
        lp, ok = g.newlab("L_retry"), g.newlab("L_ok")
        check()
        a("s_cbranch_vccz " + ok)
        a("s_mov_b32 s%d, 0" % sCNT)
        g.lab(lp)
        a("s_mov_b64 exec, vcc")
        reload()
        a("s_mov_b64 exec, -1")
        a("s_waitcnt vmcnt(0)")
        check()
        a("s_add_u32 s%d, s%d, 1" % (sCNT, sCNT)); a("s_cmp_ge_u32 s%d, %d" % (sCNT, spin)); a("s_cbranch_scc1 " + ok)
        a("s_cbranch_vccnz " + lp)
        g.lab(ok)
    def chk_sen(base, n):
        def f():
            t = vT[0]
            if n == 4:
                a("v_max3_u32 v%d, v%d, v%d, v%d" % (t, base, base+1, base+2)); a("v_max_u32 v%d, v%d, v%d" % (t, t, base+3))
            else:
                t2 = vT[1]; h = n//2
                a("v_max_u32 v%d, v%d, v%d" % (t, base, base+1)); a("v_max_u32 v%d, v%d, v%d" % (t2, base+h, base+h+1))
                for i in range(2, h, 2):
                    a("v_max3_u32 v%d, v%d, v%d, v%d" % (t, t, base+i, base+i+1)); a("v_max3_u32 v%d, v%d, v%d, v%d" % (t2, t2, base+h+i, base+h+i+1))
                a("v_max_u32 v%d, v%d, v%d" % (t, t, t2))
            a("v_cmp_eq_u32 vcc, -1, v%d" % t)
        return f

    ld_cnt = lambda: "buffer_load_dword v%d, v%d, %s, 0 offen sc1" % (vCn, vAd[3], srd(sDBG))
    def c_cnt():
        a("v_lshlrev_b32 v%d, 2, v%d" % (vAd[3], vL)); g.vm(ld_cnt(), "cnt")
    ld_q = lambda: "buffer_load_dwordx4 %s, v%d, %s, s%d offen sc1" % (r(vQ, 4), vAd[0], srd(sWS), sT2)
    def c_qld():
        g.wait("cnt")
        retry(lambda: a("v_cmp_gt_u32 vcc, 4, v%d" % vCn), lambda: a(ld_cnt()))
        stamp("cntok")
        a("s_lshl_b32 s%d, s%d, 10" % (sT2, sG)); g.vm(ld_q(), "q")
    def c_qchk():
        g.wait("q")
        a("s_lshl_b32 s%d, s%d, 10" % (sT2, sG))
        retry(chk_sen(vQ, 4), lambda: a(ld_q()))
        stamp("qok")
    at(n_cnt, c_cnt); at(n_q, c_qld); at(n_qk, c_qchk)

    def qk_step(T):
        def f():
            g.wait("n%d" % (4*T + 3))
            for u in range(4):
                a("v_mfma_f32_16x16x32_bf16 %s, %s, %s, 0" % (r(vD + 4*u, 4), ar(16*T + 4*u, 4), r(vQ, 4)))
            nop(8)
            Dv = lambda u, j: vD + 4*u + j
            for rr in (3, 2, 1, 0):
                X = [Dv(aa ^ rr, aa) for aa in range(4)]
                a("v_cndmask_b32 v%d, v%d, v%d, s[%d:%d]" % (vT[4], X[0], X[1], sB0, sB0+1))
                a("v_cndmask_b32 v%d, v%d, v%d, s[%d:%d]" % (vT[5], X[2], X[3], sB0, sB0+1))
                a("v_cndmask_b32 v%d, v%d, v%d, s[%d:%d]" % (vT[rr], vT[4], vT[5], sB1, sB1+1))
            dpp("v_add_f32", vT[2], vT[3], vT[2], "quad_perm:[1,0,3,2]"); nop(1)
            dpp("v_add_f32", vT[0], vT[1], vT[0], "quad_perm:[1,0,3,2]"); nop(2)
            dpp("v_add_f32", vT[0], vT[2], vT[0], "quad_perm:[2,3,0,1]")
            rbf(vT[0], vT[0]); a("v_mul_f32 v%d, s%d, v%d" % (vT[0], sSC, vT[0])); rbf(vS + T, vT[0])
        return f
    nq = n_qk
    for T in range(16):
        nq = max(nq, 4*T + 3 + D)
        assert nq < 64 + 4*T, "QK step must precede the V load that reuses its slots"
        at(nq, qk_step(T)); nq += 1
    n_st = nq

    def red_hs(op, x, t):
        red_quad(op, x); red_swap(op, x, t, 16); red_swap(op, x, t, 32)
    def c_stat1():
        stamp("qkdone")
        a("v_max3_f32 v%d, v%d, v%d, v%d" % (vMx, vS, vS+1, vS+2))
        for i in range(3, 15, 2): a("v_max3_f32 v%d, v%d, v%d, v%d" % (vMx, vMx, vS+i, vS+i+1))
        a("v_max_f32 v%d, v%d, v%d" % (vMx, vMx, vS+15))
        red_hs("v_max_f32", vMx, vT[0])
    def c_stat2():
        for i in range(16): expsub(vD + i, vS + i, vMx)
        nop(1)
        for st in (8, 4, 2, 1):
            for i in range(st): a("v_add_f32 v%d, v%d, v%d" % (vD+i, vD+i, vD+i+st))
        red_hs("v_add_f32", vD, vT[0])
        a("v_mov_b32 v%d, v%d" % (vT[4], vMx)); a("v_mov_b32 v%d, v%d" % (vT[5], vD))
        a("v_bfe_u32 v%d, v%d, 2, 2" % (vT[0], vL)); a("s_lshl_b32 s%d, s%d, 3" % (sT, sW)); a("s_add_u32 s%d, s%d, %d" % (sT, sT, LS2))
        a("v_lshl_add_u32 v%d, v%d, 5, s%d" % (vT[1], vT[0], sT))
        a("s_mov_b64 exec, 0x1111"); a("ds_write_b64 v%d, %s" % (vT[1], r(vT[4], 2))); a("s_mov_b64 exec, -1")
        a("s_waitcnt lgkmcnt(0)"); a("s_barrier")
        l2 = g.newlab("L_nost")
        a("s_cmp_lg_u32 s%d, 0" % sW); a("s_cbranch_scc1 " + l2)
        a("s_mov_b64 exec, 0x1111")
        a("v_lshlrev_b32 v%d, 5, v%d" % (vT[1], vT[0]))
        a("ds_read_b128 %s, v%d offset:%d" % (r(vD, 4), vT[1], LS2)); a("ds_read_b128 %s, v%d offset:%d" % (r(vD+4, 4), vT[1], LS2+16))
        a("s_lshl_b32 s%d, s%d, 5" % (sT, sG)); a("s_add_u32 s%d, s%d, s%d" % (sT, sT, sS)); a("s_lshl_b32 s%d, s%d, 5" % (sT, sT)); a("s_add_u32 s%d, s%d, 0x%x" % (sT, sT, SX))
        a("v_lshlrev_b32 v%d, 3, v%d" % (vT[1], vT[0]))
        a("s_waitcnt lgkmcnt(0)")
        a("v_max3_f32 v%d, v%d, v%d, v%d" % (vT[4], vD, vD+2, vD+4)); a("v_max_f32 v%d, v%d, v%d" % (vT[4], vT[4], vD+6))
        for i in range(4): expsub(vD + 2*i, vD + 2*i, vT[4])
        nop(1)
        a("v_mul_f32 v%d, v%d, v%d" % (vT[5], vD, vD+1))
        for i in range(1, 4): a("v_fmac_f32 v%d, v%d, v%d" % (vT[5], vD+2*i, vD+2*i+1))
        a("v_min_u32 v%d, -2, v%d" % (vT[4], vT[4])); a("v_min_u32 v%d, -2, v%d" % (vT[5], vT[5]))
        a("buffer_store_dwordx2 %s, v%d, %s, s%d offen sc1" % (r(vT[4], 2), vT[1], srd(sWS), sT))
        a("s_mov_b64 exec, -1")
        g.lab(l2)
        stamp("spub")
    at(n_st, c_stat1); at(n_st+1, c_stat2)
    assert n_sg > n_st + 1
    def ld_sg(emit):
        emit("buffer_load_dwordx2 %s, v%d, %s, s%d offen sc1" % (r(vSG, 2), vAd[4], srd(sWS), sT2), "sg0")
        emit("buffer_load_dwordx2 %s, v%d, %s, s%d offen offset:512 sc1" % (r(vSG+2, 2), vAd[4], srd(sWS), sT2), "sg1")
    def sg_base(): a("s_lshl_b32 s%d, s%d, 10" % (sT2, sG)); a("s_add_u32 s%d, s%d, 0x%x" % (sT2, sT2, SX))
    def c_sg():
        a("v_lshrrev_b32 v%d, 4, v%d" % (vT[0], vL)); a("v_and_b32 v%d, 3, v%d" % (vT[1], vL)); a("v_lshl_add_u32 v%d, v%d, 2, v%d" % (vT[0], vT[0], vT[1]))
        a("v_bfe_u32 v%d, v%d, 2, 2" % (vT[1], vL)); a("v_lshlrev_b32 v%d, 3, v%d" % (vT[1], vT[1])); a("v_lshl_add_u32 v%d, v%d, 5, v%d" % (vAd[4], vT[0], vT[1]))
        sg_base(); ld_sg(g.vm)
    def c_p():
        g.wait("sg1"); sg_base()
        retry(chk_sen(vSG, 4), lambda: ld_sg(lambda t, tag: a(t)))
        stamp("sgok")
        a("v_max_f32 v%d, v%d, v%d" % (vMx, vSG, vSG+2)); red_hs("v_max_f32", vMx, vT[0])
        expsub(vSG, vSG, vMx); expsub(vSG+2, vSG+2, vMx); nop(1)
        a("v_mul_f32 v%d, v%d, v%d" % (vRl, vSG, vSG+1)); a("v_fmac_f32 v%d, v%d, v%d" % (vRl, vSG+2, vSG+3))
        red_hs("v_add_f32", vRl, vT[0]); a("v_rcp_f32 v%d, v%d" % (vRl, vRl))
    def c_p2():
        for i in range(16): expsub(vS + i, vS + i, vMx)
        nop(1)
        for i in range(16):
            a("v_mul_f32 v%d, v%d, v%d" % (vS+i, vS+i, vRl))
        for i in range(16):
            a("v_cvt_pk_bf16_f32 v%d, v%d, v%d" % (vS+i, vS+i, vS+i))
        nop(2)
    at(n_sg, c_sg); at(n_pv, c_p); at(n_pv+1, c_p2)

    pvn = [0]
    def pv_prep(j):
        T, u = divmod(j, 4); tp = vTP + 2*(j % 4)
        ctl = "quad_perm:[%d,%d,%d,%d]" % (u, u, u, u)
        dpp("v_and_b32", tp, vS + T, vM0, ctl); dpp("v_and_b32", tp+1, vS + T, vM1, ctl)
    def pv_mma(j):
        tp = vTP + 2*(j % 4)
        a("v_mfma_f32_16x16x16_bf16 %s, %s, %s, %s" % (r(vO, 4), r(tp, 2), ar(4*j, 2), r(vO, 4)))
        a("v_mfma_f32_16x16x16_bf16 %s, %s, %s, %s" % (r(vO+4, 4), r(tp, 2), ar(4*j+2, 2), r(vO+4, 4)))
    def pv_upto(jmax):
        while pvn[0] < jmax:
            j = pvn[0]
            if j == 0: pv_prep(0)
            if j + 1 < 64: pv_prep(j + 1)
            else: nop(1)
            g.wait("n%d" % (64 + j))
            pv_mma(j); pvn[0] += 1
    for n in range(n_pv + 2, 128):
        at(n, (lambda n: lambda: pv_upto(min(pvn[0] + pv_rate, n - D - 64 + 1)))(n))

    def b_addr():
        a("v_bfe_u32 v%d, v%d, 1, 3" % (vT[0], vL)); a("v_lshlrev_b32 v%d, 10, v%d" % (vT[0], vT[0]))
        a("v_lshrrev_b32 v%d, 4, v%d" % (vT[1], vL)); a("v_lshl_add_u32 v%d, v%d, 5, v%d" % (vT[0], vT[1], vT[0]))
        a("v_and_b32 v%d, 1, v%d" % (vT[1], vL)); a("v_lshl_add_u32 v%d, v%d, 4, v%d" % (vT[0], vT[1], vT[0]))
        a("s_lshl_b32 s%d, s%d, 18" % (sT, sKB)); a("s_lshl_b32 s%d, s%d, 16" % (sT2, sW)); a("s_add_u32 s%d, s%d, s%d" % (sT, sT, sT2))
        a("s_lshl_b32 s%d, s%d, 7" % (sT2, sCB)); a("s_add_u32 s%d, s%d, s%d" % (sT, sT, sT2))
        a("v_add_u32 v%d, s%d, v%d" % (vAd[5], sT, vT[0]))
    def b_loads(emit):
        a("s_lshl_b32 s%d, s%d, 13" % (sT, sW))
        for i in range(8):
            a("s_add_u32 m0, s%d, %d" % (sT, LW + i*1024)); a("s_mov_b32 s%d, %d" % (sT2, i*8192))
            emit("buffer_load_dwordx4 v%d, %s, s%d offen %s lds" % (vAd[5], srd(sWO), sT2, wpol), "wo%d" % i)

    for n in range(128):
        if n >= D: g.wait("n%d" % (n - D))
        issue(n)
        for f in work.get(n, []): f()
    stamp("lastissue")
    LB, LC, LD = "L_roleB", "L_roleC", "L_roleD"
    a("s_cmp_ge_u32 s%d, 30" % sS); a("s_cbranch_scc1 " + LD)
    a("s_cmp_ge_u32 s%d, 16" % sS); a("s_cbranch_scc1 " + LC)
    q_save = list(g.q); pv_save = pvn[0]; nst_save = nst[0]

    def drain_publish():
        pv_upto(64)
        stamp("pvdone")
        a("s_lshl_b32 s%d, s%d, 11" % (sT, sW)); a("s_add_u32 s%d, s%d, %d" % (sT, sT, LO))
        a("v_lshl_add_u32 v%d, v%d, 5, s%d" % (vT[0], vL, sT))
        a("s_lshl_b32 s%d, s%d, 9" % (sT, sW)); a("v_and_b32 v%d, 31, v%d" % (vT[1], vL)); a("v_lshl_add_u32 v%d, v%d, 4, s%d" % (vT[1], vT[1], sT))
        a("v_lshrrev_b32 v%d, 5, v%d" % (vT[2], vL)); a("v_lshl_add_u32 v%d, v%d, 12, v%d" % (vT[2], vT[2], vT[1]))
        nop(2)
        a("ds_write_b128 v%d, %s" % (vT[0], r(vO, 4))); a("ds_write_b128 v%d, %s offset:16" % (vT[0], r(vO+4, 4)))
        a("s_lshl_b32 s%d, s%d, 5" % (sT, sG)); a("s_add_u32 s%d, s%d, s%d" % (sT, sT, sS)); a("s_lshl_b32 s%d, s%d, 11" % (sT, sT)); a("s_add_u32 s%d, s%d, 0x%x" % (sT, sT, OX))
        a("s_waitcnt lgkmcnt(0)"); a("s_barrier")
        a("ds_read_b128 %s, v%d offset:%d" % (r(vD, 4), vT[2], LO)); a("ds_read_b128 %s, v%d offset:%d" % (r(vD+4, 4), vT[2], LO + 2048))
        a("s_waitcnt lgkmcnt(0)")
        a("v_pk_add_f32 %s, %s, %s" % (r(vD, 2), r(vD, 2), r(vD+4, 2))); a("v_pk_add_f32 %s, %s, %s" % (r(vD+2, 2), r(vD+2, 2), r(vD+6, 2)))
        red_swap_n("v_add_f32", [vD+i for i in range(4)], [vD+4+i for i in range(4)], 32)
        for i in range(4): a("v_min_u32 v%d, -2, v%d" % (vD+i, vD+i))
        a("s_mov_b64 exec, 0xffffffff")
        a("buffer_store_dwordx4 %s, v%d, %s, s%d offen sc1" % (r(vD, 4), vT[1], srd(sWS), sT))
        a("s_mov_b64 exec, -1")
        stamp("opub")
    def gather(n, addr, soffs, pre=None):
        def lds_(emit):
            for i in range(n):
                a("s_mov_b32 s%d, 0x%x" % (sT2, soffs[i]))
                emit("buffer_load_dwordx4 %s, v%d, %s, s%d offen sc1" % (r(vG + 4*i, 4), addr, srd(sWS), sT2), "g%d" % i)
        lds_(g.vm)
        if pre: pre()
        g.waitall()
        retry(chk_sen(vG, 4*n), lambda: lds_(lambda t, tag: a(t)))
    def sum_g(n):
        st = 1
        while st < n:
            for i in range(0, n, 2*st):
                if i + st < n:
                    for h in range(2): a("v_pk_add_f32 %s, %s, %s" % (r(vG+4*i+2*h, 2), r(vG+4*i+2*h, 2), r(vG+4*(i+st)+2*h, 2)))
            st *= 2
    def attn_to_h(x):
        red_swap_n("v_add_f32", [vG+i for i in range(4)], [vG+4+i for i in range(4)], 32)
        rbf2(vG, vG+1, vG, vG+1, vT[0]); rbf2(vG+2, vG+3, vG+2, vG+3, vT[1])
        for e in range(4): a("v_add_f32 v%d, v%d, v%d" % (vG+e, vG+e, x+e))
        rbf2(vH, vH+1, vG, vG+1, vT[0]); rbf2(vH+2, vH+3, vG+2, vG+3, vT[1])
    def finish():
        if stamps:
            a("s_waitcnt lgkmcnt(0)")
            a("s_lshl_b32 s%d, s2, 2" % sT); a("s_add_u32 s%d, s%d, s%d" % (sT, sT, sW)); a("s_lshl_b32 s%d, s%d, 6" % (sT, sT)); a("s_add_u32 s%d, s%d, 0x%x" % (sT, sT, STAMP))
            a("s_mov_b64 exec, 1"); a("v_mov_b32 v%d, s%d" % (vT[0], sT))
            for i in range(16):
                a("v_mov_b32 v%d, %s" % (vG + i, ("s%d" % (sST + 2*i)) if i < nst[0] else "0"))
            for i in range(4): a("buffer_store_dwordx4 %s, v%d, %s, 0 offen offset:%d" % (r(vG+4*i, 4), vT[0], srd(sWS), 16*i))
        a("s_endpgm")

    g.lab(LB)
    b_addr(); b_loads(g.vm)
    drain_publish()
    a("s_lshl_b32 s%d, s%d, 16" % (sT, sG)); a("s_lshr_b32 s%d, s%d, 3" % (sT2, sS)); a("s_lshl_b32 s%d, s%d, 10" % (sT2, sT2)); a("s_add_u32 s%d, s%d, s%d" % (sT, sT, sT2))
    a("s_lshl_b32 s%d, s%d, 8" % (sT2, sW)); a("s_add_u32 s%d, s%d, s%d" % (sT, sT, sT2))
    a("v_lshrrev_b32 v%d, 4, v%d" % (vT[2], vL)); a("v_and_b32 v%d, 15, v%d" % (vT[4], vL))
    a("v_lshlrev_b32 v%d, 11, v%d" % (vT[0], vT[2])); a("v_lshl_add_u32 v%d, v%d, 4, v%d" % (vT[0], vT[4], vT[0])); a("v_add_u32 v%d, s%d, v%d" % (vAd[6], sT, vT[0]))
    def b_pre():
        a("s_lshl_b32 s%d, s%d, 13" % (sT, sW))
        a("v_lshrrev_b32 v%d, 5, v%d" % (vT[0], vL)); a("v_lshlrev_b32 v%d, 10, v%d" % (vT[0], vT[0]))
        a("v_and_b32 v%d, 31, v%d" % (vT[1], vL)); a("v_lshl_add_u32 v%d, v%d, 3, v%d" % (vT[0], vT[1], vT[0])); a("v_add_u32 v%d, s%d, v%d" % (vT[3], sT, vT[0]))
        a("s_lshl_b32 s%d, s%d, 8" % (sT, sW)); a("s_add_u32 s%d, s%d, %d" % (sT, sT, LACT2))
        a("v_lshl_add_u32 v%d, v%d, 3, s%d" % (vT[10], vT[4], sT)); a("v_lshl_add_u32 v%d, v%d, 3, s%d" % (vT[11], vT[2], sT))
        a("s_lshl_b32 s%d, s%d, 2" % (sT, sW)); a("s_add_u32 s%d, s%d, %d" % (sT, sT, LRED2)); a("v_lshl_add_u32 v%d, v%d, 4, s%d" % (vT[9], vL, sT))
        g.wait("wo7")
        for ks in range(2):
            for c in range(4):
                for rr in range(2):
                    a("ds_read_b64_tr_b16 %s, v%d offset:%d" % (r(vW + 16*ks + 4*c + 2*rr, 2), vT[3], LW + (4*ks + 2*rr)*1024 + c*256))
    gather(8, vAd[6], [OX + 4*i*2048 for i in range(8)], b_pre)
    stamp("x1ok")
    sum_g(8)
    red_swap_n("v_add_f32", [vG+i for i in range(4)], [vG+4+i for i in range(4)], 16)
    red_swap_n("v_add_f32", [vG+i for i in range(4)], [vG+4+i for i in range(4)], 32)
    a("v_cvt_pk_bf16_f32 v%d, v%d, v%d" % (vT[4], vG, vG+1)); a("v_cvt_pk_bf16_f32 v%d, v%d, v%d" % (vT[5], vG+2, vG+3))
    a("ds_write_b64 v%d, %s" % (vT[10], r(vT[4], 2)))
    for ks in range(2): a("ds_read2_b64 %s, v%d offset0:%d offset1:%d" % (r(vA + 4*ks, 4), vT[11], ks*8, ks*8 + 4))
    a("s_waitcnt lgkmcnt(0)")
    for ks in range(2):
        for c in range(4):
            a("v_mfma_f32_16x16x32_bf16 %s, %s, %s, %s" % (r(vD + 4*c, 4), r(vA + 4*ks, 4), r(vW + 16*ks + 4*c, 4), r(vD + 4*c, 4) if ks else "0"))
    a("s_lshl_b32 s%d, s%d, 11" % (sT, sKB)); a("s_lshl_b32 s%d, s%d, 8" % (sT2, sCB)); a("s_add_u32 s%d, s%d, s%d" % (sT, sT, sT2)); a("s_add_u32 s%d, s%d, 0x%x" % (sT, sT, AX))
    nop(4)
    a("v_cndmask_b32 v%d, v%d, v%d, s[%d:%d]" % (vT[0], vD, vD+4, sR1, sR1+1)); a("v_cndmask_b32 v%d, v%d, v%d, s[%d:%d]" % (vT[1], vD+8, vD+12, sR1, sR1+1))
    a("v_cndmask_b32 v%d, v%d, v%d, s[%d:%d]" % (vT[0], vT[0], vT[1], sR2, sR2+1))
    a("ds_write_b32 v%d, v%d" % (vT[9], vT[0]))
    a("v_lshlrev_b32 v%d, 4, v%d" % (vT[2], vL)); a("v_lshlrev_b32 v%d, 2, v%d" % (vT[3], vL))
    a("s_waitcnt lgkmcnt(0)"); a("s_barrier")
    lb = g.newlab("L_bdone")
    a("s_cmp_lg_u32 s%d, 0" % sW); a("s_cbranch_scc1 " + lb)
    a("ds_read_b128 %s, v%d offset:%d" % (r(vD, 4), vT[2], LRED2)); a("s_waitcnt lgkmcnt(0)")
    a("v_add_f32 v%d, v%d, v%d" % (vD, vD, vD+1)); a("v_add_f32 v%d, v%d, v%d" % (vD+2, vD+2, vD+3)); a("v_add_f32 v%d, v%d, v%d" % (vD, vD, vD+2))
    a("v_min_u32 v%d, -2, v%d" % (vD, vD))
    a("buffer_store_dword v%d, v%d, %s, s%d offen sc1" % (vD, vT[3], srd(sWS), sT))
    g.lab(lb)
    stamp("bpub")
    finish()
    stB = list(stn)

    g.lab(LC); g.q = list(q_save); pvn[0] = pv_save; nst[0] = nst_save; del stn[nst_save:]
    drain_publish()
    a("v_lshrrev_b32 v%d, 1, v%d" % (vT[0], vL)); a("v_mul_u32_u24 v%d, 3584, v%d" % (vT[0], vT[0])); a("v_and_b32 v%d, 1, v%d" % (vT[1], vL)); a("v_lshl_add_u32 v%d, v%d, 4, v%d" % (vT[0], vT[1], vT[0]))
    a("s_mul_i32 s%d, s%d, %d" % (sT, sW, 128*3584)); a("s_lshl_b32 s%d, s%d, 5" % (sT2, sCI)); a("s_add_u32 s%d, s%d, s%d" % (sT, sT, sT2)); a("v_add_u32 v%d, s%d, v%d" % (vAd[5], sT, vT[0]))
    a("s_lshl_b32 s%d, s%d, 13" % (sT, sW))
    for mi, sb in enumerate((sWG, sWU)):
        for i in range(4):
            a("s_add_u32 m0, s%d, %d" % (sT, LW + mi*4096 + i*1024)); a("s_mov_b32 s%d, %d" % (sT2, i*32*3584))
            g.vm("buffer_load_dwordx4 v%d, %s, s%d offen %s lds" % (vAd[5], srd(sb), sT2, wpol), "gu%d" % (4*mi + i))
    a("v_lshrrev_b32 v%d, 4, v%d" % (vT[2], vL)); a("v_and_b32 v%d, 15, v%d" % (vT[4], vL))
    a("s_lshl_b32 s%d, s%d, 14" % (sT, sCI)); a("s_lshl_b32 s%d, s%d, 8" % (sT2, sW)); a("s_add_u32 s%d, s%d, s%d" % (sT, sT, sT2))
    a("v_lshlrev_b32 v%d, 12, v%d" % (vT[0], vT[2])); a("v_lshl_add_u32 v%d, v%d, 4, v%d" % (vT[0], vT[4], vT[0])); a("v_add_u32 v%d, s%d, v%d" % (vAd[7], sT, vT[0]))
    for t in range(4):
        g.vm("buffer_load_dwordx4 %s, v%d, %s, 0 offen offset:%d %s" % (r(vWD + 4*t, 4), vAd[7], srd(sWD), t*1024, wpol), "wd%d" % t)
    a("s_lshl_b32 s%d, s%d, 9" % (sT, sW)); a("v_lshrrev_b32 v%d, 5, v%d" % (vT[0], vL)); a("v_and_b32 v%d, 31, v%d" % (vT[1], vL))
    a("v_lshlrev_b32 v%d, 11, v%d" % (vT[0], vT[0])); a("v_lshl_add_u32 v%d, v%d, 4, v%d" % (vT[0], vT[1], vT[0])); a("v_add_u32 v%d, s%d, v%d" % (vAd[6], sT, vT[0]))
    a("v_and_b32 v%d, 4, v%d" % (vT[0], vL)); a("v_cmp_ne_u32 vcc, 0, v%d" % vT[0]); nop(2)
    a("v_cndmask_b32 v%d, v%d, 0, vcc" % (vP, vM0) if False else "v_cndmask_b32_e64 v%d, v%d, 0, vcc" % (vP, vM0))
    a("v_cndmask_b32_e64 v%d, v%d, 0, vcc" % (vP+1, vM1)); a("v_cndmask_b32_e64 v%d, 0, v%d, vcc" % (vP+2, vM0)); a("v_cndmask_b32_e64 v%d, 0, v%d, vcc" % (vP+3, vM1))
    a("s_lshl_b32 s%d, s%d, 13" % (sT, sW)); a("v_lshl_add_u32 v%d, v%d, 3, s%d" % (vT[3], vL, sT))
    g.wait("gu7")
    tr_linear(vW, LW, 4); tr_linear(vW + 16, LW + 4096, 4)
    stamp("cwok")
    gather(8, vAd[6], [AX + 2*i*2048 for i in range(8)])
    stamp("x2ok")
    sum_g(8); attn_to_h(vX)
    ln_part1(vH, LST2)
    ln_part2(vH, LST2, LACT2, 4)
    a("v_and_b32 v%d, 31, v%d" % (vT[0], vL)); a("s_lshl_b32 s%d, s%d, 2" % (sT, sW)); a("s_add_u32 s%d, s%d, %d" % (sT, sT, LRED2)); a("v_lshl_add_u32 v%d, v%d, 4, s%d" % (vT[9], vT[0], sT))
    a("v_lshrrev_b32 v%d, 4, v%d" % (vT[0], vL)); a("v_and_b32 v%d, 3, v%d" % (vT[1], vL)); a("v_lshl_add_u32 v%d, v%d, 2, v%d" % (vT[0], vT[0], vT[1])); a("v_lshlrev_b32 v%d, 4, v%d" % (vT[8], vT[0]))
    a("s_waitcnt lgkmcnt(0)")
    for ks in range(4):
        for mi in range(2):
            a("v_mfma_f32_16x16x32_bf16 %s, %s, %s, %s" % (r(vD + 4*mi, 4), r(vA + 4*ks, 4), r(vW + 16*mi + 4*ks, 4), r(vD + 4*mi, 4) if ks else "0"))
    a("s_lshl_b32 s%d, s%d, 11" % (sT, sCI)); a("s_lshl_b32 s%d, s%d, 9" % (sT2, sW)); a("s_add_u32 s%d, s%d, s%d" % (sT, sT, sT2)); a("s_add_u32 s%d, s%d, 0x%x" % (sT, sT, DX))
    nop(4)
    a("v_cndmask_b32 v%d, v%d, v%d, s[%d:%d]" % (vT[0], vD, vD+4, sR1, sR1+1))
    a("ds_write_b32 v%d, v%d" % (vT[9], vT[0]))
    a("v_and_b32 v%d, 15, v%d" % (vT[0], vL)); a("v_bfe_u32 v%d, v%d, 4, 1" % (vT[1], vL)); a("v_lshlrev_b32 v%d, 5, v%d" % (vT[0], vT[0])); a("v_lshl_add_u32 v%d, v%d, 4, v%d" % (vT[7], vT[1], vT[0]))
    a("s_waitcnt lgkmcnt(0)"); a("s_barrier")
    a("ds_read_b128 %s, v%d offset:%d" % (r(vD, 4), vT[8], LRED2)); a("ds_read_b128 %s, v%d offset:%d" % (r(vD+4, 4), vT[8], LRED2 + 256))
    a("s_waitcnt lgkmcnt(0)")
    for b in (vD, vD+4): a("v_add_f32 v%d, v%d, v%d" % (b, b, b+1))
    for b in (vD, vD+4): a("v_add_f32 v%d, v%d, v%d" % (b+2, b+2, b+3))
    for b in (vD, vD+4): a("v_add_f32 v%d, v%d, v%d" % (b, b, b+2))
    rbf2(vT[0], vT[1], vD, vD+4, vT[2])
    a("v_mul_f32 v%d, s%d, v%d" % (vT[0], sL2E, vT[0])); a("v_exp_f32 v%d, -v%d" % (vT[0], vT[0])); nop(1)
    a("v_add_f32 v%d, 1.0, v%d" % (vT[0], vT[0])); a("v_rcp_f32 v%d, v%d" % (vT[0], vT[0])); nop(1)
    rbf(vT[0], vT[0]); a("v_mul_f32 v%d, v%d, v%d" % (vT[0], vT[0], vT[1])); a("v_cvt_pk_bf16_f32 v%d, v%d, v%d" % (vT[0], vT[0], vT[0])); nop(2)
    for t in range(4):
        for j in range(4): dpp("v_and_b32", vA + 4*t + j, vT[0], vP + j, "quad_perm:[%d,%d,%d,%d]" % (t, t, t, t))
        if t >= 1: a("v_mfma_f32_16x16x32_bf16 %s, %s, %s, %s" % (r(vD, 4), r(vA + 4*(t-1), 4), r(vWD + 4*(t-1), 4), r(vD, 4) if t > 1 else "0"))
    nop(1)
    a("v_mfma_f32_16x16x32_bf16 %s, %s, %s, %s" % (r(vD, 4), r(vA + 12, 4), r(vWD + 12, 4), r(vD, 4)))
    nop(8)
    for i in range(4): a("v_min_u32 v%d, -2, v%d" % (vD+i, vD+i))
    a("s_mov_b64 exec, 0xffffffff")
    a("buffer_store_dwordx4 %s, v%d, %s, s%d offen sc1" % (r(vD, 4), vT[7], srd(sWS), sT))
    a("s_mov_b64 exec, -1")
    stamp("cpub")
    finish()
    stC = list(stn)

    g.lab(LD); g.q = list(q_save); pvn[0] = pv_save; nst[0] = nst_save; del stn[nst_save:]
    drain_publish()
    sDJ = sKB
    a("s_lshl_b32 s%d, s%d, 1" % (sDJ, sG)); a("s_add_u32 s%d, s%d, s%d" % (sDJ, sDJ, sS)); a("s_sub_u32 s%d, s%d, 30" % (sDJ, sDJ))
    a("v_and_b32 v%d, 7, v%d" % (vT[4], vL)); a("s_lshl_b32 s%d, s%d, 6" % (sT, sDJ)); a("v_lshl_add_u32 v%d, v%d, 3, s%d" % (vAd[7], vT[4], sT))
    g.vm("buffer_load_dwordx2 %s, v%d, %s, 0 offen" % (r(vT[6], 2), vAd[7], srd(sX)), "x2")
    a("s_lshl_b32 s%d, s%d, 7" % (sT, sDJ)); a("v_lshrrev_b32 v%d, 5, v%d" % (vT[0], vL)); a("v_lshlrev_b32 v%d, 11, v%d" % (vT[0], vT[0]))
    a("v_lshl_add_u32 v%d, v%d, 4, v%d" % (vT[0], vT[4], vT[0])); a("v_add_u32 v%d, s%d, v%d" % (vAd[6], sT, vT[0]))
    a("s_lshl_b32 s%d, s%d, 14" % (sT2, sW)); a("s_add_u32 s%d, s%d, s%d" % (sT, sT, sT2))
    a("v_lshrrev_b32 v%d, 3, v%d" % (vT[0], vL)); a("v_lshlrev_b32 v%d, 11, v%d" % (vT[0], vT[0])); a("v_lshl_add_u32 v%d, v%d, 4, v%d" % (vT[0], vT[4], vT[0])); a("v_add_u32 v%d, s%d, v%d" % (vAd[5], sT, vT[0]))
    gather(8, vAd[6], [AX + 2*i*2048 for i in range(8)])
    stamp("x2ok")
    a("v_lshlrev_b32 v%d, 16, v%d" % (vX, vT[6])); a("v_and_b32 v%d, 0xffff0000, v%d" % (vX+1, vT[6]))
    a("v_lshlrev_b32 v%d, 16, v%d" % (vX+2, vT[7])); a("v_and_b32 v%d, 0xffff0000, v%d" % (vX+3, vT[7]))
    sum_g(8); attn_to_h(vX)
    a("s_lshl_b32 s%d, s%d, 7" % (sT, sW)); a("s_add_u32 s%d, s%d, %d" % (sT, sT, LRED2)); a("v_lshl_add_u32 v%d, v%d, 4, s%d" % (vT[9], vT[4], sT))
    a("v_lshlrev_b32 v%d, 4, v%d" % (vT[8], vT[4]))
    l3, l4 = g.newlab("L_d3"), g.newlab("L_d4")
    a("s_cmp_ge_u32 s%d, 2" % sW); a("s_cbranch_scc1 " + l3)
    gather(4, vAd[5], [DX + 32*i*2048 for i in range(4)]); sum_g(4)
    a("s_branch " + l4)
    g.lab(l3)
    gather(3, vAd[5], [DX + 32*i*2048 for i in range(3)]); sum_g(3)
    g.lab(l4)
    stamp("x3ok")
    nop(1)
    for i in range(4): dpp("v_add_f32", vG+i, vG+i, vG+i, "row_ror:8")
    red_swap_n("v_add_f32", [vG+i for i in range(4)], [vG+4+i for i in range(4)], 16)
    red_swap_n("v_add_f32", [vG+i for i in range(4)], [vG+4+i for i in range(4)], 32)
    a("s_mov_b64 exec, 0xff"); a("ds_write_b128 v%d, %s" % (vT[9], r(vG, 4))); a("s_mov_b64 exec, -1")
    a("s_waitcnt lgkmcnt(0)"); a("s_barrier")
    ld = g.newlab("L_ddone")
    a("s_cmp_lg_u32 s%d, 0" % sW); a("s_cbranch_scc1 " + ld)
    a("s_mov_b64 exec, 0xff")
    for w in range(4): a("ds_read_b128 %s, v%d offset:%d" % (r(vG + 4*w, 4), vT[8], LRED2 + 128*w))
    a("s_waitcnt lgkmcnt(0)")
    sum_g(4)
    rbf2(vG, vG+1, vG, vG+1, vT[0]); rbf2(vG+2, vG+3, vG+2, vG+3, vT[1])
    for e in range(4): a("v_add_f32 v%d, v%d, v%d" % (vG+e, vG+e, vH+e))
    a("v_cvt_pk_bf16_f32 v%d, v%d, v%d" % (vT[4], vG, vG+1)); a("v_cvt_pk_bf16_f32 v%d, v%d, v%d" % (vT[5], vG+2, vG+3))
    a("buffer_store_dwordx2 %s, v%d, %s, 0 offen" % (r(vT[4], 2), vAd[7], srd(sOUT)))
    a("s_mov_b64 exec, -1")
    g.lab(ld)
    stamp("out")
    if probe:
        ia, ib = stn.index(probe[0]), stn.index(probe[1]); io = stn.index("out")
        a("s_waitcnt lgkmcnt(0)")
        a("s_sub_u32 s%d, s%d, s%d" % (sT, sST + 2*ib, sST + 2*ia)); a("s_mul_i32 s%d, s%d, %d" % (sT, sT, probe[2]))
        a("s_min_u32 s%d, s%d, 100000" % (sT, sT))
        g.lab("L_probe")
        a("s_memrealtime s[%d:%d]" % (sM, sM+1)); a("s_waitcnt lgkmcnt(0)"); a("s_sub_u32 s%d, s%d, s%d" % (sT2, sM, sST + 2*io))
        a("s_cmp_lt_u32 s%d, s%d" % (sT2, sT)); a("s_cbranch_scc1 L_probe")
    finish()
    stD = list(stn)
    g.lab("L_end"); a("s_endpgm")

    hdr = """; Fused decode layer: LN -> q proj -> GQA attention over the KV cache -> out proj -> LN -> GLU MLP, one persistent launch.
; 256 workgroups (one per CU) x 4 waves. Hand-offs through d_ws carry self-validating words (cleared at entry, clear counted in d_debug).
; @launch grid=(256,1,1) block=(256,1,1) lds=%d
.amdgcn_target "amdgcn-amd-amdhsa--gfx950"
.text
.globl %s_kernel
.p2align 8
.type %s_kernel,@function
%s_kernel:
""" % (LDS_SIZE, KN, KN, KN)
    ftr = """
.section .rodata,"a"
.p2align 6
.amdhsa_kernel %s_kernel
  .amdhsa_next_free_vgpr 512
  .amdhsa_next_free_sgpr 102
  .amdhsa_accum_offset 256
  .amdhsa_group_segment_fixed_size 0
  .amdhsa_kernarg_size 96
  .amdhsa_user_sgpr_count 2
  .amdhsa_user_sgpr_kernarg_segment_ptr 1
  .amdhsa_system_sgpr_workgroup_id_x 1
  .amdhsa_float_denorm_mode_32 3
.end_amdhsa_kernel
""" % KN
    return hdr + "\n".join(g.L) + ftr, dict(B=stB, C=stC, D=stD, nv=g.vn)

if __name__ == "__main__":
    kw = eval("dict(%s)" % (sys.argv[2] if len(sys.argv) > 2 else ""))
    src, info = gen(**kw)
    open(sys.argv[1], "w").write(src); print(info, len(src))
```

```python
import sys
KN = "sequential_preLN__gqa_block_cached__glu_gated_glu__decode"

QX = 0x0000
SX = 0x2000
AX = 0x4000
DX = 0x10000
OX = 0x80000
WS_USED = 0x100000
STAMP = 0x200000
LW   = 0
LACT = 0x8000
LACT2= 0x8400
LST  = 0x8800
LST2 = 0x8840
LRED = 0x8900
LS2  = 0x8A00
LRED2= 0x8B00
LO   = 0x9000
LDS_SIZE = 0xB000

LOG2E = 0x3FB8AA3B
SCALE = 0x3DB504F3
EPS   = 0x3727C5AC

class G:
    def __init__(s):
        s.L = []; s.q = []; s.nlab = 0; s.vn = 0; s.names = {}
    def a(s, x): s.L.append("  " + x)
    def lab(s, x): s.L.append(x + ":")
    def newlab(s, p="L"):
        s.nlab += 1; return "%s_%d" % (p, s.nlab)
    def v(s, name, n=1, align=1):
        if n > 1: align = max(align, 2)
        s.vn = (s.vn + align - 1)//align*align
        r = s.vn; s.vn += n; s.names[name] = r
        assert s.vn <= 256
        return r
    def vm(s, txt, tag):
        s.a(txt); s.q.append(tag)
    def wait(s, tag):
        if tag not in s.q: return
        i = s.q.index(tag); n = len(s.q) - 1 - i
        assert n <= 63
        s.a("s_waitcnt vmcnt(%d)" % n); s.q = s.q[i+1:]
    def waitall(s):
        s.a("s_waitcnt vmcnt(0)"); s.q = []

def r(a, n): return "v[%d:%d]" % (a, a+n-1)
def ar(a, n): return "a[%d:%d]" % (a, a+n-1)
DPP = " row_mask:0xf bank_mask:0xf"

def gen(D=8, pol="nt", vpol=None, wpol="nt", exactP=True, stamps=False, n_cnt=40, n_q=48, n_qk=56, n_sg=100, n_pv=108, pv_rate=6,
        wo_at=128, spin=1<<16, codewarm=False, probe=None, probe_base=4000):
    g = G(); a = g.a
    sW, sG, sS = 3, 4, 5
    sK, sV, sWS, sX, sWQ, sWO, sWG, sWU, sWD, sOUT, sDBG = 8, 12, 16, 20, 24, 28, 32, 36, 40, 44, 48
    sB0, sB1 = 52, 54
    sR1, sR2 = 56, 58
    sT, sT2, sOFF, sCNT = 60, 61, 62, 63
    sM = 64
    sKB, sCB, sCI = 66, 67, 68
    sL2E, sSC = 69, 70
    sST = 72
    nst = [0]; stn = []
    def stamp(name):
        if stamps or probe:
            a("s_memrealtime s[%d:%d]" % (sST + 2*nst[0], sST + 2*nst[0] + 1)); nst[0] += 1; stn.append(name)
            assert sST + 2*nst[0] <= 102
    def srd(b): return "s[%d:%d]" % (b, b+3)
    g.v("tid"); vL = g.v("lane"); vKo = g.v("koff"); vVo = g.v("voff")
    vM0 = g.v("m0"); vM1 = g.v("m1")
    vT = [g.v("t%d" % i) for i in range(12)]
    vX = g.v("x", 4, 2)
    vQ = g.v("q", 4, 2)
    vS = g.v("S", 16, 2)
    vD = g.v("D", 16, 2)
    vO = g.v("O", 8, 2)
    vTP = g.v("TP", 8, 2)
    vA = g.v("A", 16, 2)
    vW = g.v("W", 32, 2)
    vWD = g.v("WD", 16, 2)
    vG = g.v("G", 32, 2)
    vH = g.v("H", 4, 2)
    vP = g.v("P", 8, 2)
    vAd = [g.v("ad%d" % i) for i in range(8)]
    vMx = g.v("mx"); vRl = g.v("rl"); vCn = g.v("cn")
    vSG = g.v("sg", 4, 2)
    vSen = g.v("sen", 4, 2)

    def nop(n): a("s_nop %d" % (n-1))
    def dpp(op, d, s0, s1, ctl): a("%s_dpp v%d, v%d, v%d %s%s" % (op, d, s0, s1, ctl, DPP))
    def red_quad(op, x):
        nop(2); dpp(op, x, x, x, "quad_perm:[1,0,3,2]"); nop(2); dpp(op, x, x, x, "quad_perm:[2,3,0,1]")
    def red_swap(op, x, t, which):
        a("v_mov_b32 v%d, v%d" % (t, x)); nop(2); a("v_permlane%d_swap_b32 v%d, v%d" % (which, x, t)); a("%s v%d, v%d, v%d" % (op, x, x, t))
    def red_swap_n(op, xs, ts, which):
        for x, t in zip(xs, ts): a("v_mov_b32 v%d, v%d" % (t, x))
        if len(xs) < 3: nop(2)
        for x, t in zip(xs, ts): a("v_permlane%d_swap_b32 v%d, v%d" % (which, x, t))
        for x, t in zip(xs, ts): a("%s v%d, v%d, v%d" % (op, x, x, t))
    def red32(x, t):
        red_quad("v_add_f32", x); nop(2); dpp("v_add_f32", x, x, x, "row_half_mirror"); nop(2); dpp("v_add_f32", x, x, x, "row_mirror")
        red_swap("v_add_f32", x, t, 16)
    def rbf(d, s_, t=None):
        a("v_cvt_pk_bf16_f32 v%d, v%d, v%d" % (d, s_, s_)); a("v_lshlrev_b32 v%d, 16, v%d" % (d, d))
    def rbf2(d0, d1, s0, s1, t):
        a("v_cvt_pk_bf16_f32 v%d, v%d, v%d" % (t, s0, s1)); a("v_lshlrev_b32 v%d, 16, v%d" % (d0, t)); a("v_and_b32 v%d, 0xffff0000, v%d" % (d1, t))
    def expsub(d, x, m):
        a("v_sub_f32 v%d, v%d, v%d" % (d, x, m)); a("v_mul_f32 v%d, s%d, v%d" % (d, sL2E, d)); a("v_exp_f32 v%d, v%d" % (d, d))

    a("s_cmp_ge_u32 s2, 256"); a("s_cbranch_scc1 L_end")
    stamp("start")
    for b, off in ((sK, 8), (sX, 0), (sWQ, 24), (sWS, 88), (sV, 16), (sDBG, 80), (sWO, 32), (sWG, 48), (sWU, 56), (sWD, 64), (sOUT, 72)):
        a("s_load_dwordx2 s[%d:%d], s[0:1], %d" % (b, b+1, off))
    a("v_lshrrev_b32 v%d, 6, v0" % vT[0]); a("v_and_b32 v%d, 63, v0" % vL)
    a("s_and_b32 s%d, s2, 7" % sG); a("v_readfirstlane_b32 s%d, v%d" % (sW, vT[0])); a("s_lshr_b32 s%d, s2, 3" % sS)
    for b, n in ((sK, 1 << 26), (sV, 1 << 26), (sX, 1024), (sWQ, 1 << 22), (sWS, WS_USED if not stamps else 1 << 28), (sDBG, 256), (sWO, 1 << 22),
                 (sWG, 512*3584), (sWU, 512*3584), (sWD, 1792*1024), (sOUT, 1024)):
        a("s_mov_b32 s%d, 0x%x" % (b+2, n)); a("s_mov_b32 s%d, 0x20000" % (b+3))
    a("s_lshl_b32 s%d, s%d, 23" % (sT, sG)); a("s_lshl_b32 s%d, s%d, 14" % (sT2, sS)); a("s_add_u32 s%d, s%d, s%d" % (sT, sT, sT2))
    a("s_lshl_b32 s%d, s%d, 12" % (sT2, sW)); a("s_add_u32 s%d, s%d, s%d" % (sT, sT, sT2))
    vN, vSl = vT[1], vT[2]
    a("v_and_b32 v%d, 15, v%d" % (vN, vL)); a("v_lshrrev_b32 v%d, 4, v%d" % (vSl, vL))
    a("v_lshlrev_b32 v%d, 6, v%d" % (vAd[0], vN)); a("v_lshl_add_u32 v%d, v%d, 4, v%d" % (vAd[0], vSl, vAd[0]))
    a("v_add_u32 v%d, s%d, v%d" % (vKo, sT, vAd[0]))
    a("v_lshlrev_b32 v%d, 4, v%d" % (vVo, vL)); a("v_add_u32 v%d, s%d, v%d" % (vVo, sT, vVo))
    a("v_and_b32 v%d, 31, v%d" % (vT[3], vL)); a("s_lshl_b32 s%d, s%d, 8" % (sT, sW)); a("v_lshl_add_u32 v%d, v%d, 3, s%d" % (vAd[1], vT[3], sT))
    a("s_lshl_b32 s%d, s%d, 20" % (sT, sW)); a("s_lshl_b32 s%d, s%d, 10" % (sT2, sG)); a("s_add_u32 s%d, s%d, s%d" % (sT, sT, sT2))
    a("s_lshl_b32 s%d, s%d, 5" % (sT2, sS)); a("s_add_u32 s%d, s%d, s%d" % (sT, sT, sT2))
    a("v_lshrrev_b32 v%d, 1, v%d" % (vT[4], vL)); a("v_and_b32 v%d, 1, v%d" % (vT[5], vL))
    a("v_lshlrev_b32 v%d, 13, v%d" % (vAd[2], vT[4])); a("v_lshl_add_u32 v%d, v%d, 4, v%d" % (vAd[2], vT[5], vAd[2])); a("v_add_u32 v%d, s%d, v%d" % (vAd[2], sT, vAd[2]))
    for i in range(4): a("v_mov_b32 v%d, -1" % (vSen + i))
    a("s_lshr_b32 s%d, s%d, 3" % (sT, sS)); a("s_lshl_b32 s%d, s%d, 1" % (sKB, sG)); a("s_add_u32 s%d, s%d, s%d" % (sKB, sKB, sT))
    a("s_and_b32 s%d, s%d, 7" % (sCB, sS))
    a("s_mul_i32 s%d, s%d, 14" % (sCI, sG)); a("s_add_u32 s%d, s%d, s%d" % (sCI, sCI, sS)); a("s_sub_u32 s%d, s%d, 16" % (sCI, sCI))
    a("s_waitcnt lgkmcnt(0)")
    g.vm("buffer_load_dwordx2 %s, v%d, %s, 0 offen" % (r(vT[6], 2), vAd[1], srd(sX)), "x")
    assert vT[6] % 2 == 0
    lc = g.newlab("L_noclr")
    a("s_cmp_lg_u32 s%d, 3" % sW); a("s_cbranch_scc1 " + lc)
    a("s_lshl_b32 s%d, s%d, 5" % (sT, sG)); a("s_add_u32 s%d, s%d, s%d" % (sT, sT, sS))
    a("s_lshl_b32 s%d, s%d, 11" % (sT2, sT)); a("s_add_u32 s%d, s%d, 0x%x" % (sT2, sT2, OX))
    a("v_lshlrev_b32 v%d, 4, v%d" % (vT[8], vL))
    a("buffer_store_dwordx4 %s, v%d, %s, s%d offen sc1" % (r(vSen, 4), vT[8], srd(sWS), sT2))
    a("buffer_store_dwordx4 %s, v%d, %s, s%d offen offset:1024 sc1" % (r(vSen, 4), vT[8], srd(sWS), sT2))
    a("s_lshl_b32 s%d, s%d, 5" % (sT2, sT))
    a("v_lshlrev_b32 v%d, 13, v%d" % (vT[9], vT[4])); a("v_lshl_add_u32 v%d, v%d, 4, v%d" % (vT[9], vT[5], vT[9]))
    assert SX - QX == 0x2000 and QX == 0
    a("s_mov_b64 exec, 15")
    a("buffer_store_dwordx4 %s, v%d, %s, s%d offen sc1" % (r(vSen, 4), vT[9], srd(sWS), sT2))
    a("s_mov_b64 exec, -1")
    lC = g.newlab("L_clrC")
    a("s_cmp_ge_u32 s%d, 16" % sS); a("s_cbranch_scc1 " + lC)
    a("s_lshl_b32 s%d, s%d, 11" % (sT, sKB)); a("s_lshl_b32 s%d, s%d, 8" % (sT2, sCB)); a("s_add_u32 s%d, s%d, s%d" % (sT, sT, sT2)); a("s_add_u32 s%d, s%d, 0x%x" % (sT, sT, AX))
    a("s_mov_b64 exec, 0xffff")
    a("buffer_store_dwordx4 %s, v%d, %s, s%d offen sc1" % (r(vSen, 4), vT[8], srd(sWS), sT))
    a("s_mov_b64 exec, -1"); a("s_branch " + lc)
    g.lab(lC)
    a("s_cmp_ge_u32 s%d, 30" % sS); a("s_cbranch_scc1 " + lc)
    a("s_lshl_b32 s%d, s%d, 11" % (sT, sCI)); a("s_add_u32 s%d, s%d, 0x%x" % (sT, sT, DX))
    a("buffer_store_dwordx4 %s, v%d, %s, s%d offen sc1" % (r(vSen, 4), vT[8], srd(sWS), sT))
    a("buffer_store_dwordx4 %s, v%d, %s, s%d offen offset:1024 sc1" % (r(vSen, 4), vT[8], srd(sWS), sT))
    g.lab(lc)
    a("s_lshl_b32 s%d, s%d, 12" % (sT, sW))
    for i in range(4):
        a("s_add_u32 m0, s%d, %d" % (sT, LW + i*1024)); a("s_mov_b32 s%d, %d" % (sOFF, i*262144))
        g.vm("buffer_load_dwordx4 v%d, %s, s%d offen %s lds" % (vAd[2], srd(sWQ), sOFF, wpol), "wq%d" % i)

    def issue(n):
        t, j = divmod(n, 64); st, c = divmod(j, 4)
        if c == 0: a("s_mov_b32 s%d, 0x%x" % (sOFF, st << 19))
        g.vm("buffer_load_dwordx4 %s, v%d, %s, s%d offen offset:%d %s" % (ar(4*j, 4), vVo if t else vKo, srd(sV if t else sK), sOFF, c*1024, (pol if (t == 0 or vpol is None) else vpol)), "n%d" % n)

    def ln_part1(x, lst):
        t0, t1, t2 = vT[0], vT[1], vT[2]
        a("v_add_f32 v%d, v%d, v%d" % (t0, x, x+1)); a("v_add_f32 v%d, v%d, v%d" % (t1, x+2, x+3)); a("v_add_f32 v%d, v%d, v%d" % (t0, t0, t1))
        red32(t0, t1)
        a("v_mul_f32 v%d, 0x3c000000, v%d" % (vT[4], t0))
        for e in range(4): a("v_sub_f32 v%d, v%d, v%d" % (vT[6+e], x+e, vT[4]))
        a("v_mul_f32 v%d, v%d, v%d" % (vT[5], vT[6], vT[6]))
        for e in range(1, 4): a("v_fmac_f32 v%d, v%d, v%d" % (vT[5], vT[6+e], vT[6+e]))
        red32(vT[5], t1)
        assert vT[4] % 2 == 0
        a("s_lshl_b32 s%d, s%d, 3" % (sT, sW)); a("s_add_u32 s%d, s%d, %d" % (sT, sT, lst)); a("v_mov_b32 v%d, s%d" % (t2, sT))
        a("s_mov_b64 exec, 1"); a("ds_write_b64 v%d, %s" % (t2, r(vT[4], 2))); a("s_mov_b64 exec, -1")
        a("s_waitcnt lgkmcnt(0)"); a("s_barrier")
    def ln_part2(x, lst, lact, nks):
        a("v_mov_b32 v%d, %d" % (vT[0], lst))
        a("ds_read_b128 %s, v%d" % (r(vD, 4), vT[0])); a("ds_read_b128 %s, v%d offset:16" % (r(vD+4, 4), vT[0]))
        a("v_and_b32 v%d, 31, v%d" % (vT[1], vL)); a("s_lshl_b32 s%d, s%d, 8" % (sT, sW)); a("s_add_u32 s%d, s%d, %d" % (sT, sT, lact))
        a("v_lshl_add_u32 v%d, v%d, 3, s%d" % (vT[10], vT[1], sT))
        a("v_lshrrev_b32 v%d, 4, v%d" % (vT[1], vL)); a("v_lshl_add_u32 v%d, v%d, 3, s%d" % (vT[11], vT[1], sT))
        a("s_waitcnt lgkmcnt(0)")
        m = [vD, vD+2, vD+4, vD+6]; q2 = [vD+1, vD+3, vD+5, vD+7]
        a("v_add_f32 v%d, v%d, v%d" % (vT[0], m[0], m[1])); a("v_add_f32 v%d, v%d, v%d" % (vT[1], m[2], m[3])); a("v_add_f32 v%d, v%d, v%d" % (vT[0], vT[0], vT[1]))
        a("v_mul_f32 v%d, 0.25, v%d" % (vT[0], vT[0]) if False else "v_mul_f32 v%d, 0x3e800000, v%d" % (vT[0], vT[0]))
        a("v_add_f32 v%d, v%d, v%d" % (vT[2], q2[0], q2[1])); a("v_add_f32 v%d, v%d, v%d" % (vT[3], q2[2], q2[3]))
        for e in range(4): a("v_sub_f32 v%d, v%d, v%d" % (m[e], m[e], vT[0]))
        a("v_add_f32 v%d, v%d, v%d" % (vT[2], vT[2], vT[3]))
        a("v_mul_f32 v%d, v%d, v%d" % (vT[3], m[0], m[0]))
        for e in range(1, 4): a("v_fmac_f32 v%d, v%d, v%d" % (vT[3], m[e], m[e]))
        a("v_fmac_f32 v%d, 0x43000000, v%d" % (vT[2], vT[3]))
        a("v_mul_f32 v%d, 0x3b000000, v%d" % (vT[2], vT[2]))
        rbf2(vT[0], vT[2], vT[0], vT[2], vT[1])
        a("v_add_f32 v%d, 0x%x, v%d" % (vT[2], EPS, vT[2]))
        for e in range(4): a("v_sub_f32 v%d, v%d, v%d" % (vT[6+e], x+e, vT[0]))
        rbf(vT[2], vT[2])
        a("v_sqrt_f32 v%d, v%d" % (vT[2], vT[2]))
        rbf2(vT[6], vT[7], vT[6], vT[7], vT[1])
        rbf(vT[2], vT[2])
        a("v_rcp_f32 v%d, v%d" % (vT[2], vT[2]))
        rbf2(vT[8], vT[9], vT[8], vT[9], vT[1])
        for e in range(4): a("v_mul_f32 v%d, v%d, v%d" % (vT[6+e], vT[6+e], vT[2]))
        a("v_cvt_pk_bf16_f32 v%d, v%d, v%d" % (vT[4], vT[6], vT[7])); a("v_cvt_pk_bf16_f32 v%d, v%d, v%d" % (vT[5], vT[8], vT[9]))
        a("ds_write_b64 v%d, %s" % (vT[10], r(vT[4], 2)))
        for ks in range(nks):
            a("ds_read2_b64 %s, v%d offset0:%d offset1:%d" % (r(vA + 4*ks, 4), vT[11], ks*8, ks*8 + 4))
    def tr_linear(dst, base, nks):
        for ks in range(nks):
            for rr in range(2):
                a("ds_read_b64_tr_b16 %s, v%d offset:%d" % (r(dst + 4*ks + 2*rr, 2), vT[3], base + ks*1024 + rr*512))

    work = {}
    def at(n, f): work.setdefault(n, []).append(f)

    def c_ln1():
        stamp("first")
        a("v_lshlrev_b32 v%d, 16, v%d" % (vX, vT[6])); a("v_and_b32 v%d, 0xffff0000, v%d" % (vX+1, vT[6]))
        a("v_lshlrev_b32 v%d, 16, v%d" % (vX+2, vT[7])); a("v_and_b32 v%d, 0xffff0000, v%d" % (vX+3, vT[7]))
        l2 = g.newlab("L_nosig")
        a("s_cmp_lg_u32 s%d, 3" % sW); a("s_cbranch_scc1 " + l2)
        a("s_and_b32 s%d, s2, 63" % sT); a("s_lshl_b32 s%d, s%d, 2" % (sT, sT)); a("v_mov_b32 v%d, s%d" % (vT[0], sT)); a("v_mov_b32 v%d, 1" % vT[1])
        a("s_mov_b64 exec, 1"); a("buffer_atomic_add v%d, v%d, %s, 0 offen sc1" % (vT[1], vT[0], srd(sDBG))); a("s_mov_b64 exec, -1")
        nop(2)
        g.lab(l2)
        ln_part1(vX, LST)
    def c_ln2():
        a("s_lshl_b32 s%d, s%d, 12" % (sT, sW)); a("v_lshl_add_u32 v%d, v%d, 3, s%d" % (vT[3], vL, sT))
        tr_linear(vW, LW, 4)
        ln_part2(vX, LST, LACT, 4)
    def c_q():
        a("s_waitcnt lgkmcnt(0)")
        for ks in range(4):
            a("v_mfma_f32_16x16x32_bf16 %s, %s, %s, %s" % (r(vD, 4), r(vA + 4*ks, 4), r(vW + 4*ks, 4), r(vD, 4) if ks else "0"))
        a("v_and_b32 v%d, 15, v%d" % (vT[0], vL)); a("s_lshl_b32 s%d, s%d, 2" % (sT, sW)); a("s_add_u32 s%d, s%d, %d" % (sT, sT, LRED))
        a("v_lshl_add_u32 v%d, v%d, 4, s%d" % (vT[0], vT[0], sT)); nop(8)
        a("s_mov_b64 exec, 0xffff"); a("ds_write_b32 v%d, v%d" % (vT[0], vD)); a("s_mov_b64 exec, -1")
        a("s_waitcnt lgkmcnt(0)"); a("s_barrier")
        l2 = g.newlab("L_noq")
        a("s_cmp_lg_u32 s%d, 0" % sW); a("s_cbranch_scc1 " + l2)
        a("s_mov_b64 exec, 0xff")
        a("v_lshlrev_b32 v%d, 5, v%d" % (vT[0], vL))
        a("ds_read_b128 %s, v%d offset:%d" % (r(vD, 4), vT[0], LRED)); a("ds_read_b128 %s, v%d offset:%d" % (r(vD+4, 4), vT[0], LRED+16))
        a("s_lshl_b32 s%d, s%d, 5" % (sT, sG)); a("s_add_u32 s%d, s%d, s%d" % (sT, sT, sS)); a("s_lshl_b32 s%d, s%d, 5" % (sT, sT))
        a("v_lshlrev_b32 v%d, 2, v%d" % (vT[1], vL))
        a("s_waitcnt lgkmcnt(0)")
        for b in (vD, vD+4):
            a("v_add_f32 v%d, v%d, v%d" % (b, b, b+1)); a("v_add_f32 v%d, v%d, v%d" % (b+2, b+2, b+3)); a("v_add_f32 v%d, v%d, v%d" % (b, b, b+2))
        a("v_cvt_pk_bf16_f32 v%d, v%d, v%d" % (vT[0], vD, vD+4)); a("v_min_u32 v%d, -2, v%d" % (vT[0], vT[0]))
        a("buffer_store_dword v%d, v%d, %s, s%d offen sc1" % (vT[0], vT[1], srd(sWS), sT))
        a("s_mov_b64 exec, -1")
        g.lab(l2)
        stamp("qpub")
        a("s_mov_b32 s%d, 0x%x" % (sL2E, LOG2E)); a("s_mov_b32 s%d, 0x%x" % (sSC, SCALE))
        a("v_and_b32 v%d, 1, v%d" % (vT[0], vL)); a("v_cmp_ne_u32 s[%d:%d], 0, v%d" % (sB0, sB0+1, vT[0]))
        a("v_and_b32 v%d, 2, v%d" % (vT[0], vL)); a("v_cmp_ne_u32 s[%d:%d], 0, v%d" % (sB1, sB1+1, vT[0]))
        a("v_and_b32 v%d, 16, v%d" % (vT[0], vL)); a("v_cmp_ne_u32 s[%d:%d], 0, v%d" % (sR1, sR1+1, vT[0]))
        a("v_and_b32 v%d, 32, v%d" % (vT[0], vL)); a("v_cmp_ne_u32 s[%d:%d], 0, v%d" % (sR2, sR2+1, vT[0]))
        a("v_mov_b32 v%d, 0xffff" % vT[0]); a("v_mov_b32 v%d, 0xffff0000" % vT[1])
        a("v_cndmask_b32 v%d, v%d, v%d, s[%d:%d]" % (vT[0], vT[0], vT[1], sB0, sB0+1))
        a("v_cndmask_b32 v%d, v%d, 0, s[%d:%d]" % (vM0, vT[0], sB1, sB1+1))
        a("v_cndmask_b32 v%d, 0, v%d, s[%d:%d]" % (vM1, vT[0], sB1, sB1+1))
        for i in range(8): a("v_mov_b32 v%d, 0" % (vO + i))
    at(D, c_ln1); at(D+1, c_ln2); at(D+2, c_q)

    def retry(check, reload):
        lp, ok = g.newlab("L_retry"), g.newlab("L_ok")
        check()
        a("s_cbranch_vccz " + ok)
        a("s_mov_b32 s%d, 0" % sCNT)
        g.lab(lp)
        a("s_mov_b64 exec, vcc")
        reload()
        a("s_mov_b64 exec, -1")
        a("s_waitcnt vmcnt(0)")
        check()
        a("s_add_u32 s%d, s%d, 1" % (sCNT, sCNT)); a("s_cmp_ge_u32 s%d, %d" % (sCNT, spin)); a("s_cbranch_scc1 " + ok)
        a("s_cbranch_vccnz " + lp)
        g.lab(ok)
    def chk_sen(base, n):
        def f():
            t = vT[0]
            if n == 4:
                a("v_max3_u32 v%d, v%d, v%d, v%d" % (t, base, base+1, base+2)); a("v_max_u32 v%d, v%d, v%d" % (t, t, base+3))
            else:
                t2 = vT[1]; h = n//2
                a("v_max_u32 v%d, v%d, v%d" % (t, base, base+1)); a("v_max_u32 v%d, v%d, v%d" % (t2, base+h, base+h+1))
                for i in range(2, h, 2):
                    a("v_max3_u32 v%d, v%d, v%d, v%d" % (t, t, base+i, base+i+1)); a("v_max3_u32 v%d, v%d, v%d, v%d" % (t2, t2, base+h+i, base+h+i+1))
                a("v_max_u32 v%d, v%d, v%d" % (t, t, t2))
            a("v_cmp_eq_u32 vcc, -1, v%d" % t)
        return f

    ld_cnt = lambda: "buffer_load_dword v%d, v%d, %s, 0 offen sc1" % (vCn, vAd[3], srd(sDBG))
    def c_cnt():
        a("v_lshlrev_b32 v%d, 2, v%d" % (vAd[3], vL)); g.vm(ld_cnt(), "cnt")
    ld_q = lambda: "buffer_load_dwordx4 %s, v%d, %s, s%d offen sc1" % (r(vQ, 4), vAd[0], srd(sWS), sT2)
    def c_qld():
        g.wait("cnt")
        retry(lambda: a("v_cmp_gt_u32 vcc, 4, v%d" % vCn), lambda: a(ld_cnt()))
        stamp("cntok")
        a("s_lshl_b32 s%d, s%d, 10" % (sT2, sG)); g.vm(ld_q(), "q")
    def c_qchk():
        g.wait("q")
        a("s_lshl_b32 s%d, s%d, 10" % (sT2, sG))
        retry(chk_sen(vQ, 4), lambda: a(ld_q()))
        stamp("qok")
    at(n_cnt, c_cnt); at(n_q, c_qld); at(n_qk, c_qchk)

    def qk_step(T):
        def f():
            g.wait("n%d" % (4*T + 3))
            for u in range(4):
                a("v_mfma_f32_16x16x32_bf16 %s, %s, %s, 0" % (r(vD + 4*u, 4), ar(16*T + 4*u, 4), r(vQ, 4)))
            nop(8)
            Dv = lambda u, j: vD + 4*u + j
            for rr in (3, 2, 1, 0):
                X = [Dv(aa ^ rr, aa) for aa in range(4)]
                a("v_cndmask_b32 v%d, v%d, v%d, s[%d:%d]" % (vT[4], X[0], X[1], sB0, sB0+1))
                a("v_cndmask_b32 v%d, v%d, v%d, s[%d:%d]" % (vT[5], X[2], X[3], sB0, sB0+1))
                a("v_cndmask_b32 v%d, v%d, v%d, s[%d:%d]" % (vT[rr], vT[4], vT[5], sB1, sB1+1))
            dpp("v_add_f32", vT[2], vT[3], vT[2], "quad_perm:[1,0,3,2]"); nop(1)
            dpp("v_add_f32", vT[0], vT[1], vT[0], "quad_perm:[1,0,3,2]"); nop(2)
            dpp("v_add_f32", vT[0], vT[2], vT[0], "quad_perm:[2,3,0,1]")
            rbf(vT[0], vT[0]); a("v_mul_f32 v%d, s%d, v%d" % (vT[0], sSC, vT[0])); rbf(vS + T, vT[0])
        return f
    nq = n_qk
    for T in range(16):
        nq = max(nq, 4*T + 3 + D)
        assert nq < 64 + 4*T, "QK step must precede the V load that reuses its slots"
        at(nq, qk_step(T)); nq += 1
    n_st = nq

    def red_hs(op, x, t):
        red_quad(op, x); red_swap(op, x, t, 16); red_swap(op, x, t, 32)
    def c_stat1():
        stamp("qkdone")
        a("v_max3_f32 v%d, v%d, v%d, v%d" % (vMx, vS, vS+1, vS+2))
        for i in range(3, 15, 2): a("v_max3_f32 v%d, v%d, v%d, v%d" % (vMx, vMx, vS+i, vS+i+1))
        a("v_max_f32 v%d, v%d, v%d" % (vMx, vMx, vS+15))
        red_hs("v_max_f32", vMx, vT[0])
    def c_stat2():
        for i in range(16): expsub(vD + i, vS + i, vMx)
        nop(1)
        for st in (8, 4, 2, 1):
            for i in range(st): a("v_add_f32 v%d, v%d, v%d" % (vD+i, vD+i, vD+i+st))
        red_hs("v_add_f32", vD, vT[0])
        a("v_mov_b32 v%d, v%d" % (vT[4], vMx)); a("v_mov_b32 v%d, v%d" % (vT[5], vD))
        a("v_bfe_u32 v%d, v%d, 2, 2" % (vT[0], vL)); a("s_lshl_b32 s%d, s%d, 3" % (sT, sW)); a("s_add_u32 s%d, s%d, %d" % (sT, sT, LS2))
        a("v_lshl_add_u32 v%d, v%d, 5, s%d" % (vT[1], vT[0], sT))
        a("s_mov_b64 exec, 0x1111"); a("ds_write_b64 v%d, %s" % (vT[1], r(vT[4], 2))); a("s_mov_b64 exec, -1")
        a("s_waitcnt lgkmcnt(0)"); a("s_barrier")
        l2 = g.newlab("L_nost")
        a("s_cmp_lg_u32 s%d, 0" % sW); a("s_cbranch_scc1 " + l2)
        a("s_mov_b64 exec, 0x1111")
        a("v_lshlrev_b32 v%d, 5, v%d" % (vT[1], vT[0]))
        a("ds_read_b128 %s, v%d offset:%d" % (r(vD, 4), vT[1], LS2)); a("ds_read_b128 %s, v%d offset:%d" % (r(vD+4, 4), vT[1], LS2+16))
        a("s_lshl_b32 s%d, s%d, 5" % (sT, sG)); a("s_add_u32 s%d, s%d, s%d" % (sT, sT, sS)); a("s_lshl_b32 s%d, s%d, 5" % (sT, sT)); a("s_add_u32 s%d, s%d, 0x%x" % (sT, sT, SX))
        a("v_lshlrev_b32 v%d, 3, v%d" % (vT[1], vT[0]))
        a("s_waitcnt lgkmcnt(0)")
        a("v_max3_f32 v%d, v%d, v%d, v%d" % (vT[4], vD, vD+2, vD+4)); a("v_max_f32 v%d, v%d, v%d" % (vT[4], vT[4], vD+6))
        for i in range(4): expsub(vD + 2*i, vD + 2*i, vT[4])
        nop(1)
        a("v_mul_f32 v%d, v%d, v%d" % (vT[5], vD, vD+1))
        for i in range(1, 4): a("v_fmac_f32 v%d, v%d, v%d" % (vT[5], vD+2*i, vD+2*i+1))
        a("v_min_u32 v%d, -2, v%d" % (vT[4], vT[4])); a("v_min_u32 v%d, -2, v%d" % (vT[5], vT[5]))
        a("buffer_store_dwordx2 %s, v%d, %s, s%d offen sc1" % (r(vT[4], 2), vT[1], srd(sWS), sT))
        a("s_mov_b64 exec, -1")
        g.lab(l2)
        stamp("spub")
    at(n_st, c_stat1); at(n_st+1, c_stat2)
    assert n_sg > n_st + 1
    def ld_sg(emit):
        emit("buffer_load_dwordx2 %s, v%d, %s, s%d offen sc1" % (r(vSG, 2), vAd[4], srd(sWS), sT2), "sg0")
        emit("buffer_load_dwordx2 %s, v%d, %s, s%d offen offset:512 sc1" % (r(vSG+2, 2), vAd[4], srd(sWS), sT2), "sg1")
    def sg_base(): a("s_lshl_b32 s%d, s%d, 10" % (sT2, sG)); a("s_add_u32 s%d, s%d, 0x%x" % (sT2, sT2, SX))
    def c_sg():
        a("v_lshrrev_b32 v%d, 4, v%d" % (vT[0], vL)); a("v_and_b32 v%d, 3, v%d" % (vT[1], vL)); a("v_lshl_add_u32 v%d, v%d, 2, v%d" % (vT[0], vT[0], vT[1]))
        a("v_bfe_u32 v%d, v%d, 2, 2" % (vT[1], vL)); a("v_lshlrev_b32 v%d, 3, v%d" % (vT[1], vT[1])); a("v_lshl_add_u32 v%d, v%d, 5, v%d" % (vAd[4], vT[0], vT[1]))
        sg_base(); ld_sg(g.vm)
    def c_p():
        g.wait("sg1"); sg_base()
        retry(chk_sen(vSG, 4), lambda: ld_sg(lambda t, tag: a(t)))
        stamp("sgok")
        a("v_max_f32 v%d, v%d, v%d" % (vMx, vSG, vSG+2)); red_hs("v_max_f32", vMx, vT[0])
        expsub(vSG, vSG, vMx); expsub(vSG+2, vSG+2, vMx); nop(1)
        a("v_mul_f32 v%d, v%d, v%d" % (vRl, vSG, vSG+1)); a("v_fmac_f32 v%d, v%d, v%d" % (vRl, vSG+2, vSG+3))
        red_hs("v_add_f32", vRl, vT[0]); a("v_rcp_f32 v%d, v%d" % (vRl, vRl))
    def c_p2():
        for i in range(16): expsub(vS + i, vS + i, vMx)
        nop(1)
        for i in range(16):
            a("v_mul_f32 v%d, v%d, v%d" % (vS+i, vS+i, vRl))
        for i in range(16):
            a("v_cvt_pk_bf16_f32 v%d, v%d, v%d" % (vS+i, vS+i, vS+i))
        nop(2)
    at(n_sg, c_sg); at(n_pv, c_p); at(n_pv+1, c_p2)

    pvn = [0]
    def pv_prep(j):
        T, u = divmod(j, 4); tp = vTP + 2*(j % 4)
        ctl = "quad_perm:[%d,%d,%d,%d]" % (u, u, u, u)
        dpp("v_and_b32", tp, vS + T, vM0, ctl); dpp("v_and_b32", tp+1, vS + T, vM1, ctl)
    def pv_mma(j):
        tp = vTP + 2*(j % 4)
        a("v_mfma_f32_16x16x16_bf16 %s, %s, %s, %s" % (r(vO, 4), r(tp, 2), ar(4*j, 2), r(vO, 4)))
        a("v_mfma_f32_16x16x16_bf16 %s, %s, %s, %s" % (r(vO+4, 4), r(tp, 2), ar(4*j+2, 2), r(vO+4, 4)))
    def pv_upto(jmax):
        while pvn[0] < jmax:
            j = pvn[0]
            if j == 0: pv_prep(0)
            if j + 1 < 64: pv_prep(j + 1)
            else: nop(1)
            g.wait("n%d" % (64 + j))
            pv_mma(j); pvn[0] += 1
    for n in range(n_pv + 2, 128):
        at(n, (lambda n: lambda: pv_upto(min(pvn[0] + pv_rate, n - D - 64 + 1)))(n))

    def b_addr():
        a("v_bfe_u32 v%d, v%d, 1, 3" % (vT[0], vL)); a("v_lshlrev_b32 v%d, 10, v%d" % (vT[0], vT[0]))
        a("v_lshrrev_b32 v%d, 4, v%d" % (vT[1], vL)); a("v_lshl_add_u32 v%d, v%d, 5, v%d" % (vT[0], vT[1], vT[0]))
        a("v_and_b32 v%d, 1, v%d" % (vT[1], vL)); a("v_lshl_add_u32 v%d, v%d, 4, v%d" % (vT[0], vT[1], vT[0]))
        a("s_lshl_b32 s%d, s%d, 18" % (sT, sKB)); a("s_lshl_b32 s%d, s%d, 16" % (sT2, sW)); a("s_add_u32 s%d, s%d, s%d" % (sT, sT, sT2))
        a("s_lshl_b32 s%d, s%d, 7" % (sT2, sCB)); a("s_add_u32 s%d, s%d, s%d" % (sT, sT, sT2))
        a("v_add_u32 v%d, s%d, v%d" % (vAd[5], sT, vT[0]))
    def b_loads(emit):
        a("s_lshl_b32 s%d, s%d, 13" % (sT, sW))
        for i in range(8):
            a("s_add_u32 m0, s%d, %d" % (sT, LW + i*1024)); a("s_mov_b32 s%d, %d" % (sT2, i*8192))
            emit("buffer_load_dwordx4 v%d, %s, s%d offen %s lds" % (vAd[5], srd(sWO), sT2, wpol), "wo%d" % i)

    for n in range(128):
        if n >= D: g.wait("n%d" % (n - D))
        issue(n)
        for f in work.get(n, []): f()
    stamp("lastissue")
    LB, LC, LD = "L_roleB", "L_roleC", "L_roleD"
    a("s_cmp_ge_u32 s%d, 30" % sS); a("s_cbranch_scc1 " + LD)
    a("s_cmp_ge_u32 s%d, 16" % sS); a("s_cbranch_scc1 " + LC)
    q_save = list(g.q); pv_save = pvn[0]; nst_save = nst[0]

    def drain_publish():
        pv_upto(64)
        stamp("pvdone")
        a("s_lshl_b32 s%d, s%d, 11" % (sT, sW)); a("s_add_u32 s%d, s%d, %d" % (sT, sT, LO))
        a("v_lshl_add_u32 v%d, v%d, 5, s%d" % (vT[0], vL, sT))
        a("s_lshl_b32 s%d, s%d, 9" % (sT, sW)); a("v_and_b32 v%d, 31, v%d" % (vT[1], vL)); a("v_lshl_add_u32 v%d, v%d, 4, s%d" % (vT[1], vT[1], sT))
        a("v_lshrrev_b32 v%d, 5, v%d" % (vT[2], vL)); a("v_lshl_add_u32 v%d, v%d, 12, v%d" % (vT[2], vT[2], vT[1]))
        nop(2)
        a("ds_write_b128 v%d, %s" % (vT[0], r(vO, 4))); a("ds_write_b128 v%d, %s offset:16" % (vT[0], r(vO+4, 4)))
        a("s_lshl_b32 s%d, s%d, 5" % (sT, sG)); a("s_add_u32 s%d, s%d, s%d" % (sT, sT, sS)); a("s_lshl_b32 s%d, s%d, 11" % (sT, sT)); a("s_add_u32 s%d, s%d, 0x%x" % (sT, sT, OX))
        a("s_waitcnt lgkmcnt(0)"); a("s_barrier")
        a("ds_read_b128 %s, v%d offset:%d" % (r(vD, 4), vT[2], LO)); a("ds_read_b128 %s, v%d offset:%d" % (r(vD+4, 4), vT[2], LO + 2048))
        a("s_waitcnt lgkmcnt(0)")
        a("v_pk_add_f32 %s, %s, %s" % (r(vD, 2), r(vD, 2), r(vD+4, 2))); a("v_pk_add_f32 %s, %s, %s" % (r(vD+2, 2), r(vD+2, 2), r(vD+6, 2)))
        red_swap_n("v_add_f32", [vD+i for i in range(4)], [vD+4+i for i in range(4)], 32)
        for i in range(4): a("v_min_u32 v%d, -2, v%d" % (vD+i, vD+i))
        a("s_mov_b64 exec, 0xffffffff")
        a("buffer_store_dwordx4 %s, v%d, %s, s%d offen sc1" % (r(vD, 4), vT[1], srd(sWS), sT))
        a("s_mov_b64 exec, -1")
        stamp("opub")
    def gather(n, addr, soffs, pre=None):
        def lds_(emit):
            for i in range(n):
                a("s_mov_b32 s%d, 0x%x" % (sT2, soffs[i]))
                emit("buffer_load_dwordx4 %s, v%d, %s, s%d offen sc1" % (r(vG + 4*i, 4), addr, srd(sWS), sT2), "g%d" % i)
        lds_(g.vm)
        if pre: pre()
        g.waitall()
        retry(chk_sen(vG, 4*n), lambda: lds_(lambda t, tag: a(t)))
    def sum_g(n):
        st = 1
        while st < n:
            for i in range(0, n, 2*st):
                if i + st < n:
                    for h in range(2): a("v_pk_add_f32 %s, %s, %s" % (r(vG+4*i+2*h, 2), r(vG+4*i+2*h, 2), r(vG+4*(i+st)+2*h, 2)))
            st *= 2
    def attn_to_h(x):
        red_swap_n("v_add_f32", [vG+i for i in range(4)], [vG+4+i for i in range(4)], 32)
        rbf2(vG, vG+1, vG, vG+1, vT[0]); rbf2(vG+2, vG+3, vG+2, vG+3, vT[1])
        for e in range(4): a("v_add_f32 v%d, v%d, v%d" % (vG+e, vG+e, x+e))
        rbf2(vH, vH+1, vG, vG+1, vT[0]); rbf2(vH+2, vH+3, vG+2, vG+3, vT[1])
    def finish(role):
        if probe and role in probe[0]:
            ia, ib = stn.index(probe[1]), stn.index(probe[2]); lp = g.newlab("L_probe"); lq = g.newlab("L_noprobe")
            if len(probe) > 4: a("s_and_b32 s%d, s2, %d" % (sT, probe[4])); a("s_cmp_lg_u32 s%d, %d" % (sT, probe[5])); a("s_cbranch_scc1 " + lq)
            a("s_waitcnt lgkmcnt(0)")
            a("s_sub_u32 s%d, s%d, s%d" % (sT, sST + 2*ib, sST + 2*ia)); a("s_mul_i32 s%d, s%d, %d" % (sT, sT, probe[3]))
            a("s_min_u32 s%d, s%d, 100000" % (sT, sT)); a("s_add_u32 s%d, s%d, %d" % (sT, sT, probe_base))
            g.lab(lp)
            a("s_memrealtime s[%d:%d]" % (sM, sM+1)); a("s_waitcnt lgkmcnt(0)"); a("s_sub_u32 s%d, s%d, s%d" % (sT2, sM, sST))
            a("s_cmp_lt_u32 s%d, s%d" % (sT2, sT)); a("s_cbranch_scc1 " + lp)
            g.lab(lq)
        if stamps:
            a("s_waitcnt lgkmcnt(0)")
            a("s_lshl_b32 s%d, s2, 2" % sT); a("s_add_u32 s%d, s%d, s%d" % (sT, sT, sW)); a("s_lshl_b32 s%d, s%d, 6" % (sT, sT)); a("s_add_u32 s%d, s%d, 0x%x" % (sT, sT, STAMP))
            a("s_mov_b64 exec, 1"); a("v_mov_b32 v%d, s%d" % (vT[0], sT))
            for i in range(16):
                a("v_mov_b32 v%d, %s" % (vG + i, ("s%d" % (sST + 2*i)) if i < nst[0] else "0"))
            for i in range(4): a("buffer_store_dwordx4 %s, v%d, %s, 0 offen offset:%d" % (r(vG+4*i, 4), vT[0], srd(sWS), 16*i))
        a("s_endpgm")

    g.lab(LB)
    b_addr(); b_loads(g.vm)
    drain_publish()
    a("s_lshl_b32 s%d, s%d, 16" % (sT, sG)); a("s_lshr_b32 s%d, s%d, 3" % (sT2, sS)); a("s_lshl_b32 s%d, s%d, 10" % (sT2, sT2)); a("s_add_u32 s%d, s%d, s%d" % (sT, sT, sT2))
    a("s_lshl_b32 s%d, s%d, 8" % (sT2, sW)); a("s_add_u32 s%d, s%d, s%d" % (sT, sT, sT2))
    a("v_lshrrev_b32 v%d, 4, v%d" % (vT[2], vL)); a("v_and_b32 v%d, 15, v%d" % (vT[4], vL))
    a("v_lshlrev_b32 v%d, 11, v%d" % (vT[0], vT[2])); a("v_lshl_add_u32 v%d, v%d, 4, v%d" % (vT[0], vT[4], vT[0])); a("v_add_u32 v%d, s%d, v%d" % (vAd[6], sT, vT[0]))
    def b_pre():
        a("s_lshl_b32 s%d, s%d, 13" % (sT, sW))
        a("v_lshrrev_b32 v%d, 5, v%d" % (vT[0], vL)); a("v_lshlrev_b32 v%d, 10, v%d" % (vT[0], vT[0]))
        a("v_and_b32 v%d, 31, v%d" % (vT[1], vL)); a("v_lshl_add_u32 v%d, v%d, 3, v%d" % (vT[0], vT[1], vT[0])); a("v_add_u32 v%d, s%d, v%d" % (vT[3], sT, vT[0]))
        a("s_lshl_b32 s%d, s%d, 8" % (sT, sW)); a("s_add_u32 s%d, s%d, %d" % (sT, sT, LACT2))
        a("v_lshl_add_u32 v%d, v%d, 3, s%d" % (vT[10], vT[4], sT)); a("v_lshl_add_u32 v%d, v%d, 3, s%d" % (vT[11], vT[2], sT))
        a("s_lshl_b32 s%d, s%d, 2" % (sT, sW)); a("s_add_u32 s%d, s%d, %d" % (sT, sT, LRED2)); a("v_lshl_add_u32 v%d, v%d, 4, s%d" % (vT[9], vL, sT))
        g.wait("wo7")
        for ks in range(2):
            for c in range(4):
                for rr in range(2):
                    a("ds_read_b64_tr_b16 %s, v%d offset:%d" % (r(vW + 16*ks + 4*c + 2*rr, 2), vT[3], LW + (4*ks + 2*rr)*1024 + c*256))
    gather(8, vAd[6], [OX + 4*i*2048 for i in range(8)], b_pre)
    stamp("x1ok")
    sum_g(8)
    red_swap_n("v_add_f32", [vG+i for i in range(4)], [vG+4+i for i in range(4)], 16)
    red_swap_n("v_add_f32", [vG+i for i in range(4)], [vG+4+i for i in range(4)], 32)
    a("v_cvt_pk_bf16_f32 v%d, v%d, v%d" % (vT[4], vG, vG+1)); a("v_cvt_pk_bf16_f32 v%d, v%d, v%d" % (vT[5], vG+2, vG+3))
    a("ds_write_b64 v%d, %s" % (vT[10], r(vT[4], 2)))
    for ks in range(2): a("ds_read2_b64 %s, v%d offset0:%d offset1:%d" % (r(vA + 4*ks, 4), vT[11], ks*8, ks*8 + 4))
    a("s_waitcnt lgkmcnt(0)")
    for ks in range(2):
        for c in range(4):
            a("v_mfma_f32_16x16x32_bf16 %s, %s, %s, %s" % (r(vD + 4*c, 4), r(vA + 4*ks, 4), r(vW + 16*ks + 4*c, 4), r(vD + 4*c, 4) if ks else "0"))
    a("s_lshl_b32 s%d, s%d, 11" % (sT, sKB)); a("s_lshl_b32 s%d, s%d, 8" % (sT2, sCB)); a("s_add_u32 s%d, s%d, s%d" % (sT, sT, sT2)); a("s_add_u32 s%d, s%d, 0x%x" % (sT, sT, AX))
    nop(4)
    a("v_cndmask_b32 v%d, v%d, v%d, s[%d:%d]" % (vT[0], vD, vD+4, sR1, sR1+1)); a("v_cndmask_b32 v%d, v%d, v%d, s[%d:%d]" % (vT[1], vD+8, vD+12, sR1, sR1+1))
    a("v_cndmask_b32 v%d, v%d, v%d, s[%d:%d]" % (vT[0], vT[0], vT[1], sR2, sR2+1))
    a("ds_write_b32 v%d, v%d" % (vT[9], vT[0]))
    a("v_lshlrev_b32 v%d, 4, v%d" % (vT[2], vL)); a("v_lshlrev_b32 v%d, 2, v%d" % (vT[3], vL))
    a("s_waitcnt lgkmcnt(0)"); a("s_barrier")
    lb = g.newlab("L_bdone")
    a("s_cmp_lg_u32 s%d, 0" % sW); a("s_cbranch_scc1 " + lb)
    a("ds_read_b128 %s, v%d offset:%d" % (r(vD, 4), vT[2], LRED2)); a("s_waitcnt lgkmcnt(0)")
    a("v_add_f32 v%d, v%d, v%d" % (vD, vD, vD+1)); a("v_add_f32 v%d, v%d, v%d" % (vD+2, vD+2, vD+3)); a("v_add_f32 v%d, v%d, v%d" % (vD, vD, vD+2))
    a("v_min_u32 v%d, -2, v%d" % (vD, vD))
    a("buffer_store_dword v%d, v%d, %s, s%d offen sc1" % (vD, vT[3], srd(sWS), sT))
    g.lab(lb)
    stamp("bpub")
    finish("B")
    stB = list(stn)

    g.lab(LC); g.q = list(q_save); pvn[0] = pv_save; nst[0] = nst_save; del stn[nst_save:]
    drain_publish()
    a("v_lshrrev_b32 v%d, 1, v%d" % (vT[0], vL)); a("v_mul_u32_u24 v%d, 3584, v%d" % (vT[0], vT[0])); a("v_and_b32 v%d, 1, v%d" % (vT[1], vL)); a("v_lshl_add_u32 v%d, v%d, 4, v%d" % (vT[0], vT[1], vT[0]))
    a("s_mul_i32 s%d, s%d, %d" % (sT, sW, 128*3584)); a("s_lshl_b32 s%d, s%d, 5" % (sT2, sCI)); a("s_add_u32 s%d, s%d, s%d" % (sT, sT, sT2)); a("v_add_u32 v%d, s%d, v%d" % (vAd[5], sT, vT[0]))
    a("s_lshl_b32 s%d, s%d, 13" % (sT, sW))
    for mi, sb in enumerate((sWG, sWU)):
        for i in range(4):
            a("s_add_u32 m0, s%d, %d" % (sT, LW + mi*4096 + i*1024)); a("s_mov_b32 s%d, %d" % (sT2, i*32*3584))
            g.vm("buffer_load_dwordx4 v%d, %s, s%d offen %s lds" % (vAd[5], srd(sb), sT2, wpol), "gu%d" % (4*mi + i))
    a("v_lshrrev_b32 v%d, 4, v%d" % (vT[2], vL)); a("v_and_b32 v%d, 15, v%d" % (vT[4], vL))
    a("s_lshl_b32 s%d, s%d, 14" % (sT, sCI)); a("s_lshl_b32 s%d, s%d, 8" % (sT2, sW)); a("s_add_u32 s%d, s%d, s%d" % (sT, sT, sT2))
    a("v_lshlrev_b32 v%d, 12, v%d" % (vT[0], vT[2])); a("v_lshl_add_u32 v%d, v%d, 4, v%d" % (vT[0], vT[4], vT[0])); a("v_add_u32 v%d, s%d, v%d" % (vAd[7], sT, vT[0]))
    for t in range(4):
        g.vm("buffer_load_dwordx4 %s, v%d, %s, 0 offen offset:%d %s" % (r(vWD + 4*t, 4), vAd[7], srd(sWD), t*1024, wpol), "wd%d" % t)
    a("s_lshl_b32 s%d, s%d, 9" % (sT, sW)); a("v_lshrrev_b32 v%d, 5, v%d" % (vT[0], vL)); a("v_and_b32 v%d, 31, v%d" % (vT[1], vL))
    a("v_lshlrev_b32 v%d, 11, v%d" % (vT[0], vT[0])); a("v_lshl_add_u32 v%d, v%d, 4, v%d" % (vT[0], vT[1], vT[0])); a("v_add_u32 v%d, s%d, v%d" % (vAd[6], sT, vT[0]))
    a("v_and_b32 v%d, 4, v%d" % (vT[0], vL)); a("v_cmp_ne_u32 vcc, 0, v%d" % vT[0]); nop(2)
    a("v_cndmask_b32 v%d, v%d, 0, vcc" % (vP, vM0) if False else "v_cndmask_b32_e64 v%d, v%d, 0, vcc" % (vP, vM0))
    a("v_cndmask_b32_e64 v%d, v%d, 0, vcc" % (vP+1, vM1)); a("v_cndmask_b32_e64 v%d, 0, v%d, vcc" % (vP+2, vM0)); a("v_cndmask_b32_e64 v%d, 0, v%d, vcc" % (vP+3, vM1))
    a("s_lshl_b32 s%d, s%d, 13" % (sT, sW)); a("v_lshl_add_u32 v%d, v%d, 3, s%d" % (vT[3], vL, sT))
    g.wait("gu7")
    tr_linear(vW, LW, 4); tr_linear(vW + 16, LW + 4096, 4)
    stamp("cwok")
    gather(8, vAd[6], [AX + 2*i*2048 for i in range(8)])
    stamp("x2ok")
    sum_g(8); attn_to_h(vX)
    ln_part1(vH, LST2)
    ln_part2(vH, LST2, LACT2, 4)
    a("v_and_b32 v%d, 31, v%d" % (vT[0], vL)); a("s_lshl_b32 s%d, s%d, 2" % (sT, sW)); a("s_add_u32 s%d, s%d, %d" % (sT, sT, LRED2)); a("v_lshl_add_u32 v%d, v%d, 4, s%d" % (vT[9], vT[0], sT))
    a("v_lshrrev_b32 v%d, 4, v%d" % (vT[0], vL)); a("v_and_b32 v%d, 3, v%d" % (vT[1], vL)); a("v_lshl_add_u32 v%d, v%d, 2, v%d" % (vT[0], vT[0], vT[1])); a("v_lshlrev_b32 v%d, 4, v%d" % (vT[8], vT[0]))
    a("s_waitcnt lgkmcnt(0)")
    for ks in range(4):
        for mi in range(2):
            a("v_mfma_f32_16x16x32_bf16 %s, %s, %s, %s" % (r(vD + 4*mi, 4), r(vA + 4*ks, 4), r(vW + 16*mi + 4*ks, 4), r(vD + 4*mi, 4) if ks else "0"))
    a("s_lshl_b32 s%d, s%d, 11" % (sT, sCI)); a("s_lshl_b32 s%d, s%d, 9" % (sT2, sW)); a("s_add_u32 s%d, s%d, s%d" % (sT, sT, sT2)); a("s_add_u32 s%d, s%d, 0x%x" % (sT, sT, DX))
    nop(4)
    a("v_cndmask_b32 v%d, v%d, v%d, s[%d:%d]" % (vT[0], vD, vD+4, sR1, sR1+1))
    a("ds_write_b32 v%d, v%d" % (vT[9], vT[0]))
    a("v_and_b32 v%d, 15, v%d" % (vT[0], vL)); a("v_bfe_u32 v%d, v%d, 4, 1" % (vT[1], vL)); a("v_lshlrev_b32 v%d, 5, v%d" % (vT[0], vT[0])); a("v_lshl_add_u32 v%d, v%d, 4, v%d" % (vT[7], vT[1], vT[0]))
    a("s_waitcnt lgkmcnt(0)"); a("s_barrier")
    a("ds_read_b128 %s, v%d offset:%d" % (r(vD, 4), vT[8], LRED2)); a("ds_read_b128 %s, v%d offset:%d" % (r(vD+4, 4), vT[8], LRED2 + 256))
    a("s_waitcnt lgkmcnt(0)")
    for b in (vD, vD+4): a("v_add_f32 v%d, v%d, v%d" % (b, b, b+1))
    for b in (vD, vD+4): a("v_add_f32 v%d, v%d, v%d" % (b+2, b+2, b+3))
    for b in (vD, vD+4): a("v_add_f32 v%d, v%d, v%d" % (b, b, b+2))
    rbf2(vT[0], vT[1], vD, vD+4, vT[2])
    a("v_mul_f32 v%d, s%d, v%d" % (vT[0], sL2E, vT[0])); a("v_exp_f32 v%d, -v%d" % (vT[0], vT[0])); nop(1)
    a("v_add_f32 v%d, 1.0, v%d" % (vT[0], vT[0])); a("v_rcp_f32 v%d, v%d" % (vT[0], vT[0])); nop(1)
    rbf(vT[0], vT[0]); a("v_mul_f32 v%d, v%d, v%d" % (vT[0], vT[0], vT[1])); a("v_cvt_pk_bf16_f32 v%d, v%d, v%d" % (vT[0], vT[0], vT[0])); nop(2)
    for t in range(4):
        for j in range(4): dpp("v_and_b32", vA + 4*t + j, vT[0], vP + j, "quad_perm:[%d,%d,%d,%d]" % (t, t, t, t))
        if t >= 1: a("v_mfma_f32_16x16x32_bf16 %s, %s, %s, %s" % (r(vD, 4), r(vA + 4*(t-1), 4), r(vWD + 4*(t-1), 4), r(vD, 4) if t > 1 else "0"))
    nop(1)
    a("v_mfma_f32_16x16x32_bf16 %s, %s, %s, %s" % (r(vD, 4), r(vA + 12, 4), r(vWD + 12, 4), r(vD, 4)))
    nop(8)
    for i in range(4): a("v_min_u32 v%d, -2, v%d" % (vD+i, vD+i))
    a("s_mov_b64 exec, 0xffffffff")
    a("buffer_store_dwordx4 %s, v%d, %s, s%d offen sc1" % (r(vD, 4), vT[7], srd(sWS), sT))
    a("s_mov_b64 exec, -1")
    stamp("cpub")
    finish("C")
    stC = list(stn)

    g.lab(LD); g.q = list(q_save); pvn[0] = pv_save; nst[0] = nst_save; del stn[nst_save:]
    drain_publish()
    sDJ = sKB
    a("s_lshl_b32 s%d, s%d, 1" % (sDJ, sG)); a("s_add_u32 s%d, s%d, s%d" % (sDJ, sDJ, sS)); a("s_sub_u32 s%d, s%d, 30" % (sDJ, sDJ))
    a("v_and_b32 v%d, 7, v%d" % (vT[4], vL)); a("s_lshl_b32 s%d, s%d, 6" % (sT, sDJ)); a("v_lshl_add_u32 v%d, v%d, 3, s%d" % (vAd[7], vT[4], sT))
    g.vm("buffer_load_dwordx2 %s, v%d, %s, 0 offen" % (r(vT[6], 2), vAd[7], srd(sX)), "x2")
    a("s_lshl_b32 s%d, s%d, 7" % (sT, sDJ)); a("v_lshrrev_b32 v%d, 5, v%d" % (vT[0], vL)); a("v_lshlrev_b32 v%d, 11, v%d" % (vT[0], vT[0]))
    a("v_lshl_add_u32 v%d, v%d, 4, v%d" % (vT[0], vT[4], vT[0])); a("v_add_u32 v%d, s%d, v%d" % (vAd[6], sT, vT[0]))
    a("s_lshl_b32 s%d, s%d, 14" % (sT2, sW)); a("s_add_u32 s%d, s%d, s%d" % (sT, sT, sT2))
    a("v_lshrrev_b32 v%d, 3, v%d" % (vT[0], vL)); a("v_lshlrev_b32 v%d, 11, v%d" % (vT[0], vT[0])); a("v_lshl_add_u32 v%d, v%d, 4, v%d" % (vT[0], vT[4], vT[0])); a("v_add_u32 v%d, s%d, v%d" % (vAd[5], sT, vT[0]))
    gather(8, vAd[6], [AX + 2*i*2048 for i in range(8)])
    stamp("x2ok")
    a("v_lshlrev_b32 v%d, 16, v%d" % (vX, vT[6])); a("v_and_b32 v%d, 0xffff0000, v%d" % (vX+1, vT[6]))
    a("v_lshlrev_b32 v%d, 16, v%d" % (vX+2, vT[7])); a("v_and_b32 v%d, 0xffff0000, v%d" % (vX+3, vT[7]))
    sum_g(8); attn_to_h(vX)
    a("s_lshl_b32 s%d, s%d, 7" % (sT, sW)); a("s_add_u32 s%d, s%d, %d" % (sT, sT, LRED2)); a("v_lshl_add_u32 v%d, v%d, 4, s%d" % (vT[9], vT[4], sT))
    a("v_lshlrev_b32 v%d, 4, v%d" % (vT[8], vT[4]))
    l3, l4 = g.newlab("L_d3"), g.newlab("L_d4")
    a("s_cmp_ge_u32 s%d, 2" % sW); a("s_cbranch_scc1 " + l3)
    gather(4, vAd[5], [DX + 32*i*2048 for i in range(4)]); sum_g(4)
    a("s_branch " + l4)
    g.lab(l3)
    gather(3, vAd[5], [DX + 32*i*2048 for i in range(3)]); sum_g(3)
    g.lab(l4)
    stamp("x3ok")
    nop(1)
    for i in range(4): dpp("v_add_f32", vG+i, vG+i, vG+i, "row_ror:8")
    red_swap_n("v_add_f32", [vG+i for i in range(4)], [vG+4+i for i in range(4)], 16)
    red_swap_n("v_add_f32", [vG+i for i in range(4)], [vG+4+i for i in range(4)], 32)
    a("s_mov_b64 exec, 0xff"); a("ds_write_b128 v%d, %s" % (vT[9], r(vG, 4))); a("s_mov_b64 exec, -1")
    a("s_waitcnt lgkmcnt(0)"); a("s_barrier")
    ld = g.newlab("L_ddone")
    a("s_cmp_lg_u32 s%d, 0" % sW); a("s_cbranch_scc1 " + ld)
    a("s_mov_b64 exec, 0xff")
    for w in range(4): a("ds_read_b128 %s, v%d offset:%d" % (r(vG + 4*w, 4), vT[8], LRED2 + 128*w))
    a("s_waitcnt lgkmcnt(0)")
    sum_g(4)
    rbf2(vG, vG+1, vG, vG+1, vT[0]); rbf2(vG+2, vG+3, vG+2, vG+3, vT[1])
    for e in range(4): a("v_add_f32 v%d, v%d, v%d" % (vG+e, vG+e, vH+e))
    a("v_cvt_pk_bf16_f32 v%d, v%d, v%d" % (vT[4], vG, vG+1)); a("v_cvt_pk_bf16_f32 v%d, v%d, v%d" % (vT[5], vG+2, vG+3))
    a("buffer_store_dwordx2 %s, v%d, %s, 0 offen" % (r(vT[4], 2), vAd[7], srd(sOUT)))
    a("s_mov_b64 exec, -1")
    g.lab(ld)
    stamp("out")
    finish("D")
    stD = list(stn)
    g.lab("L_end"); a("s_endpgm")

    hdr = """; Fused decode layer: LN -> q proj -> GQA attention over the KV cache -> out proj -> LN -> GLU MLP, one persistent launch.
; 256 workgroups (one per CU) x 4 waves. Hand-offs through d_ws carry self-validating words (cleared at entry, clear counted in d_debug).
; @launch grid=(256,1,1) block=(256,1,1) lds=%d
.amdgcn_target "amdgcn-amd-amdhsa--gfx950"
.text
.globl %s_kernel
.p2align 8
.type %s_kernel,@function
%s_kernel:
""" % (LDS_SIZE, KN, KN, KN)
    ftr = """
.section .rodata,"a"
.p2align 6
.amdhsa_kernel %s_kernel
  .amdhsa_next_free_vgpr 512
  .amdhsa_next_free_sgpr 102
  .amdhsa_accum_offset 256
  .amdhsa_group_segment_fixed_size 0
  .amdhsa_kernarg_size 96
  .amdhsa_user_sgpr_count 2
  .amdhsa_user_sgpr_kernarg_segment_ptr 1
  .amdhsa_system_sgpr_workgroup_id_x 1
  .amdhsa_float_denorm_mode_32 3
.end_amdhsa_kernel
""" % KN
    return hdr + "\n".join(g.L) + ftr, dict(B=stB, C=stC, D=stD, nv=g.vn)

if __name__ == "__main__":
    kw = eval("dict(%s)" % (sys.argv[2] if len(sys.argv) > 2 else ""))
    src, info = gen(**kw)
    open(sys.argv[1], "w").write(src); print(info, len(src))
```

```python
import sys
KN = "sequential_preLN__gqa_block_cached__glu_gated_glu__decode"

SX = 0x0000
AX = 0x4000
QX = 0x10000
DX = 0x20000
OX = 0x80000
WS_USED = 0x100000
OOB = 0x20000000
STAMP = 0x200000
LW   = 0
LWQ  = 0x8000
LACT = 0xC000
LACT2= 0xC400
LQ   = 0xC800
LRED = 0xCC00
LRED2= 0xD000
LCS  = 0xD400
LST  = 0xD600
LST2 = 0xD640
LS2  = 0xD680
LO   = 0xD800
LDS_SIZE = 0xF800

LOG2E = 0x3FB8AA3B
SCALE = 0x3DB504F3
EPS   = 0x3727C5AC

class G:
    def __init__(s):
        s.L = []; s.q = []; s.nlab = 0; s.vn = 0; s.names = {}
    def a(s, x): s.L.append("  " + x)
    def lab(s, x): s.L.append(x + ":")
    def newlab(s, p="L"):
        s.nlab += 1; return "%s_%d" % (p, s.nlab)
    def v(s, name, n=1, align=1):
        if n > 1: align = max(align, 2)
        s.vn = (s.vn + align - 1)//align*align
        r = s.vn; s.vn += n; s.names[name] = r
        assert s.vn <= 256
        return r
    def vm(s, txt, tag):
        s.a(txt); s.q.append(tag)
    def wait(s, tag):
        if tag not in s.q: return
        i = s.q.index(tag); n = len(s.q) - 1 - i
        assert n <= 63
        s.a("s_waitcnt vmcnt(%d)" % n); s.q = s.q[i+1:]
    def waitall(s):
        s.a("s_waitcnt vmcnt(0)"); s.q = []

def r(a, n): return "v[%d:%d]" % (a, a+n-1)
def ar(a, n): return "a[%d:%d]" % (a, a+n-1)
def sp(a): return "s[%d:%d]" % (a, a+1)
DPP = " row_mask:0xf bank_mask:0xf"

def gen(D=8, D0=None, pol="nt", wpol="nt", stamps=False, n_x0=None, n_cnt=None, n_q=None, n_qk=62, n_sg=None, n_pv=112, K0=4, pv_rate=6,
        n_pf=116, pfpol="nt", ex_at=0, spin=1 << 16, probe=None, probe_base=4000, exactLN=True, retry_mode="mask", cyc=False, psleep=0, abl=()):
    g = G(); a = g.a
    if D0 is None: D0 = D
    if n_x0 is None: n_x0 = D0 + D
    if n_q is None: n_q = n_qk - D
    if n_cnt is None: n_cnt = n_q - D
    if n_sg is None: n_sg = n_pv - D
    sW, sG, sS = 3, 4, 5
    sK, sV, sWS, sX, sWQ, sR1_, sR2_, sWD, sOUT, sDBG = 8, 12, 16, 20, 24, 28, 32, 36, 40, 44
    sWOp, sWGp, sWUp = 48, 50, 52
    sB0, sB1, sR1, sR2 = 54, 56, 58, 60
    sT, sT2, sOFF, sCNT = 62, 63, 6, 7
    sKB, sCB, sCI = 64, 65, 66
    sL2E, sSC = 67, 68
    sWST, sWH = 69, 70
    sMK = 48
    sPF = 72
    sST = 76
    nst = [0]; stn = []
    def stamp(name):
        if stamps or probe:
            a("%s s[%d:%d]" % ("s_memtime" if cyc else "s_memrealtime", sST + 2*nst[0], sST + 2*nst[0] + 1)); nst[0] += 1; stn.append(name)
            assert sST + 2*nst[0] <= 104
    def srd(b): return "s[%d:%d]" % (b, b+3)
    g.v("tid"); vL = g.v("lane"); vKo = g.v("koff"); vVo = g.v("voff")
    vM0 = g.v("m0"); vM1 = g.v("m1")
    vT = [g.v("t%d" % i) for i in range(12)]
    vX = g.v("x", 4); vQ = g.v("q", 4); vS = g.v("S", 16); vD = g.v("D", 16); vO = g.v("O", 8); vTP = g.v("TP", 8)
    vA = g.v("A", 16); vW = g.v("W", 32); vWD = g.v("WD", 16); vG = g.v("G", 32); vH = g.v("H", 4); vP = g.v("P", 4)
    vAd = [g.v("ad%d" % i) for i in range(10)]
    vMx = g.v("mx"); vRl = g.v("rl"); vCn = g.v("cn"); vCSg = g.v("csg"); vCSu = g.v("csu")
    vSG = g.v("sg", 4); vSen = g.v("sen", 4); vXr = g.v("xr", 2); vE = g.v("E", 8)
    assert vT[4] % 2 == 0

    def nop(n): a("s_nop %d" % (n-1))
    def dpp(op, d, s0, s1, ctl): a("%s_dpp v%d, v%d, v%d %s%s" % (op, d, s0, s1, ctl, DPP))
    def red_quad(op, x):
        nop(2); dpp(op, x, x, x, "quad_perm:[1,0,3,2]"); nop(2); dpp(op, x, x, x, "quad_perm:[2,3,0,1]")
    def red_swap(op, x, t, which):
        a("v_mov_b32 v%d, v%d" % (t, x)); nop(2); a("v_permlane%d_swap_b32 v%d, v%d" % (which, x, t)); a("%s v%d, v%d, v%d" % (op, x, x, t))
    def red_swap_n(op, xs, ts, which):
        for x, t in zip(xs, ts): a("v_mov_b32 v%d, v%d" % (t, x))
        if len(xs) < 3: nop(3 - len(xs))
        for x, t in zip(xs, ts): a("v_permlane%d_swap_b32 v%d, v%d" % (which, x, t))
        for x, t in zip(xs, ts): a("%s v%d, v%d, v%d" % (op, x, x, t))
    def red32(x, t):
        red_quad("v_add_f32", x); nop(2); dpp("v_add_f32", x, x, x, "row_half_mirror"); nop(2); dpp("v_add_f32", x, x, x, "row_mirror")
        red_swap("v_add_f32", x, t, 16)
    def red32x2(x, y, t, t2):
        nop(1)
        for ctl in ("quad_perm:[1,0,3,2]", "quad_perm:[2,3,0,1]", "row_half_mirror", "row_mirror"):
            dpp("v_add_f32", x, x, x, ctl); dpp("v_add_f32", y, y, y, ctl); nop(1)
        red_swap_n("v_add_f32", [x, y], [t, t2], 16)
    def rbf(d, s_):
        a("v_cvt_pk_bf16_f32 v%d, v%d, v%d" % (d, s_, s_)); a("v_lshlrev_b32 v%d, 16, v%d" % (d, d))
    def rbf2(d0, d1, s0, s1, t):
        a("v_cvt_pk_bf16_f32 v%d, v%d, v%d" % (t, s0, s1)); a("v_lshlrev_b32 v%d, 16, v%d" % (d0, t)); a("v_and_b32 v%d, 0xffff0000, v%d" % (d1, t))
    def unpack4(d, p):
        a("v_lshlrev_b32 v%d, 16, v%d" % (d, p)); a("v_and_b32 v%d, 0xffff0000, v%d" % (d+1, p))
        a("v_lshlrev_b32 v%d, 16, v%d" % (d+2, p+1)); a("v_and_b32 v%d, 0xffff0000, v%d" % (d+3, p+1))
    def expsub(d, x, m):
        a("v_sub_f32 v%d, v%d, v%d" % (d, x, m)); a("v_mul_f32 v%d, s%d, v%d" % (d, sL2E, d)); a("v_exp_f32 v%d, v%d" % (d, d))
    def sum4(b):
        a("v_add_f32 v%d, v%d, v%d" % (b, b, b+1)); a("v_add_f32 v%d, v%d, v%d" % (b+2, b+2, b+3)); a("v_add_f32 v%d, v%d, v%d" % (b, b, b+2))
    def cnd(d, f, t, m): a("v_cndmask_b32_e64 v%d, %s, %s, %s" % (d, f, t, m))
    def wg_lin(dst):
        a("s_lshl_b32 s%d, s%d, 5" % (dst, sG)); a("s_add_u32 s%d, s%d, s%d" % (dst, dst, sS))

    def issue(n):
        t, j = divmod(n, 64); st, c = divmod(j, 4)
        if c == 0: a("s_mov_b32 s%d, 0x%x" % (sOFF, st << 19))
        g.vm("buffer_load_dwordx4 %s, v%d, %s, s%d offen offset:%d %s" % (ar(4*j, 4), vVo if t else vKo, srd(sV if t else sK), sOFF, c*1024, pol), "n%d" % n)

    a("s_cmp_ge_u32 s2, 256"); a("s_cbranch_scc1 L_end")
    stamp("start")
    for b, off in ((sK, 8), (sV, 16), (sX, 0), (sWQ, 24), (sWS, 88), (sDBG, 80), (sWOp, 32), (sWGp, 48), (sWUp, 56), (sWD, 64), (sOUT, 72)):
        a("s_load_dwordx2 s[%d:%d], s[0:1], %d" % (b, b+1, off))
    a("v_lshrrev_b32 v%d, 6, v0" % vT[0]); a("v_and_b32 v%d, 63, v0" % vL)
    a("s_and_b32 s%d, s2, 7" % sG); a("v_readfirstlane_b32 s%d, v%d" % (sW, vT[0])); a("s_lshr_b32 s%d, s2, 3" % sS)
    a("s_lshl_b32 s%d, s%d, 23" % (sT, sG)); a("s_lshl_b32 s%d, s%d, 14" % (sT2, sS)); a("s_add_u32 s%d, s%d, s%d" % (sT, sT, sT2))
    a("s_lshl_b32 s%d, s%d, 12" % (sT2, sW)); a("s_add_u32 s%d, s%d, s%d" % (sT, sT, sT2))
    a("v_and_b32 v%d, 15, v%d" % (vT[1], vL)); a("v_lshrrev_b32 v%d, 4, v%d" % (vT[2], vL))
    a("v_lshlrev_b32 v%d, 6, v%d" % (vAd[0], vT[1])); a("v_lshl_add_u32 v%d, v%d, 4, v%d" % (vAd[0], vT[2], vAd[0]))
    a("v_add_u32 v%d, s%d, v%d" % (vKo, sT, vAd[0]))
    a("v_lshlrev_b32 v%d, 4, v%d" % (vVo, vL)); a("v_add_u32 v%d, s%d, v%d" % (vVo, sT, vVo))
    if "lin" in abl: a("v_mov_b32 v%d, v%d" % (vKo, vVo))
    for b, n in ((sK, 1 << 26), (sV, 1 << 26), (sX, 1024), (sWQ, 1 << 22), (sWS, WS_USED if not stamps else 1 << 28), (sDBG, 256), (sWD, 1792*1024), (sOUT, 1024)):
        a("s_mov_b32 s%d, 0x%x" % (b+2, n)); a("s_mov_b32 s%d, 0x20000" % (b+3))
    a("v_and_b32 v%d, 31, v%d" % (vT[3], vL)); a("s_lshl_b32 s%d, s%d, 8" % (sT, sW)); a("v_lshl_add_u32 v%d, v%d, 3, s%d" % (vAd[1], vT[3], sT))
    a("v_bfe_u32 v%d, v%d, 1, 3" % (vT[4], vL)); a("v_and_b32 v%d, 1, v%d" % (vT[5], vL))
    a("v_lshlrev_b32 v%d, 5, v%d" % (vT[6], vT[2])); a("v_lshl_add_u32 v%d, v%d, 4, v%d" % (vT[6], vT[5], vT[6]))
    a("s_lshr_b32 s%d, s%d, 3" % (sKB, sS)); a("s_and_b32 s%d, s%d, 7" % (sCB, sS))
    a("s_lshl_b32 s%d, s%d, 2" % (sT, sKB)); a("s_add_u32 s%d, s%d, s%d" % (sT, sT, sW)); a("s_lshl_b32 s%d, s%d, 18" % (sT, sT))
    a("s_lshl_b32 s%d, s%d, 10" % (sT2, sG)); a("s_add_u32 s%d, s%d, s%d" % (sT, sT, sT2)); a("s_lshl_b32 s%d, s%d, 7" % (sT2, sCB)); a("s_add_u32 s%d, s%d, s%d" % (sT, sT, sT2))
    a("v_lshl_add_u32 v%d, v%d, 13, v%d" % (vAd[2], vT[4], vT[6])); a("v_add_u32 v%d, s%d, v%d" % (vAd[2], sT, vAd[2]))
    a("s_waitcnt lgkmcnt(0)")
    for n in range(K0): issue(n)
    for i in range(4): a("v_mov_b32 v%d, -1" % (vSen + i))
    a("s_mul_i32 s%d, s%d, 14" % (sCI, sG)); a("s_add_u32 s%d, s%d, s%d" % (sCI, sCI, sS)); a("s_sub_u32 s%d, s%d, 16" % (sCI, sCI))
    wg_lin(sT); a("s_lshl_b32 s%d, s%d, 11" % (sT, sT)); a("s_lshl_b32 s%d, s%d, 9" % (sT2, sW)); a("s_add_u32 s%d, s%d, s%d" % (sT, sT, sT2)); a("s_add_u32 s%d, s%d, 0x%x" % (sT, sT, OX))
    a("v_lshl_add_u32 v%d, v%d, 4, s%d" % (vAd[8], vT[3], sT))
    a("s_mov_b32 s%d, 0x20000" % (sR1_+3)); a("s_mov_b32 s%d, 0x20000" % (sR2_+3))
    lC, lD, lJ = g.newlab("L_setC"), g.newlab("L_setD"), g.newlab("L_setJ")
    a("s_cmp_ge_u32 s%d, 30" % sS); a("s_cbranch_scc1 " + lD)
    a("s_cmp_ge_u32 s%d, 16" % sS); a("s_cbranch_scc1 " + lC)
    a("s_lshl_b32 s%d, s%d, 1" % (sT, sG)); a("s_add_u32 s%d, s%d, s%d" % (sCI, sT, sKB))
    for b in (sR1_, sR2_): a("s_mov_b64 %s, %s" % (sp(b), sp(sWOp))); a("s_mov_b32 s%d, 0x400000" % (b+2))
    a("s_mov_b32 s%d, 8192" % sWST); a("s_mov_b32 s%d, 32768" % sWH)
    a("s_lshl_b32 s%d, s%d, 18" % (sT, sCI)); a("s_lshl_b32 s%d, s%d, 16" % (sT2, sW)); a("s_add_u32 s%d, s%d, s%d" % (sT, sT, sT2)); a("s_lshl_b32 s%d, s%d, 7" % (sT2, sCB)); a("s_add_u32 s%d, s%d, s%d" % (sT, sT, sT2))
    a("v_lshl_add_u32 v%d, v%d, 10, v%d" % (vAd[5], vT[4], vT[6])); a("v_add_u32 v%d, s%d, v%d" % (vAd[5], sT, vAd[5]))
    a("s_lshl_b32 s%d, s%d, 11" % (sT, sCI)); a("s_lshl_b32 s%d, s%d, 8" % (sT2, sCB)); a("s_add_u32 s%d, s%d, s%d" % (sT, sT, sT2)); a("s_lshl_b32 s%d, s%d, 6" % (sT2, sW)); a("s_add_u32 s%d, s%d, s%d" % (sT, sT, sT2)); a("s_add_u32 s%d, s%d, 0x%x" % (sT, sT, AX))
    a("v_lshl_add_u32 v%d, v%d, 4, s%d" % (vT[7], vT[3], sT)); a("v_cmp_gt_u32 vcc, 4, v%d" % vT[3]); a("v_mov_b32 v%d, 0x%x" % (vT[8], OOB)); nop(1)
    a("v_cndmask_b32 v%d, v%d, v%d, vcc" % (vT[7], vT[8], vT[7]))
    a("s_branch " + lJ)
    g.lab(lC)
    a("s_mov_b64 %s, %s" % (sp(sR1_), sp(sWGp))); a("s_mov_b64 %s, %s" % (sp(sR2_), sp(sWUp)))
    for b in (sR1_, sR2_): a("s_mov_b32 s%d, %d" % (b+2, 512*3584))
    a("s_mov_b32 s%d, %d" % (sWST, 32*3584)); a("s_mov_b32 s%d, 0" % sWH)
    a("v_lshrrev_b32 v%d, 1, v%d" % (vT[7], vL)); a("v_mul_u32_u24 v%d, 3584, v%d" % (vT[7], vT[7])); a("v_lshl_add_u32 v%d, v%d, 4, v%d" % (vT[7], vT[5], vT[7]))
    a("s_mul_i32 s%d, s%d, %d" % (sT, sW, 128*3584)); a("s_lshl_b32 s%d, s%d, 5" % (sT2, sCI)); a("s_add_u32 s%d, s%d, s%d" % (sT, sT, sT2)); a("v_add_u32 v%d, s%d, v%d" % (vAd[5], sT, vT[7]))
    a("s_lshl_b32 s%d, s%d, 11" % (sT, sCI)); a("s_lshl_b32 s%d, s%d, 9" % (sT2, sW)); a("s_add_u32 s%d, s%d, s%d" % (sT, sT, sT2)); a("s_add_u32 s%d, s%d, 0x%x" % (sT, sT, DX))
    a("v_lshl_add_u32 v%d, v%d, 4, s%d" % (vT[7], vT[3], sT))
    a("s_branch " + lJ)
    g.lab(lD)
    a("s_lshl_b32 s%d, s%d, 1" % (sCI, sG)); a("s_add_u32 s%d, s%d, s%d" % (sCI, sCI, sS)); a("s_sub_u32 s%d, s%d, 30" % (sCI, sCI))
    for b in (sR1_, sR2_): a("s_mov_b64 %s, %s" % (sp(b), sp(sWOp))); a("s_mov_b32 s%d, 0" % (b+2))
    a("s_mov_b32 s%d, 0" % sWST); a("s_mov_b32 s%d, 0" % sWH)
    a("v_mov_b32 v%d, 0" % vAd[5]); a("v_mov_b32 v%d, 0x%x" % (vT[7], OOB))
    g.lab(lJ)
    a("v_cmp_gt_u32 vcc, 32, v%d" % vL)
    a("s_lshl_b32 s%d, s%d, 13" % (sT, sG)); a("s_lshl_b32 s%d, s%d, 8" % (sT2, sS)); a("s_add_u32 s%d, s%d, s%d" % (sT, sT, sT2)); a("s_add_u32 s%d, s%d, 0x%x" % (sT, sT, QX))
    a("v_cndmask_b32 v%d, v%d, v%d, vcc" % (vT[7], vT[7], vAd[8]))
    if "clr" not in abl: g.vm("buffer_store_dwordx4 %s, v%d, %s, 0 offen sc1" % (r(vSen, 4), vT[7], srd(sWS)), "clr0")
    a("v_lshl_add_u32 v%d, v%d, 2, s%d" % (vAd[9], vL, sT))
    a("s_lshl_b32 s%d, s%d, 6" % (sT2, sW)); a("s_add_u32 s%d, s%d, s%d" % (sT, sT, sT2)); a("v_lshl_add_u32 v%d, v%d, 4, s%d" % (vT[8], vL, sT))
    wg_lin(sT); a("s_lshl_b32 s%d, s%d, 5" % (sT, sT)); a("s_add_u32 s%d, s%d, %d" % (sT, sT, SX - 64 + (1 << 32) if SX < 64 else SX - 64))
    a("v_lshl_add_u32 v%d, v%d, 4, s%d" % (vT[9], vL, sT)); a("v_cmp_gt_u32 vcc, 4, v%d" % vL); nop(2)
    a("v_cndmask_b32 v%d, v%d, v%d, vcc" % (vT[8], vT[9], vT[8]))
    a("s_mov_b64 exec, 63")
    if "clr" not in abl: g.vm("buffer_store_dwordx4 %s, v%d, %s, 0 offen sc1" % (r(vSen, 4), vT[8], srd(sWS)), "clr1")
    a("s_mov_b64 exec, -1")
    for n in range(K0, D0): issue(n)
    g.vm("buffer_load_dwordx2 %s, v%d, %s, 0 offen" % (r(vXr, 2), vAd[1], srd(sX)), "x")
    a("s_lshl_b32 s%d, s%d, 12" % (sT, sW))
    for i in range(4):
        a("s_add_u32 m0, s%d, %d" % (sT, LWQ + i*1024)); a("s_mov_b32 s%d, %d" % (sT2, i*65536))
        if "wq" not in abl: g.vm("buffer_load_dwordx4 v%d, %s, s%d offen %s lds" % (vAd[2], srd(sWQ), sT2, wpol), "wq%d" % i)
    a("s_mov_b32 s%d, 0x%x" % (sL2E, LOG2E)); a("s_mov_b32 s%d, 0x%x" % (sSC, SCALE))
    for m, bit in ((sB0, 1), (sB1, 2), (sR1, 16), (sR2, 32)):
        a("v_and_b32 v%d, %d, v%d" % (vT[0], bit, vL)); a("v_cmp_ne_u32 %s, 0, v%d" % (sp(m), vT[0]))
    a("v_mov_b32 v%d, 0xffff" % vT[0]); a("v_mov_b32 v%d, 0xffff0000" % vT[1])
    cnd(vT[0], "v%d" % vT[0], "v%d" % vT[1], sp(sB0)); cnd(vM0, "v%d" % vT[0], "0", sp(sB1)); cnd(vM1, "0", "v%d" % vT[0], sp(sB1))
    for i in range(8): a("v_mov_b32 v%d, 0" % (vO + i))

    work = {}
    def at(n, f): work.setdefault(n, []).append(f)

    def c_ln1():
        g.wait("wq3")
        stamp("x0in")
        unpack4(vX, vXr)
        t0, t1 = vT[0], vT[1]
        a("v_add_f32 v%d, v%d, v%d" % (t0, vX, vX+1)); a("v_add_f32 v%d, v%d, v%d" % (t1, vX+2, vX+3)); a("v_add_f32 v%d, v%d, v%d" % (t0, t0, t1))
        red32(t0, t1)
        a("v_mul_f32 v%d, 0x3c000000, v%d" % (vT[4], t0))
        for e in range(4): a("v_sub_f32 v%d, v%d, v%d" % (vT[6+e], vX+e, vT[4]))
        a("v_mul_f32 v%d, v%d, v%d" % (vT[5], vT[6], vT[6]))
        for e in range(1, 4): a("v_fmac_f32 v%d, v%d, v%d" % (vT[5], vT[6+e], vT[6+e]))
        red32(vT[5], t1)
        a("s_lshl_b32 s%d, s%d, 3" % (sT, sW)); a("s_add_u32 s%d, s%d, %d" % (sT, sT, LST)); a("v_mov_b32 v%d, s%d" % (vT[2], sT))
        a("s_mov_b64 exec, 1"); a("ds_write_b64 v%d, %s" % (vT[2], r(vT[4], 2))); a("s_mov_b64 exec, -1")
        a("s_lshl_b32 s%d, s%d, 12" % (sT, sW)); a("v_lshrrev_b32 v%d, 5, v%d" % (vT[0], vL)); a("v_lshlrev_b32 v%d, 10, v%d" % (vT[0], vT[0]))
        a("v_and_b32 v%d, 31, v%d" % (vT[1], vL)); a("v_lshl_add_u32 v%d, v%d, 3, v%d" % (vT[0], vT[1], vT[0])); a("v_add_u32 v%d, s%d, v%d" % (vT[3], sT, vT[0]))
        for c in range(4):
            for rr in range(2): a("ds_read_b64_tr_b16 %s, v%d offset:%d" % (r(vW + 4*c + 2*rr, 2), vT[3], LWQ + 2*rr*1024 + c*256))
        a("s_waitcnt lgkmcnt(0)"); a("s_barrier")
    def c_sig():
        g.wait("clr1"); a("s_barrier")
        l2 = g.newlab("L_nosig")
        a("s_cmp_lg_u32 s%d, 3" % sW); a("s_cbranch_scc1 " + l2)
        a("s_and_b32 s%d, s2, 63" % sT); a("s_lshl_b32 s%d, s%d, 2" % (sT, sT)); a("v_mov_b32 v%d, s%d" % (vT[0], sT)); a("v_mov_b32 v%d, 1" % vT[1])
        a("s_mov_b64 exec, 1"); a("buffer_atomic_add v%d, v%d, %s, 0 offen sc1" % (vT[1], vT[0], srd(sDBG))); a("s_mov_b64 exec, -1")
        g.lab(l2)
    def c_ln2():
        a("v_mov_b32 v%d, %d" % (vT[2], LST))
        a("ds_read_b128 %s, v%d" % (r(vD, 4), vT[2])); a("ds_read_b128 %s, v%d offset:16" % (r(vD+4, 4), vT[2]))
        a("s_waitcnt lgkmcnt(0)")
        m = [vD, vD+2, vD+4, vD+6]; q2 = [vD+1, vD+3, vD+5, vD+7]
        a("v_add_f32 v%d, v%d, v%d" % (vT[0], m[0], m[1])); a("v_add_f32 v%d, v%d, v%d" % (vT[1], m[2], m[3])); a("v_add_f32 v%d, v%d, v%d" % (vT[0], vT[0], vT[1]))
        a("v_mul_f32 v%d, 0x3e800000, v%d" % (vT[0], vT[0]))
        a("v_add_f32 v%d, v%d, v%d" % (vT[2], q2[0], q2[1])); a("v_add_f32 v%d, v%d, v%d" % (vT[3], q2[2], q2[3]))
        for e in range(4): a("v_sub_f32 v%d, v%d, v%d" % (m[e], m[e], vT[0]))
        a("v_add_f32 v%d, v%d, v%d" % (vT[2], vT[2], vT[3]))
        a("v_mul_f32 v%d, v%d, v%d" % (vT[3], m[0], m[0]))
        for e in range(1, 4): a("v_fmac_f32 v%d, v%d, v%d" % (vT[3], m[e], m[e]))
        a("v_fmac_f32 v%d, 0x43000000, v%d" % (vT[2], vT[3])); a("v_mul_f32 v%d, 0x3b000000, v%d" % (vT[2], vT[2]))
        rbf2(vT[0], vT[2], vT[0], vT[2], vT[1])
        a("v_add_f32 v%d, 0x%x, v%d" % (vT[2], EPS, vT[2]))
        for e in range(4): a("v_sub_f32 v%d, v%d, v%d" % (vT[6+e], vX+e, vT[0]))
        rbf(vT[2], vT[2]); a("v_sqrt_f32 v%d, v%d" % (vT[2], vT[2]))
        rbf2(vT[6], vT[7], vT[6], vT[7], vT[1])
        rbf(vT[2], vT[2]); a("v_rcp_f32 v%d, v%d" % (vT[2], vT[2]))
        rbf2(vT[8], vT[9], vT[8], vT[9], vT[1])
        for e in range(4): a("v_mul_f32 v%d, v%d, v%d" % (vT[6+e], vT[6+e], vT[2]))
        a("v_cvt_pk_bf16_f32 v%d, v%d, v%d" % (vT[4], vT[6], vT[7])); a("v_cvt_pk_bf16_f32 v%d, v%d, v%d" % (vT[5], vT[8], vT[9]))
        a("ds_write_b64 v%d, %s offset:%d" % (vAd[1], r(vT[4], 2), LACT))
        a("s_lshl_b32 s%d, s%d, 2" % (sT, sKB)); a("s_add_u32 s%d, s%d, s%d" % (sT, sT, sW)); a("s_lshl_b32 s%d, s%d, 6" % (sT, sT)); a("s_add_u32 s%d, s%d, %d" % (sT, sT, LACT))
        a("v_lshrrev_b32 v%d, 4, v%d" % (vT[1], vL)); a("v_lshl_add_u32 v%d, v%d, 3, s%d" % (vT[11], vT[1], sT))
        a("s_waitcnt lgkmcnt(0)"); a("s_barrier")
        a("ds_read2_b64 %s, v%d offset0:0 offset1:4" % (r(vA, 4), vT[11]))
    def sel_tile(d, b):
        cnd(d, "v%d" % b, "v%d" % (b+4), sp(sR1)); cnd(vT[1], "v%d" % (b+8), "v%d" % (b+12), sp(sR1)); cnd(d, "v%d" % d, "v%d" % vT[1], sp(sR2))
    def c_q():
        a("s_lshl_b32 s%d, s%d, 2" % (sT, sW)); a("v_lshl_add_u32 v%d, v%d, 4, s%d" % (vT[9], vL, sT))
        a("s_waitcnt lgkmcnt(0)")
        for c in range(4): a("v_mfma_f32_16x16x32_bf16 %s, %s, %s, 0" % (r(vD + 4*c, 4), r(vA, 4), r(vW + 4*c, 4)))
        nop(8)
        sel_tile(vT[0], vD)
        a("ds_write_b32 v%d, v%d offset:%d" % (vT[9], vT[0], LRED))
        a("s_waitcnt lgkmcnt(0)"); a("s_barrier")
        l2 = g.newlab("L_noq")
        a("s_cmp_lg_u32 s%d, 0" % sW); a("s_cbranch_scc1 " + l2)
        a("v_lshlrev_b32 v%d, 4, v%d" % (vT[0], vL)); a("ds_read_b128 %s, v%d offset:%d" % (r(vD, 4), vT[0], LRED)); a("s_waitcnt lgkmcnt(0)")
        sum4(vD)
        a("buffer_store_dword v%d, v%d, %s, 0 offen sc1" % (vD, vAd[9], srd(sWS)))
        g.lab(l2)
        stamp("qpub")
    if 'sig' not in abl: at(max(D0, K0 + D), c_sig)
    if 'x0' not in abl: at(n_x0, c_ln1); at(n_x0+1, c_ln2); at(n_x0+2, c_q)
    else: at(n_x0, lambda: stamp('x0in')); at(n_x0+2, lambda: stamp('qpub'))

    def retry(check, reload):
        if "poll" in abl: return
        lp, ok = g.newlab("L_retry"), g.newlab("L_ok")
        check()
        a("s_cbranch_vccz " + ok)
        a("s_mov_b32 s%d, 0" % sCNT)
        g.lab(lp)
        a("s_mov_b64 exec, vcc")
        reload()
        a("s_mov_b64 exec, -1")
        a("s_waitcnt vmcnt(0)")
        check()
        a("s_add_u32 s%d, s%d, 1" % (sCNT, sCNT)); a("s_cmp_ge_u32 s%d, %d" % (sCNT, spin)); a("s_cbranch_scc1 " + ok)
        a("s_cbranch_vccnz " + lp)
        g.lab(ok)
    def chk_sen(base, n):
        def f():
            t = vT[0]
            if n == 4:
                a("v_max3_u32 v%d, v%d, v%d, v%d" % (t, base, base+1, base+2)); a("v_max_u32 v%d, v%d, v%d" % (t, t, base+3))
            else:
                t2 = vT[1]; h = n//2
                a("v_max_u32 v%d, v%d, v%d" % (t, base, base+1)); a("v_max_u32 v%d, v%d, v%d" % (t2, base+h, base+h+1))
                for i in range(2, h, 2):
                    a("v_max3_u32 v%d, v%d, v%d, v%d" % (t, t, base+i, base+i+1)); a("v_max3_u32 v%d, v%d, v%d, v%d" % (t2, t2, base+h+i, base+h+i+1))
                a("v_max_u32 v%d, v%d, v%d" % (t, t, t2))
            a("v_cmp_eq_u32 vcc, -1, v%d" % t)
        return f
    MK = [8, 10, 12, 14, 24, 26, 48, 50]
    def gather(n, addr, offs, pre=None):
        def ld(i):
            so, io = offs[i] & ~0xfff, offs[i] & 0xfff
            a("s_mov_b32 s%d, 0x%x" % (sT2, so))
            return "buffer_load_dwordx4 %s, v%d, %s, s%d offen offset:%d sc1" % (r(vG + 4*i, 4), addr, srd(sWS), sT2, io)
        for i in range(n): g.vm(ld(i), "g%d" % i)
        if pre: pre()
        if retry_mode == "union":
            g.waitall()
            retry(chk_sen(vG, 4*n), lambda: [a(ld(i)) for i in range(n)])
            return
        lp, ok = g.newlab("L_retry"), g.newlab("L_ok")
        def chk(i):
            b = vG + 4*i; t = vE + i
            a("v_max3_u32 v%d, v%d, v%d, v%d" % (t, b, b+1, b+2)); a("v_max_u32 v%d, v%d, v%d" % (t, t, b+3)); a("v_cmp_eq_u32 %s, -1, v%d" % (sp(MK[i]), t))
        def anym():
            a("s_or_b64 vcc, %s, %s" % (sp(MK[0]), sp(MK[1])))
            for i in range(2, n): a("s_or_b64 vcc, vcc, %s" % sp(MK[i]))
        for i in range(n):
            g.wait("g%d" % i); chk(i)
        anym(); a("s_cbranch_scc0 " + ok)
        a("s_mov_b32 s%d, 0" % sCNT)
        g.lab(lp)
        if psleep: a("s_sleep %d" % psleep)
        for i in range(n):
            a("s_mov_b64 exec, %s" % sp(MK[i])); a(ld(i))
        a("s_mov_b64 exec, -1")
        a("s_add_u32 s%d, s%d, 1" % (sCNT, sCNT)); a("s_cmp_ge_u32 s%d, %d" % (sCNT, spin))
        a("s_waitcnt vmcnt(0)")
        a("s_cbranch_scc1 " + ok)
        for i in range(n): chk(i)
        anym(); a("s_cbranch_scc1 " + lp)
        g.lab(ok)
    def sum_g(n):
        st = 1
        while st < n:
            for i in range(0, n, 2*st):
                if i + st < n:
                    for h in range(2): a("v_pk_add_f32 %s, %s, %s" % (r(vG+4*i+2*h, 2), r(vG+4*i+2*h, 2), r(vG+4*(i+st)+2*h, 2)))
            st *= 2
    G4 = [vG+i for i in range(4)]; G4b = [vG+4+i for i in range(4)]

    ld_cnt = lambda: "buffer_load_dword v%d, v%d, %s, 0 offen sc1" % (vCn, vAd[3], srd(sDBG))
    def c_cnt():
        a("v_lshlrev_b32 v%d, 2, v%d" % (vAd[3], vL)); g.vm(ld_cnt(), "cnt")
    def ld_q(emit):
        for i in range(2): emit("buffer_load_dwordx4 %s, v%d, %s, s%d offen sc1" % (r(vG + 4*i, 4), vAd[6], srd(sWS), sT2 if i == 0 else sT), "q%d" % i)
    def q_base():
        a("s_lshl_b32 s%d, s%d, 13" % (sT2, sG)); a("s_add_u32 s%d, s%d, 0x%x" % (sT2, sT2, QX)); a("s_add_u32 s%d, s%d, 4096" % (sT, sT2))
    def c_qld():
        g.wait("cnt")
        retry(lambda: a("v_cmp_gt_u32 vcc, 4, v%d" % vCn), lambda: a(ld_cnt()))
        a("s_lshl_b32 s%d, s%d, 9" % (sT, sW)); a("v_lshrrev_b32 v%d, 5, v%d" % (vT[0], vL)); a("v_and_b32 v%d, 31, v%d" % (vT[1], vL))
        a("v_lshlrev_b32 v%d, 11, v%d" % (vT[0], vT[0])); a("v_lshl_add_u32 v%d, v%d, 4, v%d" % (vT[0], vT[1], vT[0])); a("v_add_u32 v%d, s%d, v%d" % (vAd[6], sT, vT[0]))
        q_base(); ld_q(g.vm)
    def c_qchk():
        g.wait("q1"); q_base()
        retry(chk_sen(vG, 8), lambda: ld_q(lambda t, tag: a(t)))
        sum_g(2); red_swap_n("v_add_f32", G4, G4b, 32)
        a("v_cvt_pk_bf16_f32 v%d, v%d, v%d" % (vT[4], vG, vG+1)); a("v_cvt_pk_bf16_f32 v%d, v%d, v%d" % (vT[5], vG+2, vG+3))
        a("ds_write_b64 v%d, %s offset:%d" % (vAd[1], r(vT[4], 2), LQ))
        a("s_waitcnt lgkmcnt(0)"); a("s_barrier")
        a("ds_read_b128 %s, v%d offset:%d" % (r(vQ, 4), vAd[0], LQ)); a("s_waitcnt lgkmcnt(0)")
        stamp("qok")
    if 'qg' not in abl: at(n_cnt, c_cnt); at(n_q, c_qld); at(n_qk, c_qchk)
    else: at(n_qk, lambda: stamp('qok'))

    def qk_step(T):
        def f():
            g.wait("n%d" % (4*T + 3))
            for u in range(4):
                a("v_mfma_f32_16x16x32_bf16 %s, %s, %s, 0" % (r(vD + 4*u, 4), ar(16*T + 4*u, 4), r(vQ, 4)))
            nop(8)
            Dv = lambda u, j: vD + 4*u + j
            for rr in (3, 2, 1, 0):
                X = [Dv(aa ^ rr, aa) for aa in range(4)]
                cnd(vT[4], "v%d" % X[0], "v%d" % X[1], sp(sB0)); cnd(vT[5], "v%d" % X[2], "v%d" % X[3], sp(sB0)); cnd(vT[rr], "v%d" % vT[4], "v%d" % vT[5], sp(sB1))
            dpp("v_add_f32", vT[2], vT[3], vT[2], "quad_perm:[1,0,3,2]"); nop(1)
            dpp("v_add_f32", vT[0], vT[1], vT[0], "quad_perm:[1,0,3,2]"); nop(2)
            dpp("v_add_f32", vT[0], vT[2], vT[0], "quad_perm:[2,3,0,1]")
            rbf(vT[0], vT[0]); a("v_mul_f32 v%d, s%d, v%d" % (vT[0], sSC, vT[0])); rbf(vS + T, vT[0])
        return f
    nq = n_qk + 1
    for T in range(16):
        nq = max(nq, 4*T + 3 + D)
        assert nq < 64 + 4*T
        if 'qk' not in abl: at(nq, qk_step(T))
        nq += 1
    n_st = nq

    def red_hs(op, x, t):
        red_quad(op, x); red_swap(op, x, t, 16); red_swap(op, x, t, 32)
    def c_stat1():
        stamp("qkdone")
        a("v_max3_f32 v%d, v%d, v%d, v%d" % (vMx, vS, vS+1, vS+2))
        for i in range(3, 15, 2): a("v_max3_f32 v%d, v%d, v%d, v%d" % (vMx, vMx, vS+i, vS+i+1))
        a("v_max_f32 v%d, v%d, v%d" % (vMx, vMx, vS+15))
        red_hs("v_max_f32", vMx, vT[0])
    def c_stat2():
        for i in range(16): expsub(vD + i, vS + i, vMx)
        nop(1)
        for st in (8, 4, 2, 1):
            for i in range(st): a("v_add_f32 v%d, v%d, v%d" % (vD+i, vD+i, vD+i+st))
        red_hs("v_add_f32", vD, vT[0])
        a("v_mov_b32 v%d, v%d" % (vT[4], vMx)); a("v_mov_b32 v%d, v%d" % (vT[5], vD))
        a("v_bfe_u32 v%d, v%d, 2, 2" % (vT[0], vL)); a("s_lshl_b32 s%d, s%d, 3" % (sT, sW)); a("s_add_u32 s%d, s%d, %d" % (sT, sT, LS2))
        a("v_lshl_add_u32 v%d, v%d, 5, s%d" % (vT[1], vT[0], sT))
        a("s_mov_b64 exec, 0x1111"); a("ds_write_b64 v%d, %s" % (vT[1], r(vT[4], 2))); a("s_mov_b64 exec, -1")
        a("s_waitcnt lgkmcnt(0)"); a("s_barrier")
        l2 = g.newlab("L_nost")
        a("s_cmp_lg_u32 s%d, 0" % sW); a("s_cbranch_scc1 " + l2)
        a("s_mov_b64 exec, 0x1111")
        a("v_lshlrev_b32 v%d, 5, v%d" % (vT[1], vT[0]))
        a("ds_read_b128 %s, v%d offset:%d" % (r(vD, 4), vT[1], LS2)); a("ds_read_b128 %s, v%d offset:%d" % (r(vD+4, 4), vT[1], LS2+16))
        wg_lin(sT); a("s_lshl_b32 s%d, s%d, 5" % (sT, sT)); a("s_add_u32 s%d, s%d, 0x%x" % (sT, sT, SX))
        a("v_lshlrev_b32 v%d, 3, v%d" % (vT[1], vT[0]))
        a("s_waitcnt lgkmcnt(0)")
        a("v_max3_f32 v%d, v%d, v%d, v%d" % (vT[4], vD, vD+2, vD+4)); a("v_max_f32 v%d, v%d, v%d" % (vT[4], vT[4], vD+6))
        for i in range(4): expsub(vD + 2*i, vD + 2*i, vT[4])
        nop(1)
        a("v_mul_f32 v%d, v%d, v%d" % (vT[5], vD, vD+1))
        for i in range(1, 4): a("v_fmac_f32 v%d, v%d, v%d" % (vT[5], vD+2*i, vD+2*i+1))
        a("buffer_store_dwordx2 %s, v%d, %s, s%d offen sc1" % (r(vT[4], 2), vT[1], srd(sWS), sT))
        a("s_mov_b64 exec, -1")
        g.lab(l2)
        stamp("spub")
    if 'stat' not in abl: at(n_st, c_stat1); at(n_st+1, c_stat2)
    else: at(n_st, lambda: stamp('qkdone')); at(n_st+1, lambda: stamp('spub'))
    assert n_sg > n_st + 1
    def ld_sg(emit):
        emit("buffer_load_dwordx2 %s, v%d, %s, s%d offen sc1" % (r(vSG, 2), vAd[4], srd(sWS), sT2), "sg0")
        emit("buffer_load_dwordx2 %s, v%d, %s, s%d offen offset:512 sc1" % (r(vSG+2, 2), vAd[4], srd(sWS), sT2), "sg1")
    def sg_base(): a("s_lshl_b32 s%d, s%d, 10" % (sT2, sG)); a("s_add_u32 s%d, s%d, 0x%x" % (sT2, sT2, SX))
    def c_sg():
        a("v_lshrrev_b32 v%d, 4, v%d" % (vT[0], vL)); a("v_and_b32 v%d, 3, v%d" % (vT[1], vL)); a("v_lshl_add_u32 v%d, v%d, 2, v%d" % (vT[0], vT[0], vT[1]))
        a("v_bfe_u32 v%d, v%d, 2, 2" % (vT[1], vL)); a("v_lshlrev_b32 v%d, 3, v%d" % (vT[1], vT[1])); a("v_lshl_add_u32 v%d, v%d, 5, v%d" % (vAd[4], vT[0], vT[1]))
        sg_base(); ld_sg(g.vm)
    def c_p():
        g.wait("sg1"); sg_base()
        retry(chk_sen(vSG, 4), lambda: ld_sg(lambda t, tag: a(t)))
        stamp("sgok")
        a("v_max_f32 v%d, v%d, v%d" % (vMx, vSG, vSG+2)); red_hs("v_max_f32", vMx, vT[0])
        expsub(vSG, vSG, vMx); expsub(vSG+2, vSG+2, vMx); nop(1)
        a("v_mul_f32 v%d, v%d, v%d" % (vRl, vSG, vSG+1)); a("v_fmac_f32 v%d, v%d, v%d" % (vRl, vSG+2, vSG+3))
        red_hs("v_add_f32", vRl, vT[0]); a("v_rcp_f32 v%d, v%d" % (vRl, vRl))
    def c_p2():
        for i in range(16): expsub(vS + i, vS + i, vMx)
        nop(1)
        for i in range(16): a("v_mul_f32 v%d, v%d, v%d" % (vS+i, vS+i, vRl))
        for i in range(16): a("v_cvt_pk_bf16_f32 v%d, v%d, v%d" % (vS+i, vS+i, vS+i))
        nop(2)
    if 'stat' not in abl: at(n_sg, c_sg); at(n_pv, c_p); at(n_pv+1, c_p2)
    else: at(n_pv, lambda: stamp('sgok'))

    pvn = [0]
    def pv_prep(j):
        if "pv" in abl: return
        T, u = divmod(j, 4); tp = vTP + 2*(j % 4)
        ctl = "quad_perm:[%d,%d,%d,%d]" % (u, u, u, u)
        dpp("v_and_b32", tp, vS + T, vM0, ctl); dpp("v_and_b32", tp+1, vS + T, vM1, ctl)
    def pv_mma(j):
        if "pv" in abl: return
        tp = vTP + 2*(j % 4)
        a("v_mfma_f32_16x16x16_bf16 %s, %s, %s, %s" % (r(vO, 4), r(tp, 2), ar(4*j, 2), r(vO, 4)))
        a("v_mfma_f32_16x16x16_bf16 %s, %s, %s, %s" % (r(vO+4, 4), r(tp, 2), ar(4*j+2, 2), r(vO+4, 4)))
    def pv_upto(jmax):
        while pvn[0] < jmax:
            j = pvn[0]
            if j == 0: pv_prep(0)
            if j + 1 < 64: pv_prep(j + 1)
            else: nop(1)
            g.wait("n%d" % (64 + j))
            pv_mma(j); pvn[0] += 1
    for n in range(n_pv + 2, 128):
        at(n, (lambda n: lambda: pv_upto(min(pvn[0] + pv_rate, n - D - 64 + 1)))(n))

    def w_load(i):
        def f():
            a("s_lshl_b32 s%d, s%d, 13" % (sT, sW)); a("s_add_u32 m0, s%d, %d" % (sT, LW + i*1024))
            a("s_mul_i32 s%d, s%d, %d" % (sT2, sWST, i & 3))
            if i >= 4: a("s_add_u32 s%d, s%d, s%d" % (sT2, sT2, sWH))
            g.vm("buffer_load_dwordx4 v%d, %s, s%d offen %s lds" % (vAd[5], srd(sR1_ if i < 4 else sR2_), sT2, wpol), "w%d" % i)
        return f
    def c_pf():
        a("s_cmp_lt_u32 s%d, 2" % sW); a("s_cselect_b64 %s, %s, %s" % (sp(sPF), sp(sWGp), sp(sWUp)))
        a("s_mov_b32 s%d, %d" % (sPF+2, 512*3584)); a("s_mov_b32 s%d, 0x20000" % (sPF+3))
        a("s_lshl_b32 s%d, s%d, 1" % (sT, sS)); a("s_and_b32 s%d, s%d, 1" % (sT2, sW)); a("s_add_u32 s%d, s%d, s%d" % (sT, sT, sT2)); a("s_mul_i32 s%d, s%d, %d" % (sT, sT, 8*3584))
        a("s_mul_i32 s%d, s%d, 448" % (sT2, sG)); a("s_and_b32 s%d, s%d, 0xffffff80" % (sT2, sT2)); a("s_add_u32 s%d, s%d, s%d" % (sT, sT, sT2))
        a("v_lshrrev_b32 v%d, 2, v%d" % (vT[0], vL)); a("v_mul_u32_u24 v%d, 3584, v%d" % (vT[0], vT[0])); a("v_and_b32 v%d, 3, v%d" % (vT[1], vL))
        a("v_lshl_add_u32 v%d, v%d, 7, v%d" % (vT[0], vT[1], vT[0]))
        a("s_mov_b64 exec, 0xffffffff")
        g.vm("buffer_load_dword v%d, v%d, %s, s%d offen %s" % (vCn, vT[0], srd(sPF), sT, pfpol), "pf")
        a("s_mov_b64 exec, -1")
    if n_pf is not None: at(n_pf, c_pf)

    for n in range(D0, 128):
        if n >= D: g.wait("n%d" % (n - D))
        issue(n)
        for f in work.get(n, []): f()
    stamp("lastissue")
    LB, LC, LD = "L_roleB", "L_roleC", "L_roleD"
    if "tail" in abl:
        pv_upto(64); stamp("pvdone"); stamp("opub"); a("s_branch L_fin"); nst[0] -= 2; del stn[-2:]
    a("s_cmp_ge_u32 s%d, 30" % sS); a("s_cbranch_scc1 " + LD)
    a("s_cmp_ge_u32 s%d, 16" % sS); a("s_cbranch_scc1 " + LC)
    q_save = list(g.q); pv_save = pvn[0]; nst_save = nst[0]

    def drain_publish(extra=()):
        a("s_lshl_b32 s%d, s%d, 11" % (sT, sW)); a("v_lshl_add_u32 v%d, v%d, 5, s%d" % (vT[10], vL, sT))
        a("s_lshl_b32 s%d, s%d, 9" % (sT, sW)); a("v_and_b32 v%d, 31, v%d" % (vT[11], vL)); a("v_lshl_add_u32 v%d, v%d, 4, s%d" % (vT[11], vT[11], sT))
        extra = list(extra); k = 0
        while pvn[0] < 64:
            pv_upto(pvn[0] + 1); k += 1
            if extra and k > ex_at and pvn[0] < 64: extra.pop(0)()
        assert not extra or 'tail' in abl
        stamp("pvdone")
        nop(7)
        a("ds_write_b128 v%d, %s offset:%d" % (vT[10], r(vO, 4), LO)); a("ds_write_b128 v%d, %s offset:%d" % (vT[10], r(vO+4, 4), LO + 16))
        a("s_mov_b64 exec, 0xffffffff")
        a("s_waitcnt lgkmcnt(0)"); a("s_barrier")
        for w in range(4): a("ds_read_b128 %s, v%d offset:%d" % (r(vD + 4*w, 4), vT[11], LO + 2048*w))
        a("s_waitcnt lgkmcnt(2)")
        for h in range(2): a("v_pk_add_f32 %s, %s, %s" % (r(vD+2*h, 2), r(vD+2*h, 2), r(vD+4+2*h, 2)))
        a("s_waitcnt lgkmcnt(0)")
        for h in range(2): a("v_pk_add_f32 %s, %s, %s" % (r(vD+8+2*h, 2), r(vD+8+2*h, 2), r(vD+12+2*h, 2)))
        for h in range(2): a("v_pk_add_f32 %s, %s, %s" % (r(vD+2*h, 2), r(vD+2*h, 2), r(vD+8+2*h, 2)))
        a("buffer_store_dwordx4 %s, v%d, %s, 0 offen sc1" % (r(vD, 4), vAd[8], srd(sWS)))
        a("s_mov_b64 exec, -1")
        stamp("opub")
    def finish(role):
        if probe and role in probe[0]:
            ia, ib = stn.index(probe[1]), stn.index(probe[2]); lp = g.newlab("L_probe"); lq = g.newlab("L_noprobe")
            if len(probe) > 4: a("s_and_b32 s%d, s2, %d" % (sT, probe[4])); a("s_cmp_lg_u32 s%d, %d" % (sT, probe[5])); a("s_cbranch_scc1 " + lq)
            a("s_waitcnt lgkmcnt(0)")
            a("s_sub_u32 s%d, s%d, s%d" % (sT, sST + 2*ib, sST + 2*ia)); a("s_mul_i32 s%d, s%d, %d" % (sT, sT, probe[3]))
            a("s_min_u32 s%d, s%d, 100000" % (sT, sT)); a("s_add_u32 s%d, s%d, %d" % (sT, sT, probe_base))
            g.lab(lp)
            a("s_memrealtime s[54:55]"); a("s_waitcnt lgkmcnt(0)"); a("s_sub_u32 s%d, s54, s%d" % (sT2, sST))
            a("s_cmp_lt_u32 s%d, s%d" % (sT2, sT)); a("s_cbranch_scc1 " + lp)
            g.lab(lq)
        if stamps:
            a("s_waitcnt lgkmcnt(0)")
            a("s_lshl_b32 s%d, s2, 2" % sT); a("s_add_u32 s%d, s%d, s%d" % (sT, sT, sW)); a("s_lshl_b32 s%d, s%d, 6" % (sT, sT)); a("s_add_u32 s%d, s%d, 0x%x" % (sT, sT, STAMP))
            a("s_mov_b64 exec, 1"); a("v_mov_b32 v%d, s%d" % (vT[0], sT))
            for i in range(16):
                a("v_mov_b32 v%d, %s" % (vG + i, ("s%d" % (sST + 2*i)) if i < nst[0] else "0"))
            for i in range(4): a("buffer_store_dwordx4 %s, v%d, %s, 0 offen offset:%d" % (r(vG+4*i, 4), vT[0], srd(sWS), 16*i))
        a("s_endpgm")
    def attn_to_hpk(x, p):
        red_swap_n("v_add_f32", G4, G4b, 32)
        rbf2(vG, vG+1, vG, vG+1, vT[0]); rbf2(vG+2, vG+3, vG+2, vG+3, vT[1])
        for h in range(2): a("v_pk_add_f32 %s, %s, %s" % (r(vG+2*h, 2), r(vG+2*h, 2), r(x+2*h, 2)))
        a("v_cvt_pk_bf16_f32 v%d, v%d, v%d" % (p, vG, vG+1)); a("v_cvt_pk_bf16_f32 v%d, v%d, v%d" % (p+1, vG+2, vG+3))

    g.lab(LB)
    a("s_lshl_b32 s%d, s%d, 16" % (sT, sG)); a("s_lshl_b32 s%d, s%d, 10" % (sT2, sKB)); a("s_add_u32 s%d, s%d, s%d" % (sT, sT, sT2))
    a("s_lshl_b32 s%d, s%d, 8" % (sT2, sW)); a("s_add_u32 s%d, s%d, s%d" % (sT, sT, sT2))
    a("v_lshrrev_b32 v%d, 4, v%d" % (vT[2], vL)); a("v_and_b32 v%d, 15, v%d" % (vT[4], vL))
    a("v_lshlrev_b32 v%d, 11, v%d" % (vT[0], vT[2])); a("v_lshl_add_u32 v%d, v%d, 4, v%d" % (vT[0], vT[4], vT[0])); a("v_add_u32 v%d, s%d, v%d" % (vAd[6], sT, vT[0]))
    a("s_lshl_b32 s%d, s%d, 13" % (sT, sW))
    a("v_lshrrev_b32 v%d, 5, v%d" % (vT[0], vL)); a("v_lshlrev_b32 v%d, 10, v%d" % (vT[0], vT[0]))
    a("v_and_b32 v%d, 31, v%d" % (vT[1], vL)); a("v_lshl_add_u32 v%d, v%d, 3, v%d" % (vT[0], vT[1], vT[0])); a("v_add_u32 v%d, s%d, v%d" % (vT[3], sT, vT[0]))
    a("s_lshl_b32 s%d, s%d, 8" % (sT, sW)); a("v_lshl_add_u32 v%d, v%d, 3, s%d" % (vAd[2], vT[4], sT))
    a("s_add_u32 s%d, s%d, %d" % (sT, sT, LACT2)); a("v_lshl_add_u32 v%d, v%d, 3, s%d" % (vAd[3], vT[2], sT))
    a("s_lshl_b32 s%d, s%d, 2" % (sT, sW)); a("v_lshl_add_u32 v%d, v%d, 4, s%d" % (vAd[4], vL, sT))
    a("s_lshl_b32 s%d, s%d, 11" % (sT, sCI)); a("s_lshl_b32 s%d, s%d, 8" % (sT2, sCB)); a("s_add_u32 s%d, s%d, s%d" % (sT, sT, sT2)); a("s_add_u32 s%d, s%d, 0x%x" % (sT, sT, AX))
    a("v_lshl_add_u32 v%d, v%d, 2, s%d" % (vAd[7], vL, sT)); a("v_lshlrev_b32 v%d, 4, v%d" % (vAd[9], vL))
    if D > 8 + ex_at: drain_publish([w_load(i) for i in range(8)])
    else:
        for i in range(9 + ex_at - D): w_load(i)()
        drain_publish([w_load(i) for i in range(9 + ex_at - D, 8)])
    def b_pre():
        g.wait("w7")
        for ks in range(2):
            for c in range(4):
                for rr in range(2):
                    a("ds_read_b64_tr_b16 %s, v%d offset:%d" % (r(vW + 16*ks + 4*c + 2*rr, 2), vT[3], LW + (4*ks + 2*rr)*1024 + c*256))
    gather(8, vAd[6], [OX + 4*i*2048 for i in range(8)], b_pre)
    stamp("x1ok")
    sum_g(8)
    red_swap_n("v_add_f32", G4, G4b, 16); red_swap_n("v_add_f32", G4, G4b, 32)
    a("v_cvt_pk_bf16_f32 v%d, v%d, v%d" % (vT[4], vG, vG+1)); a("v_cvt_pk_bf16_f32 v%d, v%d, v%d" % (vT[5], vG+2, vG+3))
    a("ds_write_b64 v%d, %s offset:%d" % (vAd[2], r(vT[4], 2), LACT2))
    for ks in range(2): a("ds_read2_b64 %s, v%d offset0:%d offset1:%d" % (r(vA + 4*ks, 4), vAd[3], ks*8, ks*8 + 4))
    for ks in range(2):
        a("s_waitcnt lgkmcnt(%d)" % (1 - ks))
        for c in range(4):
            a("v_mfma_f32_16x16x32_bf16 %s, %s, %s, %s" % (r(vD + 4*c, 4), r(vA + 4*ks, 4), r(vW + 16*ks + 4*c, 4), r(vD + 4*c, 4) if ks else "0"))
    nop(7)
    sel_tile(vT[0], vD)
    a("ds_write_b32 v%d, v%d offset:%d" % (vAd[4], vT[0], LRED2))
    lb = g.newlab("L_bdone")
    a("s_cmp_lg_u32 s%d, 0" % sW)
    a("s_waitcnt lgkmcnt(0)"); a("s_barrier")
    a("s_cbranch_scc1 " + lb)
    a("ds_read_b128 %s, v%d offset:%d" % (r(vD, 4), vAd[9], LRED2)); a("s_waitcnt lgkmcnt(0)")
    sum4(vD)
    a("buffer_store_dword v%d, v%d, %s, 0 offen sc1" % (vD, vAd[7], srd(sWS)))
    g.lab(lb)
    stamp("bpub")
    finish("B")
    stB = list(stn)

    g.lab(LC); g.q = list(q_save); pvn[0] = pv_save; nst[0] = nst_save; del stn[nst_save:]
    a("v_lshrrev_b32 v%d, 4, v%d" % (vT[2], vL)); a("v_and_b32 v%d, 15, v%d" % (vT[4], vL))
    a("s_lshl_b32 s%d, s%d, 14" % (sT, sCI)); a("s_lshl_b32 s%d, s%d, 8" % (sT2, sW)); a("s_add_u32 s%d, s%d, s%d" % (sT, sT, sT2))
    a("v_lshlrev_b32 v%d, 12, v%d" % (vT[0], vT[2])); a("v_lshl_add_u32 v%d, v%d, 4, v%d" % (vT[0], vT[4], vT[0])); a("v_add_u32 v%d, s%d, v%d" % (vAd[7], sT, vT[0]))
    def wd_load(t):
        return lambda: g.vm("buffer_load_dwordx4 %s, v%d, %s, 0 offen offset:%d %s" % (r(vWD + 4*t, 4), vAd[7], srd(sWD), t*1024, wpol), "wd%d" % t)
    drain_publish([wd_load(t) for t in range(4)])
    for i in range(8): w_load(i)()
    a("v_and_b32 v%d, 4, v%d" % (vT[0], vL)); a("v_cmp_ne_u32 vcc, 0, v%d" % vT[0])
    a("s_lshl_b32 s%d, s%d, 13" % (sT, sW)); a("v_lshl_add_u32 v%d, v%d, 3, s%d" % (vT[3], vL, sT))
    cnd(vP, "v%d" % vM0, "0", "vcc"); cnd(vP+1, "v%d" % vM1, "0", "vcc"); cnd(vP+2, "0", "v%d" % vM0, "vcc"); cnd(vP+3, "0", "v%d" % vM1, "vcc")
    a("s_lshl_b32 s%d, s%d, 8" % (sT, sW)); a("s_add_u32 s%d, s%d, %d" % (sT, sT, LACT2)); a("v_lshl_add_u32 v%d, v%d, 3, s%d" % (vAd[3], vT[2], sT))
    a("v_and_b32 v%d, 31, v%d" % (vT[0], vL)); a("s_lshl_b32 s%d, s%d, 2" % (sT, sW)); a("v_lshl_add_u32 v%d, v%d, 4, s%d" % (vAd[4], vT[0], sT))
    a("v_and_b32 v%d, 3, v%d" % (vT[1], vL)); a("v_lshl_add_u32 v%d, v%d, 2, v%d" % (vT[0], vT[2], vT[1])); a("v_lshlrev_b32 v%d, 4, v%d" % (vAd[9], vT[0]))
    a("s_lshl_b32 s%d, s%d, 11" % (sT, sCI)); a("s_lshl_b32 s%d, s%d, 9" % (sT2, sW)); a("s_add_u32 s%d, s%d, s%d" % (sT, sT, sT2)); a("s_add_u32 s%d, s%d, 0x%x" % (sT, sT, DX))
    a("v_bfe_u32 v%d, v%d, 4, 1" % (vT[1], vL)); a("v_lshlrev_b32 v%d, 5, v%d" % (vT[0], vT[4])); a("v_lshl_add_u32 v%d, v%d, 4, v%d" % (vT[0], vT[1], vT[0])); a("v_add_u32 v%d, s%d, v%d" % (vAd[2], sT, vT[0]))
    a("s_lshl_b32 s%d, s%d, 2" % (sT, sW)); a("s_add_u32 s%d, s%d, %d" % (sT, sT, LST2)); a("v_mov_b32 v%d, s%d" % (vAd[0], sT)); a("v_mov_b32 v%d, %d" % (vAd[5], LST2))
    for i in range(4): a("v_mov_b32 v%d, 0x3f803f80" % (vA + i))
    g.wait("w7")
    for mi in range(2):
        for ks in range(4):
            for rr in range(2):
                a("ds_read_b64_tr_b16 %s, v%d offset:%d" % (r(vW + 16*mi + 4*ks + 2*rr, 2), vT[3], LW + mi*4096 + ks*1024 + rr*512))
    a("s_waitcnt lgkmcnt(0)")
    for ks in range(4):
        for mi in range(2):
            a("v_mfma_f32_16x16x32_bf16 %s, %s, %s, %s" % (r(vD + 4*mi, 4), r(vA, 4), r(vW + 16*mi + 4*ks, 4), r(vD + 4*mi, 4) if ks else "0"))
    nop(8)
    cnd(vT[0], "v%d" % vD, "v%d" % (vD+4), sp(sR1))
    a("ds_write_b32 v%d, v%d offset:%d" % (vAd[4], vT[0], LCS)); a("s_waitcnt lgkmcnt(0)"); a("s_barrier")
    a("ds_read_b128 %s, v%d offset:%d" % (r(vD, 4), vAd[9], LCS)); a("ds_read_b128 %s, v%d offset:%d" % (r(vD+4, 4), vAd[9], LCS + 256)); a("s_waitcnt lgkmcnt(0)")
    sum4(vD); sum4(vD+4); a("v_mov_b32 v%d, v%d" % (vCSg, vD)); a("v_mov_b32 v%d, v%d" % (vCSu, vD+4))
    stamp("cwok")
    gather(8, vAd[6], [AX + 2*i*2048 for i in range(8)])
    g.waitall() if g.q else None
    stamp("x2ok")
    sum_g(8); attn_to_hpk(vX, vT[4])
    a("ds_write_b64 v%d, %s offset:%d" % (vAd[1], r(vT[4], 2), LACT2))
    for ks in range(4): a("ds_read2_b64 %s, v%d offset0:%d offset1:%d" % (r(vA + 4*ks, 4), vAd[3], ks*8, ks*8 + 4))
    unpack4(vH, vT[4])
    a("v_pk_mul_f32 %s, %s, %s" % (r(vG, 2), r(vH, 2), r(vH, 2))); a("v_pk_add_f32 %s, %s, %s" % (r(vG+2, 2), r(vH, 2), r(vH+2, 2)))
    a("v_pk_fma_f32 %s, %s, %s, %s" % (r(vG, 2), r(vH+2, 2), r(vH+2, 2), r(vG, 2)))
    a("v_add_f32 v%d, v%d, v%d" % (vT[6], vG+2, vG+3)); a("v_add_f32 v%d, v%d, v%d" % (vT[7], vG, vG+1))
    for ks in range(4):
        a("s_waitcnt lgkmcnt(%d)" % (3 - ks))
        for mi in range(2):
            a("v_mfma_f32_16x16x32_bf16 %s, %s, %s, %s" % (r(vD + 4*mi, 4), r(vA + 4*ks, 4), r(vW + 16*mi + 4*ks, 4), r(vD + 4*mi, 4) if ks else "0"))
    red32x2(vT[6], vT[7], vT[0], vT[1])
    cnd(vT[0], "v%d" % vD, "v%d" % (vD+4), sp(sR1))
    a("ds_write_b32 v%d, v%d offset:%d" % (vAd[4], vT[0], LRED2))
    a("s_mov_b64 exec, 1"); a("ds_write2_b32 v%d, v%d, v%d offset0:0 offset1:4" % (vAd[0], vT[6], vT[7])); a("s_mov_b64 exec, -1")
    a("s_waitcnt lgkmcnt(0)"); a("s_barrier")
    a("ds_read_b128 %s, v%d" % (r(vG, 4), vAd[5])); a("ds_read_b128 %s, v%d offset:16" % (r(vG+4, 4), vAd[5]))
    a("ds_read_b128 %s, v%d offset:%d" % (r(vD, 4), vAd[9], LRED2)); a("ds_read_b128 %s, v%d offset:%d" % (r(vD+4, 4), vAd[9], LRED2 + 256))
    a("s_waitcnt lgkmcnt(2)")
    a("v_pk_add_f32 %s, %s, %s" % (r(vG, 2), r(vG, 2), r(vG+2, 2))); a("v_pk_add_f32 %s, %s, %s" % (r(vG+4, 2), r(vG+4, 2), r(vG+6, 2)))
    a("v_add_f32 v%d, v%d, v%d" % (vG, vG, vG+1)); a("v_add_f32 v%d, v%d, v%d" % (vG+4, vG+4, vG+5))
    a("v_mul_f32 v%d, 0x3b000000, v%d" % (vG, vG)); a("v_mul_f32 v%d, 0x3b000000, v%d" % (vG+4, vG+4))
    a("v_fma_f32 v%d, -v%d, v%d, v%d" % (vG+4, vG, vG, vG+4)); a("v_max_f32 v%d, 0, v%d" % (vG+4, vG+4))
    if exactLN:
        rbf2(vG, vG+4, vG, vG+4, vT[1]); a("v_add_f32 v%d, 0x%x, v%d" % (vG+4, EPS, vG+4)); rbf(vG+4, vG+4); a("v_sqrt_f32 v%d, v%d" % (vG+4, vG+4))
        a("s_waitcnt lgkmcnt(0)")
        a("v_pk_add_f32 %s, %s, %s" % (r(vD, 2), r(vD, 2), r(vD+2, 2)))
        rbf(vG+4, vG+4); a("v_rcp_f32 v%d, v%d" % (vG+4, vG+4))
    else:
        a("v_add_f32 v%d, 0x%x, v%d" % (vG+4, EPS, vG+4)); a("v_rsq_f32 v%d, v%d" % (vG+4, vG+4))
        a("s_waitcnt lgkmcnt(0)")
        a("v_pk_add_f32 %s, %s, %s" % (r(vD, 2), r(vD, 2), r(vD+2, 2)))
    a("v_pk_add_f32 %s, %s, %s" % (r(vD+4, 2), r(vD+4, 2), r(vD+6, 2)))
    a("v_add_f32 v%d, v%d, v%d" % (vD, vD, vD+1)); a("v_add_f32 v%d, v%d, v%d" % (vD+4, vD+4, vD+5))
    a("v_fma_f32 v%d, -v%d, v%d, v%d" % (vD, vG, vCSg, vD)); a("v_fma_f32 v%d, -v%d, v%d, v%d" % (vD+4, vG, vCSu, vD+4))
    a("v_mul_f32 v%d, v%d, v%d" % (vD, vD, vG+4)); a("v_mul_f32 v%d, v%d, v%d" % (vD+4, vD+4, vG+4))
    rbf2(vT[0], vT[1], vD, vD+4, vT[2])
    a("v_mul_f32 v%d, s%d, v%d" % (vT[0], sL2E, vT[0])); a("v_exp_f32 v%d, -v%d" % (vT[0], vT[0])); nop(1)
    a("v_add_f32 v%d, 1.0, v%d" % (vT[0], vT[0])); a("v_rcp_f32 v%d, v%d" % (vT[0], vT[0])); nop(1)
    rbf(vT[0], vT[0]); a("v_mul_f32 v%d, v%d, v%d" % (vT[0], vT[0], vT[1])); a("v_cvt_pk_bf16_f32 v%d, v%d, v%d" % (vT[0], vT[0], vT[0])); nop(2)
    for t in range(4):
        for j in range(4): dpp("v_and_b32", vA + 4*t + j, vT[0], vP + j, "quad_perm:[%d,%d,%d,%d]" % (t, t, t, t))
        if t >= 1: a("v_mfma_f32_16x16x32_bf16 %s, %s, %s, %s" % (r(vD, 4), r(vA + 4*(t-1), 4), r(vWD + 4*(t-1), 4), r(vD, 4) if t > 1 else "0"))
    nop(1)
    a("v_mfma_f32_16x16x32_bf16 %s, %s, %s, %s" % (r(vD, 4), r(vA + 12, 4), r(vWD + 12, 4), r(vD, 4)))
    nop(7)
    a("s_mov_b64 exec, 0xffffffff")
    a("buffer_store_dwordx4 %s, v%d, %s, 0 offen sc1" % (r(vD, 4), vAd[2], srd(sWS)))
    a("s_mov_b64 exec, -1")
    stamp("cpub")
    finish("C")
    stC = list(stn)

    g.lab(LD); g.q = list(q_save); pvn[0] = pv_save; nst[0] = nst_save; del stn[nst_save:]
    a("v_and_b32 v%d, 7, v%d" % (vT[4], vL)); a("s_lshl_b32 s%d, s%d, 6" % (sT, sCI)); a("v_lshl_add_u32 v%d, v%d, 3, s%d" % (vAd[7], vT[4], sT))
    g.vm("buffer_load_dwordx2 %s, v%d, %s, 0 offen" % (r(vXr, 2), vAd[7], srd(sX)), "x2")
    a("s_lshl_b32 s%d, s%d, 7" % (sT, sCI)); a("v_lshrrev_b32 v%d, 5, v%d" % (vT[0], vL)); a("v_lshlrev_b32 v%d, 11, v%d" % (vT[0], vT[0]))
    a("v_lshl_add_u32 v%d, v%d, 4, v%d" % (vT[0], vT[4], vT[0])); a("v_add_u32 v%d, s%d, v%d" % (vAd[6], sT, vT[0]))
    a("s_lshl_b32 s%d, s%d, 14" % (sT2, sW)); a("s_add_u32 s%d, s%d, s%d" % (sT, sT, sT2))
    a("v_lshrrev_b32 v%d, 3, v%d" % (vT[0], vL)); a("v_lshlrev_b32 v%d, 11, v%d" % (vT[0], vT[0])); a("v_lshl_add_u32 v%d, v%d, 4, v%d" % (vT[0], vT[4], vT[0])); a("v_add_u32 v%d, s%d, v%d" % (vAd[5], sT, vT[0]))
    a("s_lshl_b32 s%d, s%d, 7" % (sT, sW)); a("v_lshl_add_u32 v%d, v%d, 4, s%d" % (vAd[4], vT[4], sT)); a("v_lshlrev_b32 v%d, 4, v%d" % (vAd[9], vT[4]))
    drain_publish()
    gather(8, vAd[6], [AX + 2*i*2048 for i in range(8)])
    stamp("x2ok")
    unpack4(vX, vXr)
    sum_g(8); attn_to_hpk(vX, vT[4]); unpack4(vH, vT[4])
    l3, l4 = g.newlab("L_d3"), g.newlab("L_d4")
    a("s_cmp_ge_u32 s%d, 2" % sW); a("s_cbranch_scc1 " + l3)
    gather(4, vAd[5], [DX + 32*i*2048 for i in range(4)]); sum_g(4)
    a("s_branch " + l4)
    g.lab(l3)
    gather(3, vAd[5], [DX + 32*i*2048 for i in range(3)]); sum_g(3)
    g.lab(l4)
    stamp("x3ok")
    nop(1)
    for i in range(4): dpp("v_add_f32", vG+i, vG+i, vG+i, "row_ror:8")
    red_swap_n("v_add_f32", G4, G4b, 16); red_swap_n("v_add_f32", G4, G4b, 32)
    a("s_mov_b64 exec, 0xff"); a("ds_write_b128 v%d, %s offset:%d" % (vAd[4], r(vG, 4), LRED2))
    ld = g.newlab("L_ddone")
    a("s_cmp_lg_u32 s%d, 0" % sW)
    a("s_waitcnt lgkmcnt(0)"); a("s_barrier")
    a("s_cbranch_scc1 " + ld)
    for w in range(4): a("ds_read_b128 %s, v%d offset:%d" % (r(vG + 4*w, 4), vAd[9], LRED2 + 128*w))
    a("s_waitcnt lgkmcnt(0)")
    sum_g(4)
    rbf2(vG, vG+1, vG, vG+1, vT[0]); rbf2(vG+2, vG+3, vG+2, vG+3, vT[1])
    for h in range(2): a("v_pk_add_f32 %s, %s, %s" % (r(vG+2*h, 2), r(vG+2*h, 2), r(vH+2*h, 2)))
    a("v_cvt_pk_bf16_f32 v%d, v%d, v%d" % (vT[4], vG, vG+1)); a("v_cvt_pk_bf16_f32 v%d, v%d, v%d" % (vT[5], vG+2, vG+3))
    a("buffer_store_dwordx2 %s, v%d, %s, 0 offen" % (r(vT[4], 2), vAd[7], srd(sOUT)))
    g.lab(ld)
    a("s_mov_b64 exec, -1")
    stamp("out")
    g.lab("L_fin")
    finish("D")
    stD = list(stn)
    g.lab("L_end"); a("s_endpgm")

    hdr = """; Fused decode layer: LN -> q proj -> GQA attention over the KV cache -> out proj -> LN -> GLU MLP, one persistent launch.
; 256 workgroups (one per CU) x 4 waves. Hand-offs through d_ws carry self-validating words (cleared at entry, clears counted in d_debug).
; @launch grid=(256,1,1) block=(256,1,1) lds=%d
.amdgcn_target "amdgcn-amd-amdhsa--gfx950"
.text
.globl %s_kernel
.p2align 8
.type %s_kernel,@function
%s_kernel:
""" % (LDS_SIZE, KN, KN, KN)
    ftr = """
.section .rodata,"a"
.p2align 6
.amdhsa_kernel %s_kernel
  .amdhsa_next_free_vgpr 512
  .amdhsa_next_free_sgpr 102
  .amdhsa_accum_offset 256
  .amdhsa_group_segment_fixed_size 0
  .amdhsa_kernarg_size 96
  .amdhsa_user_sgpr_count 2
  .amdhsa_user_sgpr_kernarg_segment_ptr 1
  .amdhsa_system_sgpr_workgroup_id_x 1
  .amdhsa_float_denorm_mode_32 3
.end_amdhsa_kernel
""" % KN
    return hdr + "\n".join(g.L) + ftr, dict(B=stB, C=stC, D=stD, nv=g.vn)

if __name__ == "__main__":
    kw = eval("dict(%s)" % (sys.argv[2] if len(sys.argv) > 2 else ""))
    src, info = gen(**kw)
    open(sys.argv[1], "w").write(src); print(info, len(src))
```

```python
import sys
KN = "sequential_preLN__gqa_block_cached__glu_gated_glu__decode"

SX = 0x60000
TX = 0x2000
AX = 0x4000
QX = 0x10000
DX = 0x20000
OX = 0x80000
WS_USED = 0x100000
OOB = 0x20000000
STAMP = 0x200000
LW   = 0
LWQ  = 0x8000
LACT = 0xC000
LACT2= 0xC400
LQ   = 0xC800
LRED = 0xCC00
LRED2= 0xD000
LONE = 0xD400
LST  = 0xD600
LST2 = 0xD640
LS2  = 0xD680
LO   = 0xD800
LDS_SIZE = 0xF800

LOG2E = 0x3FB8AA3B
SCALE = 0x3DB504F3
EPS   = 0x3727C5AC

class G:
    def __init__(s):
        s.L = []; s.q = []; s.nlab = 0; s.vn = 0; s.names = {}
    def a(s, x): s.L.append("  " + x)
    def lab(s, x): s.L.append(x + ":")
    def newlab(s, p="L"):
        s.nlab += 1; return "%s_%d" % (p, s.nlab)
    def v(s, name, n=1, align=1):
        if n > 1: align = max(align, 2)
        s.vn = (s.vn + align - 1)//align*align
        r = s.vn; s.vn += n; s.names[name] = r
        assert s.vn <= 256
        return r
    def vm(s, txt, tag):
        s.a(txt); s.q.append(tag)
    def wait(s, tag):
        if tag not in s.q: return
        i = s.q.index(tag); n = len(s.q) - 1 - i
        assert n <= 63
        s.a("s_waitcnt vmcnt(%d)" % n); s.q = s.q[i+1:]
    def waitall(s):
        s.a("s_waitcnt vmcnt(0)"); s.q = []

def r(a, n): return "v[%d:%d]" % (a, a+n-1)
def ar(a, n): return "a[%d:%d]" % (a, a+n-1)
def sp(a): return "s[%d:%d]" % (a, a+1)
DPP = " row_mask:0xf bank_mask:0xf"

def gen(D=8, D0=None, pol="nt", wpol="nt", stamps=False, n_x0=None, n_cnt=None, n_q=None, n_qk=60, n_sg=None, n_pv=108, K0=4, pv_rate=6,
        n_pf=None, pfpol="", ex_at=0, spin=1 << 16, probe=None, probe_base=4000, exactLN=True, retry_mode="mask", cyc=False, psleep=1, abl=(), d3=20, wo_at=None, par=0, pf_role=True, n_t=None, tsleep=2, fast1=False, repub_at=3, cw_late=True, wo_late=False, wd_pos='drain', ax_early=False, ssig=False):
    g = G(); a = g.a
    if D0 is None: D0 = D
    if n_x0 is None: n_x0 = D0 + D
    if n_q is None: n_q = n_qk - D
    if n_cnt is None: n_cnt = n_q - D
    if n_sg is None: n_sg = n_pv - D
    sW, sG, sS = 3, 4, 5
    sK, sV, sWS, sX, sWQ, sR1_, sR2_, sWD, sOUT, sDBG = 8, 12, 16, 20, 24, 28, 32, 36, 40, 44
    sWOp, sWGp, sWUp = 48, 50, 52
    sB0, sB1, sR1, sR2 = 54, 56, 58, 60
    sT, sT2, sOFF, sCNT = 62, 63, 6, 7
    sKB, sCB, sCI = 64, 65, 66
    sL2E, sSC = 67, 68
    sWST, sWH = 69, 70
    sMK = 48
    sPF = 72
    sROLE = 71
    sST = 76
    nst = [0]; stn = []
    def stamp(name):
        if stamps or probe:
            a("%s s[%d:%d]" % ("s_memtime" if cyc else "s_memrealtime", sST + 2*nst[0], sST + 2*nst[0] + 1)); nst[0] += 1; stn.append(name)
            assert sST + 2*nst[0] <= 104
    def srd(b): return "s[%d:%d]" % (b, b+3)
    g.v("tid"); vL = g.v("lane"); vKo = g.v("koff"); vVo = g.v("voff")
    vM0 = g.v("m0"); vM1 = g.v("m1")
    vT = [g.v("t%d" % i) for i in range(12)]
    vX = g.v("x", 4); vQ = g.v("q", 4); vS = g.v("S", 16); vD = g.v("D", 16); vO = g.v("O", 8); vTP = g.v("TP", 8)
    vA = g.v("A", 16); vW = g.v("W", 32); vWD = g.v("WD", 16); vG = g.v("G", 32); vH = g.v("H", 4); vP = g.v("P", 4)
    vAd = [g.v("ad%d" % i) for i in range(10)]
    vMx = g.v("mx"); vRl = g.v("rl"); vCn = g.v("cn"); vCSg = g.v("csg"); vCSu = g.v("csu")
    vSG = g.v("sg", 4); vSen = g.v("sen", 4); vXr = g.v("xr", 2); vE = g.v("E", 8); vXf = g.v("xf", 4); vXa = g.v("xa", 4); vTX = g.v("tx"); vTv = g.v("tv")
    assert vT[4] % 2 == 0

    def nop(n): a("s_nop %d" % (n-1))
    def dpp(op, d, s0, s1, ctl): a("%s_dpp v%d, v%d, v%d %s%s" % (op, d, s0, s1, ctl, DPP))
    def red_quad(op, x):
        nop(2); dpp(op, x, x, x, "quad_perm:[1,0,3,2]"); nop(2); dpp(op, x, x, x, "quad_perm:[2,3,0,1]")
    def red_swap(op, x, t, which):
        a("v_mov_b32 v%d, v%d" % (t, x)); nop(2); a("v_permlane%d_swap_b32 v%d, v%d" % (which, x, t)); a("%s v%d, v%d, v%d" % (op, x, x, t))
    def red_swap_n(op, xs, ts, which):
        for x, t in zip(xs, ts): a("v_mov_b32 v%d, v%d" % (t, x))
        if len(xs) < 3: nop(3 - len(xs))
        for x, t in zip(xs, ts): a("v_permlane%d_swap_b32 v%d, v%d" % (which, x, t))
        for x, t in zip(xs, ts): a("%s v%d, v%d, v%d" % (op, x, x, t))
    def red32(x, t):
        red_quad("v_add_f32", x); nop(2); dpp("v_add_f32", x, x, x, "row_half_mirror"); nop(2); dpp("v_add_f32", x, x, x, "row_mirror")
        red_swap("v_add_f32", x, t, 16)
    def red32x2(x, y, t, t2):
        nop(1)
        for ctl in ("quad_perm:[1,0,3,2]", "quad_perm:[2,3,0,1]", "row_half_mirror", "row_mirror"):
            dpp("v_add_f32", x, x, x, ctl); dpp("v_add_f32", y, y, y, ctl); nop(1)
        red_swap_n("v_add_f32", [x, y], [t, t2], 16)
    def rbf(d, s_):
        a("v_cvt_pk_bf16_f32 v%d, v%d, v%d" % (d, s_, s_)); a("v_lshlrev_b32 v%d, 16, v%d" % (d, d))
    def rbf2(d0, d1, s0, s1, t):
        a("v_cvt_pk_bf16_f32 v%d, v%d, v%d" % (t, s0, s1)); a("v_lshlrev_b32 v%d, 16, v%d" % (d0, t)); a("v_and_b32 v%d, 0xffff0000, v%d" % (d1, t))
    def unpack4(d, p):
        a("v_lshlrev_b32 v%d, 16, v%d" % (d, p)); a("v_and_b32 v%d, 0xffff0000, v%d" % (d+1, p))
        a("v_lshlrev_b32 v%d, 16, v%d" % (d+2, p+1)); a("v_and_b32 v%d, 0xffff0000, v%d" % (d+3, p+1))
    def expsub(d, x, m):
        a("v_sub_f32 v%d, v%d, v%d" % (d, x, m)); a("v_mul_f32 v%d, s%d, v%d" % (d, sL2E, d)); a("v_exp_f32 v%d, v%d" % (d, d))
    def sum4(b):
        a("v_add_f32 v%d, v%d, v%d" % (b, b, b+1)); a("v_add_f32 v%d, v%d, v%d" % (b+2, b+2, b+3)); a("v_add_f32 v%d, v%d, v%d" % (b, b, b+2))
    def cnd(d, f, t, m): a("v_cndmask_b32_e64 v%d, %s, %s, %s" % (d, f, t, m))
    def wg_lin(dst):
        a("s_lshl_b32 s%d, s%d, 5" % (dst, sG)); a("s_add_u32 s%d, s%d, s%d" % (dst, dst, sS))

    def issue(n):
        t, j = divmod(n, 64); st, c = divmod(j, 4)
        if c == 0: a("s_mov_b32 s%d, 0x%x" % (sOFF, st << 19))
        g.vm("buffer_load_dwordx4 %s, v%d, %s, s%d offen offset:%d %s" % (ar(4*j, 4), vVo if t else vKo, srd(sV if t else sK), sOFF, c*1024, pol), "n%d" % n)

    a("s_cmp_ge_u32 s2, 256"); a("s_cbranch_scc1 L_end")
    stamp("start")
    for b, off in ((sK, 8), (sV, 16), (sX, 0), (sWQ, 24), (sWS, 88), (sDBG, 80), (sWOp, 32), (sWGp, 48), (sWUp, 56), (sWD, 64), (sOUT, 72)):
        a("s_load_dwordx2 s[%d:%d], s[0:1], %d" % (b, b+1, off))
    a("v_lshrrev_b32 v%d, 6, v0" % vT[0]); a("v_and_b32 v%d, 63, v0" % vL)
    a("s_and_b32 s%d, s2, 7" % sG); a("v_readfirstlane_b32 s%d, v%d" % (sW, vT[0])); a("s_lshr_b32 s%d, s2, 3" % sS)
    a("s_lshl_b32 s%d, s%d, 23" % (sT, sG)); a("s_lshl_b32 s%d, s%d, 14" % (sT2, sS)); a("s_add_u32 s%d, s%d, s%d" % (sT, sT, sT2))
    a("s_lshl_b32 s%d, s%d, 12" % (sT2, sW)); a("s_add_u32 s%d, s%d, s%d" % (sT, sT, sT2))
    a("v_and_b32 v%d, 15, v%d" % (vT[1], vL)); a("v_lshrrev_b32 v%d, 4, v%d" % (vT[2], vL))
    a("v_lshlrev_b32 v%d, 6, v%d" % (vAd[0], vT[1])); a("v_lshl_add_u32 v%d, v%d, 4, v%d" % (vAd[0], vT[2], vAd[0]))
    a("v_add_u32 v%d, s%d, v%d" % (vKo, sT, vAd[0]))
    a("v_lshlrev_b32 v%d, 4, v%d" % (vVo, vL)); a("v_add_u32 v%d, s%d, v%d" % (vVo, sT, vVo))
    if "lin" in abl: a("v_mov_b32 v%d, v%d" % (vKo, vVo))
    for b, n in ((sK, 1 << 26), (sV, 1 << 26), (sX, 1024), (sWQ, 1 << 22), (sWS, WS_USED if not stamps else 1 << 28), (sDBG, 256), (sWD, 1792*1024), (sOUT, 1024)):
        a("s_mov_b32 s%d, 0x%x" % (b+2, n)); a("s_mov_b32 s%d, 0x20000" % (b+3))
    a("v_and_b32 v%d, 31, v%d" % (vT[3], vL)); a("s_lshl_b32 s%d, s%d, 8" % (sT, sW)); a("v_lshl_add_u32 v%d, v%d, 3, s%d" % (vAd[1], vT[3], sT))
    a("v_bfe_u32 v%d, v%d, 1, 3" % (vT[4], vL)); a("v_and_b32 v%d, 1, v%d" % (vT[5], vL))
    a("v_lshlrev_b32 v%d, 5, v%d" % (vT[6], vT[2])); a("v_lshl_add_u32 v%d, v%d, 4, v%d" % (vT[6], vT[5], vT[6]))
    a("s_lshr_b32 s%d, s%d, 3" % (sKB, sS)); a("s_and_b32 s%d, s%d, 7" % (sCB, sS))
    a("s_lshl_b32 s%d, s%d, 2" % (sT, sKB)); a("s_add_u32 s%d, s%d, s%d" % (sT, sT, sW)); a("s_lshl_b32 s%d, s%d, 18" % (sT, sT))
    a("s_lshl_b32 s%d, s%d, 10" % (sT2, sG)); a("s_add_u32 s%d, s%d, s%d" % (sT, sT, sT2)); a("s_lshl_b32 s%d, s%d, 7" % (sT2, sCB)); a("s_add_u32 s%d, s%d, s%d" % (sT, sT, sT2))
    a("v_lshl_add_u32 v%d, v%d, 13, v%d" % (vAd[2], vT[4], vT[6])); a("v_add_u32 v%d, s%d, v%d" % (vAd[2], sT, vAd[2]))
    a("s_waitcnt lgkmcnt(0)")
    for n in range(K0): issue(n)
    for i in range(4): a("v_mov_b32 v%d, -1" % (vSen + i))
    if par is None:
        a("s_cmp_ge_u32 s%d, 16" % sS); a("s_cselect_b32 s%d, 1, 0" % sROLE); a("s_cmp_ge_u32 s%d, 30" % sS); a("s_cselect_b32 s%d, 2, s%d" % (sROLE, sROLE))
    else:
        a("s_cmp_ge_u32 s%d, 28" % sS); a("s_cselect_b32 s%d, 2, 1" % sROLE); a("s_and_b32 s%d, s%d, 1" % (sT, sG)); a("s_cmp_eq_u32 s%d, %d" % (sT, par)); a("s_cselect_b32 s%d, 0, s%d" % (sROLE, sROLE))
    wg_lin(sT); a("s_lshl_b32 s%d, s%d, 11" % (sT, sT)); a("s_lshl_b32 s%d, s%d, 9" % (sT2, sW)); a("s_add_u32 s%d, s%d, s%d" % (sT, sT, sT2)); a("s_add_u32 s%d, s%d, 0x%x" % (sT, sT, OX))
    a("v_lshl_add_u32 v%d, v%d, 4, s%d" % (vAd[8], vT[3], sT))
    a("s_mov_b32 s%d, 0x20000" % (sR1_+3)); a("s_mov_b32 s%d, 0x20000" % (sR2_+3))
    lC, lD, lJ = g.newlab("L_setC"), g.newlab("L_setD"), g.newlab("L_setJ")
    a("s_cmp_eq_u32 s%d, 2" % sROLE); a("s_cbranch_scc1 " + lD)
    a("s_cmp_eq_u32 s%d, 1" % sROLE); a("s_cbranch_scc1 " + lC)
    if par is None: a("s_lshl_b32 s%d, s%d, 1" % (sT, sG))
    else: a("s_lshr_b32 s%d, s%d, 1" % (sT, sG)); a("s_lshl_b32 s%d, s%d, 2" % (sT, sT))
    a("s_add_u32 s%d, s%d, s%d" % (sCI, sT, sKB))
    for b in (sR1_, sR2_): a("s_mov_b64 %s, %s" % (sp(b), sp(sWOp))); a("s_mov_b32 s%d, 0x400000" % (b+2))
    a("s_mov_b32 s%d, 8192" % sWST); a("s_mov_b32 s%d, 32768" % sWH)
    a("s_lshl_b32 s%d, s%d, 18" % (sT, sCI)); a("s_lshl_b32 s%d, s%d, 16" % (sT2, sW)); a("s_add_u32 s%d, s%d, s%d" % (sT, sT, sT2)); a("s_lshl_b32 s%d, s%d, 7" % (sT2, sCB)); a("s_add_u32 s%d, s%d, s%d" % (sT, sT, sT2))
    a("v_lshl_add_u32 v%d, v%d, 10, v%d" % (vAd[5], vT[4], vT[6])); a("v_add_u32 v%d, s%d, v%d" % (vAd[5], sT, vAd[5]))
    a("s_lshl_b32 s%d, s%d, 11" % (sT, sCI)); a("s_lshl_b32 s%d, s%d, 8" % (sT2, sCB)); a("s_add_u32 s%d, s%d, s%d" % (sT, sT, sT2)); a("s_lshl_b32 s%d, s%d, 6" % (sT2, sW)); a("s_add_u32 s%d, s%d, s%d" % (sT, sT, sT2)); a("s_add_u32 s%d, s%d, 0x%x" % (sT, sT, AX))
    a("v_lshl_add_u32 v%d, v%d, 4, s%d" % (vT[7], vT[3], sT)); a("v_cmp_gt_u32 vcc, 4, v%d" % vT[3]); a("v_mov_b32 v%d, 0x%x" % (vT[8], OOB)); nop(1)
    a("v_cndmask_b32 v%d, v%d, v%d, vcc" % (vT[7], vT[8], vT[7]))
    a("s_branch " + lJ)
    g.lab(lC)
    if par is None: a("s_mul_i32 s%d, s%d, 14" % (sCI, sG)); a("s_add_u32 s%d, s%d, s%d" % (sCI, sCI, sS)); a("s_sub_u32 s%d, s%d, 16" % (sCI, sCI))
    else: a("s_lshr_b32 s%d, s%d, 1" % (sT, sG)); a("s_mul_i32 s%d, s%d, 28" % (sCI, sT)); a("s_add_u32 s%d, s%d, s%d" % (sCI, sCI, sS))
    a("s_mov_b64 %s, %s" % (sp(sR1_), sp(sWGp))); a("s_mov_b64 %s, %s" % (sp(sR2_), sp(sWUp)))
    for b in (sR1_, sR2_): a("s_mov_b32 s%d, %d" % (b+2, 512*3584))
    a("s_mov_b32 s%d, %d" % (sWST, 32*3584)); a("s_mov_b32 s%d, 0" % sWH)
    a("v_lshrrev_b32 v%d, 1, v%d" % (vT[7], vL)); a("v_mul_u32_u24 v%d, 3584, v%d" % (vT[7], vT[7])); a("v_lshl_add_u32 v%d, v%d, 4, v%d" % (vT[7], vT[5], vT[7]))
    a("s_mul_i32 s%d, s%d, %d" % (sT, sW, 128*3584)); a("s_lshl_b32 s%d, s%d, 5" % (sT2, sCI)); a("s_add_u32 s%d, s%d, s%d" % (sT, sT, sT2)); a("v_add_u32 v%d, s%d, v%d" % (vAd[5], sT, vT[7]))
    a("s_lshl_b32 s%d, s%d, 11" % (sT, sCI)); a("s_lshl_b32 s%d, s%d, 9" % (sT2, sW)); a("s_add_u32 s%d, s%d, s%d" % (sT, sT, sT2)); a("s_add_u32 s%d, s%d, 0x%x" % (sT, sT, DX))
    a("v_lshl_add_u32 v%d, v%d, 4, s%d" % (vT[7], vT[3], sT))
    a("s_branch " + lJ)
    g.lab(lD)
    if par is None: a("s_lshl_b32 s%d, s%d, 1" % (sCI, sG)); a("s_add_u32 s%d, s%d, s%d" % (sCI, sCI, sS)); a("s_sub_u32 s%d, s%d, 30" % (sCI, sCI))
    else: a("s_lshr_b32 s%d, s%d, 1" % (sT, sG)); a("s_lshl_b32 s%d, s%d, 2" % (sCI, sT)); a("s_add_u32 s%d, s%d, s%d" % (sCI, sCI, sS)); a("s_sub_u32 s%d, s%d, 28" % (sCI, sCI))
    for b in (sR1_, sR2_): a("s_mov_b64 %s, %s" % (sp(b), sp(sWOp))); a("s_mov_b32 s%d, 0" % (b+2))
    a("s_mov_b32 s%d, 0" % sWST); a("s_mov_b32 s%d, 0" % sWH)
    a("v_mov_b32 v%d, 0" % vAd[5]); a("v_mov_b32 v%d, 0x%x" % (vT[7], OOB))
    g.lab(lJ)
    a("v_cmp_gt_u32 vcc, 32, v%d" % vL)
    a("s_lshl_b32 s%d, s%d, 13" % (sT, sG)); a("s_lshl_b32 s%d, s%d, 8" % (sT2, sS)); a("s_add_u32 s%d, s%d, s%d" % (sT, sT, sT2)); a("s_add_u32 s%d, s%d, 0x%x" % (sT, sT, QX))
    a("v_cndmask_b32 v%d, v%d, v%d, vcc" % (vT[7], vT[7], vAd[8]))
    if "clr" not in abl: g.vm("buffer_store_dwordx4 %s, v%d, %s, 0 offen sc1" % (r(vSen, 4), vT[7], srd(sWS)), "clr0")
    a("v_lshl_add_u32 v%d, v%d, 2, s%d" % (vAd[9], vL, sT))
    a("s_lshl_b32 s%d, s%d, 6" % (sT2, sW)); a("s_add_u32 s%d, s%d, s%d" % (sT, sT, sT2)); a("v_lshl_add_u32 v%d, v%d, 4, s%d" % (vT[8], vL, sT))
    wg_lin(sT); a("s_lshl_b32 s%d, s%d, 7" % (sT, sT)); a("s_add_u32 s%d, s%d, %d" % (sT, sT, SX - 64)); a("s_cmp_eq_u32 s%d, 0" % sW); a("s_cselect_b32 s%d, s%d, 0x%x" % (sT, sT, OOB))
    a("v_lshl_add_u32 v%d, v%d, 4, s%d" % (vT[9], vL, sT)); a("v_cmp_gt_u32 vcc, 4, v%d" % vL); nop(2)
    a("v_cndmask_b32 v%d, v%d, v%d, vcc" % (vT[8], vT[9], vT[8]))
    if n_t:
        a("s_lshl_b32 s%d, s%d, 7" % (sT, sG)); a("s_add_u32 s%d, s%d, 0x%x" % (sT, sT, TX)); a("v_mov_b32 v%d, s%d" % (vTX, sT)); a("v_cmp_eq_u32 vcc, 6, v%d" % vL); nop(2)
        a("v_cndmask_b32 v%d, v%d, v%d, vcc" % (vT[8], vT[8], vTX))
    a("s_mov_b64 exec, %s" % ("0x7f" if n_t else "63"))
    if "clr" not in abl: g.vm("buffer_store_dwordx4 %s, v%d, %s, 0 offen sc1" % (r(vSen, 4), vT[8], srd(sWS)), "clr1")
    a("s_mov_b64 exec, -1")
    for n in range(K0, D0): issue(n)
    g.vm("buffer_load_dwordx2 %s, v%d, %s, 0 offen" % (r(vXr, 2), vAd[1], srd(sX)), "x")
    a("v_lshlrev_b32 v%d, 4, v%d" % (vT[0], vL)); g.vm("buffer_load_dwordx4 %s, v%d, %s, 0 offen" % (r(vXf, 4), vT[0], srd(sX)), "xf")
    a("s_lshl_b32 s%d, s%d, 2" % (sT, sKB)); a("s_add_u32 s%d, s%d, s%d" % (sT, sT, sW)); a("s_lshl_b32 s%d, s%d, 6" % (sT, sT)); a("v_lshl_add_u32 v%d, v%d, 3, s%d" % (vT[0], vT[2], sT))
    g.vm("buffer_load_dwordx2 %s, v%d, %s, 0 offen" % (r(vXa, 2), vT[0], srd(sX)), "xa0"); g.vm("buffer_load_dwordx2 %s, v%d, %s, 0 offen offset:32" % (r(vXa+2, 2), vT[0], srd(sX)), "xa1")
    a("s_lshl_b32 s%d, s%d, 12" % (sT, sW))
    for i in range(4):
        a("s_add_u32 m0, s%d, %d" % (sT, LWQ + i*1024)); a("s_mov_b32 s%d, %d" % (sT2, i*65536))
        if "wq" not in abl: g.vm("buffer_load_dwordx4 v%d, %s, s%d offen %s lds" % (vAd[2], srd(sWQ), sT2, wpol), "wq%d" % i)
    a("s_mov_b32 s%d, 0x%x" % (sL2E, LOG2E)); a("s_mov_b32 s%d, 0x%x" % (sSC, SCALE))
    for m, bit in ((sB0, 1), (sB1, 2), (sR1, 16), (sR2, 32)):
        a("v_and_b32 v%d, %d, v%d" % (vT[0], bit, vL)); a("v_cmp_ne_u32 %s, 0, v%d" % (sp(m), vT[0]))
    a("v_mov_b32 v%d, 0xffff" % vT[0]); a("v_mov_b32 v%d, 0xffff0000" % vT[1])
    cnd(vT[0], "v%d" % vT[0], "v%d" % vT[1], sp(sB0)); cnd(vM0, "v%d" % vT[0], "0", sp(sB1)); cnd(vM1, "0", "v%d" % vT[0], sp(sB1))
    for i in range(8): a("v_mov_b32 v%d, 0" % (vO + i))

    work = []; nxt = [D0]; qk_done = [0]
    def at(n, f): work.append((n, len(work), f))
    def pump(k=1):
        for _ in range(k):
            n = nxt[0]
            if n >= 128: return
            if n >= 64: assert qk_done[0] > (n - 64)//4 or "qk" in abl, "V load would overwrite unread K"
            if n >= D: g.wait("n%d" % (n - D))
            issue(n); nxt[0] += 1
    def barrier():
        pump(); a("s_waitcnt lgkmcnt(0)"); a("s_barrier")
    def sel_tile(d, b):
        cnd(d, "v%d" % b, "v%d" % (b+4), sp(sR1)); cnd(vT[1], "v%d" % (b+8), "v%d" % (b+12), sp(sR1)); cnd(d, "v%d" % d, "v%d" % vT[1], sp(sR2))
    def red64(x, t):
        red32(x, t); red_swap("v_add_f32", x, t, 32)

    def c_x0():
        g.wait("wq3")
        stamp("x0in")
        a("s_lshl_b32 s%d, s%d, 12" % (sT, sW)); a("v_lshrrev_b32 v%d, 5, v%d" % (vT[0], vL)); a("v_lshlrev_b32 v%d, 10, v%d" % (vT[0], vT[0]))
        a("v_and_b32 v%d, 31, v%d" % (vT[1], vL)); a("v_lshl_add_u32 v%d, v%d, 3, v%d" % (vT[0], vT[1], vT[0])); a("v_add_u32 v%d, s%d, v%d" % (vT[3], sT, vT[0]))
        for c in range(4):
            for rr in range(2): a("ds_read_b64_tr_b16 %s, v%d offset:%d" % (r(vW + 4*c + 2*rr, 2), vT[3], LWQ + 2*rr*1024 + c*256))
        unpack4(vX, vXr); unpack4(vD, vXf); unpack4(vD+4, vXf+2)
        a("v_pk_add_f32 %s, %s, %s" % (r(vD+8, 2), r(vD, 2), r(vD+2, 2))); a("v_pk_add_f32 %s, %s, %s" % (r(vD+10, 2), r(vD+4, 2), r(vD+6, 2)))
        a("v_pk_add_f32 %s, %s, %s" % (r(vD+8, 2), r(vD+8, 2), r(vD+10, 2))); a("v_add_f32 v%d, v%d, v%d" % (vT[0], vD+8, vD+9))
        pump()
        red64(vT[0], vT[1])
        a("v_mul_f32 v%d, 0x3b000000, v%d" % (vT[0], vT[0]))
        for e in range(8): a("v_sub_f32 v%d, v%d, v%d" % (vD+e, vD+e, vT[0]))
        a("v_mul_f32 v%d, v%d, v%d" % (vT[2], vD, vD))
        for e in range(1, 8): a("v_fmac_f32 v%d, v%d, v%d" % (vT[2], vD+e, vD+e))
        pump()
        red64(vT[2], vT[1])
        a("v_mul_f32 v%d, 0x3b000000, v%d" % (vT[2], vT[2]))
        rbf2(vT[0], vT[2], vT[0], vT[2], vT[1])
        a("v_add_f32 v%d, 0x%x, v%d" % (vT[2], EPS, vT[2])); rbf(vT[2], vT[2]); a("v_sqrt_f32 v%d, v%d" % (vT[2], vT[2]))
        unpack4(vD, vXa); unpack4(vD+4, vXa+2)
        rbf(vT[2], vT[2]); a("v_rcp_f32 v%d, v%d" % (vT[2], vT[2]))
        pump()
        for e in range(8): a("v_sub_f32 v%d, v%d, v%d" % (vD+e, vD+e, vT[0]))
        for e in range(0, 8, 2): rbf2(vD+e, vD+e+1, vD+e, vD+e+1, vT[1])
        for e in range(8): a("v_mul_f32 v%d, v%d, v%d" % (vD+e, vD+e, vT[2]))
        for e in range(4): a("v_cvt_pk_bf16_f32 v%d, v%d, v%d" % (vA+e, vD+2*e, vD+2*e+1))
        a("s_lshl_b32 s%d, s%d, 2" % (sT, sW)); a("v_lshl_add_u32 v%d, v%d, 4, s%d" % (vT[9], vL, sT))
        a("s_waitcnt lgkmcnt(0)")
        for c in range(4): a("v_mfma_f32_16x16x32_bf16 %s, %s, %s, 0" % (r(vD + 4*c, 4), r(vA, 4), r(vW + 4*c, 4)))
        pump(); nop(8)
        sel_tile(vT[0], vD)
        a("ds_write_b32 v%d, v%d offset:%d" % (vT[9], vT[0], LRED))
        a("v_mov_b32 v%d, 0x3f803f80" % vT[2]); a("v_lshlrev_b32 v%d, 2, v%d" % (vT[3], vL)); a("ds_write_b32 v%d, v%d offset:%d" % (vT[3], vT[2], LONE))
        barrier()
        l2, l3 = g.newlab("L_nosig"), g.newlab("L_noq")
        a("s_cmp_lg_u32 s%d, 3" % sW); a("s_cbranch_scc1 " + l2)
        if ssig:
            a("s_and_b32 s%d, s2, 63" % sT); a("s_lshl_b32 s%d, s%d, 2" % (sT, sT)); a("s_mov_b32 s%d, 1" % sCNT)
            a("s_atomic_add s%d, %s, s%d" % (sCNT, sp(sDBG), sT))
        elif "sig" not in abl:
            a("s_and_b32 s%d, s2, 63" % sT); a("s_lshl_b32 s%d, s%d, 2" % (sT, sT)); a("v_mov_b32 v%d, s%d" % (vT[0], sT)); a("v_mov_b32 v%d, 1" % vT[1])
            a("s_mov_b64 exec, 1"); a("buffer_atomic_add v%d, v%d, %s, 0 offen sc1" % (vT[1], vT[0], srd(sDBG))); a("s_mov_b64 exec, -1")
        g.lab(l2)
        a("s_cmp_lg_u32 s%d, 0" % sW); a("s_cbranch_scc1 " + l3)
        a("v_lshlrev_b32 v%d, 4, v%d" % (vT[0], vL)); a("ds_read_b128 %s, v%d offset:%d" % (r(vD, 4), vT[0], LRED)); a("s_waitcnt lgkmcnt(0)")
        sum4(vD)
        a("buffer_store_dword v%d, v%d, %s, 0 offen sc1" % (vD, vAd[9], srd(sWS)))
        g.lab(l3)
        stamp("qpub")
    if 'x0' not in abl: at(n_x0, c_x0)
    else: at(n_x0, lambda: stamp('x0in')); at(n_x0+2, lambda: stamp('qpub'))

    def retry(check, reload):
        if "poll" in abl: return
        lp, ok = g.newlab("L_retry"), g.newlab("L_ok")
        check()
        a("s_cbranch_vccz " + ok)
        a("s_mov_b32 s%d, 0" % sCNT)
        g.lab(lp)
        a("s_mov_b64 exec, vcc")
        reload()
        a("s_mov_b64 exec, -1")
        a("s_waitcnt vmcnt(0)")
        check()
        a("s_add_u32 s%d, s%d, 1" % (sCNT, sCNT)); a("s_cmp_ge_u32 s%d, %d" % (sCNT, spin)); a("s_cbranch_scc1 " + ok)
        a("s_cbranch_vccnz " + lp)
        g.lab(ok)
    def chk_sen(base, n):
        def f():
            t = vT[0]
            if n == 4:
                a("v_max3_u32 v%d, v%d, v%d, v%d" % (t, base, base+1, base+2)); a("v_max_u32 v%d, v%d, v%d" % (t, t, base+3))
            else:
                t2 = vT[1]; h = n//2
                a("v_max_u32 v%d, v%d, v%d" % (t, base, base+1)); a("v_max_u32 v%d, v%d, v%d" % (t2, base+h, base+h+1))
                for i in range(2, h, 2):
                    a("v_max3_u32 v%d, v%d, v%d, v%d" % (t, t, base+i, base+i+1)); a("v_max3_u32 v%d, v%d, v%d, v%d" % (t2, t2, base+h+i, base+h+i+1))
                a("v_max_u32 v%d, v%d, v%d" % (t, t, t2))
            a("v_cmp_eq_u32 vcc, -1, v%d" % t)
        return f
    MK = [8, 10, 12, 14, 24, 26, 48, 50]
    SO = [20, 21, 22, 23, 44, 45, 46, 47]
    def gather(n, addr, offs, pre=None, delay=0, post=None):
        if "exit" in abl: g.waitall(); return
        ld = lambda i: "buffer_load_dwordx4 %s, v%d, %s, s%d offen sc1" % (r(vG + 4*i, 4), addr, srd(sWS), SO[i])
        top, lp, ok, done = g.newlab("L_gather"), g.newlab("L_retry"), g.newlab("L_ok"), g.newlab("L_done")
        for i in range(n): a("s_mov_b32 s%d, 0x%x" % (SO[i], offs[i]))
        a("s_mov_b32 s%d, 0" % sCNT)
        if delay: a("s_sleep %d" % delay)
        if pre:
            for i in range(n): g.vm(ld(i), "g%d" % i)
            pre()
            a("s_branch %s_w" % top)
        g.lab(top)
        for i in range(n): a(ld(i))
        g.lab(top + "_w")
        chk = lambda i: a("v_cmp_eq_u32 %s, -1, v%d" % (sp(MK[i]), vG + 4*i))
        def anym():
            a("s_or_b64 vcc, %s, %s" % (sp(MK[0]), sp(MK[1])))
            for i in range(2, n): a("s_or_b64 vcc, vcc, %s" % sp(MK[i]))
        g.waitall()
        g.lab(top + "_c")
        for i in range(n): chk(i)
        anym(); a("s_cbranch_scc0 " + ok)
        g.lab(lp)
        if psleep: a("s_sleep %d" % psleep)
        if post:
            a("s_and_b32 s%d, s%d, 15" % (sT, sCNT)); a("s_cmp_lg_u32 s%d, %d" % (sT, repub_at)); a("s_cbranch_scc1 %s_n" % lp); post(); g.lab(lp + "_n")
        for i in range(n):
            a("s_mov_b64 exec, %s" % sp(MK[i])); a(ld(i))
        a("s_mov_b64 exec, -1")
        a("s_add_u32 s%d, s%d, 1" % (sCNT, sCNT)); a("s_cmp_ge_u32 s%d, %d" % (sCNT, spin))
        a("s_waitcnt vmcnt(0)")
        a("s_cbranch_scc1 " + ok)
        for i in range(n): chk(i)
        anym(); a("s_cbranch_scc1 " + lp)
        g.lab(ok)
        sum_g(n)
        a("s_add_u32 s%d, s%d, 1" % (sCNT, sCNT))
        a("v_cmp_u_f32 vcc, v%d, v%d" % (vG, vG+1)); a("v_cmp_u_f32 %s, v%d, v%d" % (sp(MK[0]), vG+2, vG+3))
        a("s_cmp_ge_u32 s%d, %d" % (sCNT, spin)); a("s_cbranch_scc1 " + done)
        a("s_or_b64 vcc, vcc, %s" % sp(MK[0])); a("s_cbranch_scc1 " + top)
        g.lab(done)
        if post: post()
    def sum_g(n):
        st = 1
        while st < n:
            for i in range(0, n, 2*st):
                if i + st < n:
                    for h in range(2): a("v_pk_add_f32 %s, %s, %s" % (r(vG+4*i+2*h, 2), r(vG+4*i+2*h, 2), r(vG+4*(i+st)+2*h, 2)))
            st *= 2
    G4 = [vG+i for i in range(4)]; G4b = [vG+4+i for i in range(4)]

    ld_cnt = lambda: "buffer_load_dword v%d, v%d, %s, 0 offen sc1" % (vCn, vAd[3], srd(sDBG))
    def c_cnt():
        a("v_lshlrev_b32 v%d, 2, v%d" % (vAd[3], vL)); g.vm(ld_cnt(), "cnt")
    def ld_q(emit):
        for i in range(2): emit("buffer_load_dwordx4 %s, v%d, %s, s%d offen sc1" % (r(vG + 4*i, 4), vAd[6], srd(sWS), sT2 if i == 0 else sT), "q%d" % i)
    def q_base():
        a("s_lshl_b32 s%d, s%d, 13" % (sT2, sG)); a("s_add_u32 s%d, s%d, 0x%x" % (sT2, sT2, QX)); a("s_add_u32 s%d, s%d, 4096" % (sT, sT2))
    def c_qld():
        g.wait("cnt")
        if "cnt" not in abl: retry(lambda: a("v_cmp_gt_u32 vcc, 4, v%d" % vCn), lambda: a(ld_cnt()))
        a("s_lshl_b32 s%d, s%d, 9" % (sT, sW)); a("v_lshrrev_b32 v%d, 5, v%d" % (vT[0], vL)); a("v_and_b32 v%d, 31, v%d" % (vT[1], vL))
        a("v_lshlrev_b32 v%d, 11, v%d" % (vT[0], vT[0])); a("v_lshl_add_u32 v%d, v%d, 4, v%d" % (vT[0], vT[1], vT[0])); a("v_add_u32 v%d, s%d, v%d" % (vAd[6], sT, vT[0]))
        q_base(); ld_q(g.vm)
    def c_qchk():
        g.wait("q1"); q_base()
        retry(chk_sen(vG, 8), lambda: ld_q(lambda t, tag: a(t)))
        sum_g(2); red_swap_n("v_add_f32", G4, G4b, 32)
        a("v_cvt_pk_bf16_f32 v%d, v%d, v%d" % (vT[4], vG, vG+1)); a("v_cvt_pk_bf16_f32 v%d, v%d, v%d" % (vT[5], vG+2, vG+3))
        a("ds_write_b64 v%d, %s offset:%d" % (vAd[1], r(vT[4], 2), LQ))
        barrier()
        a("ds_read_b128 %s, v%d offset:%d" % (r(vQ, 4), vAd[0], LQ)); a("s_waitcnt lgkmcnt(0)")
        stamp("qok")
    if 'qg' not in abl: at(n_cnt, c_cnt); at(n_q, c_qld); at(n_qk, c_qchk)
    else: at(n_qk, lambda: stamp('qok'))

    def qk_step(T):
        def f():
            g.wait("n%d" % (4*T + 3))
            for u in range(4):
                a("v_mfma_f32_16x16x32_bf16 %s, %s, %s, 0" % (r(vD + 4*u, 4), ar(16*T + 4*u, 4), r(vQ, 4)))
            nop(8)
            Dv = lambda u, j: vD + 4*u + j
            for rr in (3, 2, 1, 0):
                X = [Dv(aa ^ rr, aa) for aa in range(4)]
                cnd(vT[4], "v%d" % X[0], "v%d" % X[1], sp(sB0)); cnd(vT[5], "v%d" % X[2], "v%d" % X[3], sp(sB0)); cnd(vT[rr], "v%d" % vT[4], "v%d" % vT[5], sp(sB1))
            dpp("v_add_f32", vT[2], vT[3], vT[2], "quad_perm:[1,0,3,2]"); nop(1)
            dpp("v_add_f32", vT[0], vT[1], vT[0], "quad_perm:[1,0,3,2]"); nop(2)
            dpp("v_add_f32", vT[0], vT[2], vT[0], "quad_perm:[2,3,0,1]")
            rbf(vT[0], vT[0]); a("v_mul_f32 v%d, s%d, v%d" % (vT[0], sSC, vT[0])); rbf(vS + T, vT[0])
            qk_done[0] += 1
        return f
    nq = n_qk + 2
    for T in range(16):
        nq = max(nq, 4*T + 3 + D)
        assert nq < 64 + 4*T
        if 'qk' not in abl: at(nq, qk_step(T))
        nq += 1
    n_st = nq

    def red_hs(op, x, t):
        red_quad(op, x); red_swap(op, x, t, 16); red_swap(op, x, t, 32)
    def c_stat1():
        stamp("qkdone")
        a("v_max3_f32 v%d, v%d, v%d, v%d" % (vMx, vS, vS+1, vS+2))
        for i in range(3, 15, 2): a("v_max3_f32 v%d, v%d, v%d, v%d" % (vMx, vMx, vS+i, vS+i+1))
        a("v_max_f32 v%d, v%d, v%d" % (vMx, vMx, vS+15))
        red_hs("v_max_f32", vMx, vT[0])
    def c_stat2():
        for i in range(16):
            expsub(vD + i, vS + i, vMx)
            if i == 9: pump()
        nop(1)
        for st in (8, 4, 2, 1):
            for i in range(st): a("v_add_f32 v%d, v%d, v%d" % (vD+i, vD+i, vD+i+st))
        pump()
        red_hs("v_add_f32", vD, vT[0])
        a("v_mov_b32 v%d, v%d" % (vT[4], vMx)); a("v_mov_b32 v%d, v%d" % (vT[5], vD))
        a("v_bfe_u32 v%d, v%d, 2, 2" % (vT[0], vL)); a("s_lshl_b32 s%d, s%d, 3" % (sT, sW)); a("s_add_u32 s%d, s%d, %d" % (sT, sT, LS2))
        a("v_lshl_add_u32 v%d, v%d, 5, s%d" % (vT[1], vT[0], sT))
        a("s_mov_b64 exec, 0x1111"); a("ds_write_b64 v%d, %s" % (vT[1], r(vT[4], 2))); a("s_mov_b64 exec, -1")
        barrier()
        l2 = g.newlab("L_nost")
        a("s_cmp_lg_u32 s%d, 0" % sW); a("s_cbranch_scc1 " + l2)
        a("s_mov_b64 exec, 0x1111")
        a("v_lshlrev_b32 v%d, 5, v%d" % (vT[1], vT[0]))
        a("ds_read_b128 %s, v%d offset:%d" % (r(vD, 4), vT[1], LS2)); a("ds_read_b128 %s, v%d offset:%d" % (r(vD+4, 4), vT[1], LS2+16))
        wg_lin(sT); a("s_lshl_b32 s%d, s%d, 7" % (sT, sT)); a("s_add_u32 s%d, s%d, 0x%x" % (sT, sT, SX))
        a("v_lshlrev_b32 v%d, 3, v%d" % (vT[1], vT[0]))
        a("s_waitcnt lgkmcnt(0)")
        a("v_max3_f32 v%d, v%d, v%d, v%d" % (vT[4], vD, vD+2, vD+4)); a("v_max_f32 v%d, v%d, v%d" % (vT[4], vT[4], vD+6))
        for i in range(4): expsub(vD + 2*i, vD + 2*i, vT[4])
        nop(1)
        a("v_mul_f32 v%d, v%d, v%d" % (vT[5], vD, vD+1))
        for i in range(1, 4): a("v_fmac_f32 v%d, v%d, v%d" % (vT[5], vD+2*i, vD+2*i+1))
        a("buffer_store_dwordx2 %s, v%d, %s, s%d offen sc1" % (r(vT[4], 2), vT[1], srd(sWS), sT))
        a("s_mov_b64 exec, -1")
        g.lab(l2)
    if 'stat' not in abl: at(n_st, c_stat1); at(n_st+1, c_stat2)
    else: at(n_st, lambda: stamp('qkdone')); pass
    assert n_sg > n_st + 1
    def ld_sg(emit):
        emit("buffer_load_dwordx2 %s, v%d, %s, s%d offen sc1" % (r(vSG, 2), vAd[4], srd(sWS), sT2), "sg0")
        emit("buffer_load_dwordx2 %s, v%d, %s, s%d offen offset:2048 sc1" % (r(vSG+2, 2), vAd[4], srd(sWS), sT2), "sg1")
    def sg_base(): a("s_lshl_b32 s%d, s%d, 12" % (sT2, sG)); a("s_add_u32 s%d, s%d, 0x%x" % (sT2, sT2, SX))
    def c_sg():
        a("v_lshrrev_b32 v%d, 4, v%d" % (vT[0], vL)); a("v_and_b32 v%d, 3, v%d" % (vT[1], vL)); a("v_lshl_add_u32 v%d, v%d, 2, v%d" % (vT[0], vT[0], vT[1]))
        a("v_bfe_u32 v%d, v%d, 2, 2" % (vT[1], vL)); a("v_lshlrev_b32 v%d, 3, v%d" % (vT[1], vT[1])); a("v_lshl_add_u32 v%d, v%d, 7, v%d" % (vAd[4], vT[0], vT[1]))
        sg_base(); ld_sg(g.vm)
    def c_p():
        g.wait("sg1"); sg_base()
        retry(chk_sen(vSG, 4), lambda: ld_sg(lambda t, tag: a(t)))
        stamp("sgok")
        a("v_max_f32 v%d, v%d, v%d" % (vMx, vSG, vSG+2)); red_hs("v_max_f32", vMx, vT[0])
        pump()
        expsub(vSG, vSG, vMx); expsub(vSG+2, vSG+2, vMx); nop(1)
        a("v_mul_f32 v%d, v%d, v%d" % (vRl, vSG, vSG+1)); a("v_fmac_f32 v%d, v%d, v%d" % (vRl, vSG+2, vSG+3))
        red_hs("v_add_f32", vRl, vT[0]); a("v_rcp_f32 v%d, v%d" % (vRl, vRl))
    def c_p2():
        for i in range(16):
            expsub(vS + i, vS + i, vMx)
            if i == 9: pump()
        pump()
        for i in range(16): a("v_mul_f32 v%d, v%d, v%d" % (vS+i, vS+i, vRl))
        for i in range(16): a("v_cvt_pk_bf16_f32 v%d, v%d, v%d" % (vS+i, vS+i, vS+i))
        nop(2)
    if 'stat' not in abl: at(n_sg, c_sg); at(n_pv, c_p); at(n_pv+1, c_p2)
    else: at(n_pv, lambda: stamp('sgok'))

    pvn = [0]
    def pv_prep(j):
        if "pv" in abl: return
        T, u = divmod(j, 4); tp = vTP + 2*(j % 4)
        ctl = "quad_perm:[%d,%d,%d,%d]" % (u, u, u, u)
        dpp("v_and_b32", tp, vS + T, vM0, ctl); dpp("v_and_b32", tp+1, vS + T, vM1, ctl)
    def pv_mma(j):
        if "pv" in abl: return
        tp = vTP + 2*(j % 4)
        a("v_mfma_f32_16x16x16_bf16 %s, %s, %s, %s" % (r(vO, 4), r(tp, 2), ar(4*j, 2), r(vO, 4)))
        a("v_mfma_f32_16x16x16_bf16 %s, %s, %s, %s" % (r(vO+4, 4), r(tp, 2), ar(4*j+2, 2), r(vO+4, 4)))
    def pv_upto(jmax):
        while pvn[0] < jmax:
            j = pvn[0]
            if j == 0: pv_prep(0)
            if j + 1 < 64: pv_prep(j + 1)
            else: nop(1)
            g.wait("n%d" % (64 + j))
            pv_mma(j); pvn[0] += 1
    for n in range(n_pv + 5, 128):
        at(n, lambda: pv_upto(min(pvn[0] + pv_rate, nxt[0] - D - 64)))

    def w_load(i, kind="wo"):
        def f():
            if kind in abl: return
            a("s_lshl_b32 s%d, s%d, 13" % (sT, sW)); a("s_add_u32 m0, s%d, %d" % (sT, LW + i*1024))
            a("s_mul_i32 s%d, s%d, %d" % (sT2, sWST, i & 3))
            if i >= 4: a("s_add_u32 s%d, s%d, s%d" % (sT2, sT2, sWH))
            g.vm("buffer_load_dwordx4 v%d, %s, s%d offen %s lds" % (vAd[5], srd(sR1_ if i < 4 else sR2_), sT2, wpol), "w%d" % i)
        return f
    def c_pf():
        if "pf" in abl: return
        a("s_cmp_lt_u32 s%d, 2" % sW); a("s_cselect_b64 %s, %s, %s" % (sp(sPF), sp(sWGp), sp(sWUp)))
        a("s_mov_b32 s%d, %d" % (sPF+2, 512*3584)); a("s_mov_b32 s%d, 0x20000" % (sPF+3))
        a("s_lshl_b32 s%d, s%d, 1" % (sT, sS)); a("s_and_b32 s%d, s%d, 1" % (sT2, sW)); a("s_add_u32 s%d, s%d, s%d" % (sT, sT, sT2))
        if par is not None:
            a("s_mul_i32 s%d, s%d, %d" % (sT, sT, 8*3584)); a("s_lshr_b32 s%d, s%d, 1" % (sT2, sG)); a("s_mul_i32 s%d, s%d, 896" % (sT2, sT2)); sh, msk = 3, "0x7f7f7f7f"
        elif pf_role:
            a("s_sub_u32 s%d, s%d, 32" % (sT, sT)); a("s_mul_i32 s%d, s%d, %d" % (sT, sT, 16*3584)); a("s_mul_i32 s%d, s%d, 448" % (sT2, sG)); a("s_and_b32 s%d, s%d, 0xffffff80" % (sT2, sT2)); sh, msk = 2, None
        else:
            a("s_mul_i32 s%d, s%d, %d" % (sT, sT, 8*3584)); a("s_mul_i32 s%d, s%d, 448" % (sT2, sG)); a("s_and_b32 s%d, s%d, 0xffffff80" % (sT2, sT2)); sh, msk = 2, "lo"
        a("s_add_u32 s%d, s%d, s%d" % (sT, sT, sT2))
        a("v_lshrrev_b32 v%d, %d, v%d" % (vT[0], sh, vL)); a("v_mul_u32_u24 v%d, 3584, v%d" % (vT[0], vT[0])); a("v_and_b32 v%d, %d, v%d" % (vT[1], (1 << sh) - 1, vL))
        a("v_lshl_add_u32 v%d, v%d, 7, v%d" % (vT[0], vT[1], vT[0]))
        if msk == "lo": a("s_mov_b64 exec, 0xffffffff")
        elif msk: a("s_mov_b32 exec_lo, %s" % msk); a("s_mov_b32 exec_hi, %s" % msk)
        g.vm("buffer_load_dword v%d, v%d, %s, s%d offen %s" % (vCn, vT[0], srd(sPF), sT, pfpol), "pf")
        a("s_mov_b64 exec, -1")
    if par is not None: assert n_pf is None
    def c_tsig():
        l2 = g.newlab("L_notsig")
        a("s_cmp_lg_u32 s%d, 0" % sW); a("s_cbranch_scc1 " + l2)
        a("v_mov_b32 v%d, 1" % vT[1]); a("s_mov_b64 exec, 1"); a("buffer_atomic_add v%d, v%d, %s, 0 offen sc1" % (vT[1], vTX, srd(sWS))); a("s_mov_b64 exec, -1")
        g.lab(l2)
    if n_t: at(n_t, c_tsig)
    ld_t = lambda: "buffer_load_dword v%d, v%d, %s, 0 offen sc1" % (vTv, vTX, srd(sWS))
    def t_wait():
        lp, ok = g.newlab("L_twait"), g.newlab("L_tok")
        g.wait("tv"); a("s_mov_b32 s%d, 0" % sCNT)
        g.lab(lp)
        a("v_cmp_gt_i32 vcc, 31, v%d" % vTv); a("s_add_u32 s%d, s%d, 1" % (sCNT, sCNT)); a("s_cbranch_vccz " + ok)
        a("s_cmp_ge_u32 s%d, %d" % (sCNT, spin)); a("s_cbranch_scc1 " + ok)
        a("s_sleep %d" % tsleep); a(ld_t()); a("s_waitcnt vmcnt(0)"); a("s_branch " + lp)
        g.lab(ok)
    if n_pf is not None: at(n_pf, c_pf)
    def wo_early(i):
        def f():
            l2 = g.newlab("L_nowo"); a("s_cmp_lg_u32 s%d, 0" % sROLE); a("s_cbranch_scc1 " + l2); q0 = list(g.q); w_load(i)(); g.q = q0; g.lab(l2)
        return f
    if wo_at:
        for i in range(8): at(wo_at[0] + i*wo_at[1], wo_early(i))

    work.sort(key=lambda x: x[:2])
    while nxt[0] < 128 or work:
        pump()
        while work and work[0][0] <= nxt[0] - 1:
            work.pop(0)[2]()
    stamp("lastissue")
    LB, LC, LD = "L_roleB", "L_roleC", "L_roleD"
    if "tail" in abl:
        pv_upto(64); stamp("pvdone"); stamp("opub"); a("s_branch L_fin"); nst[0] -= 2; del stn[-2:]
    a("s_cmp_eq_u32 s%d, 2" % sROLE); a("s_cbranch_scc1 " + LD)
    a("s_cmp_eq_u32 s%d, 1" % sROLE); a("s_cbranch_scc1 " + LC)
    q_save = list(g.q); pv_save = pvn[0]; nst_save = nst[0]

    def republish(role):
        if fast1 and (par is None or role == "B"):
            a("s_mov_b64 exec, 0xffffffff"); a("buffer_store_dwordx4 %s, v%d, %s, 0 offen sc1" % (r(vO, 4), vAd[8], srd(sWS))); a("s_mov_b64 exec, -1")
    def drain_publish(extra=(), role="C"):
        a("s_lshl_b32 s%d, s%d, 11" % (sT, sW)); a("v_lshl_add_u32 v%d, v%d, 5, s%d" % (vT[10], vL, sT))
        a("s_lshl_b32 s%d, s%d, 9" % (sT, sW)); a("v_and_b32 v%d, 31, v%d" % (vT[11], vL)); a("v_lshl_add_u32 v%d, v%d, 4, s%d" % (vT[11], vT[11], sT))
        extra = list(extra); k = 0
        while pvn[0] < 64:
            pv_upto(pvn[0] + 1); k += 1
            if extra and k > ex_at and pvn[0] < 64: extra.pop(0)()
        assert not extra or 'tail' in abl
        stamp("pvdone")
        nop(7)
        a("ds_write_b128 v%d, %s offset:%d" % (vT[10], r(vO, 4), LO)); a("ds_write_b128 v%d, %s offset:%d" % (vT[10], r(vO+4, 4), LO + 16))
        a("s_mov_b64 exec, 0xffffffff")
        a("s_waitcnt lgkmcnt(0)"); a("s_barrier")
        for w in range(4): a("ds_read_b128 %s, v%d offset:%d" % (r(vD + 4*w, 4), vT[11], LO + 2048*w))
        a("s_waitcnt lgkmcnt(2)")
        for h in range(2): a("v_pk_add_f32 %s, %s, %s" % (r(vD+2*h, 2), r(vD+2*h, 2), r(vD+4+2*h, 2)))
        a("s_waitcnt lgkmcnt(0)")
        for h in range(2): a("v_pk_add_f32 %s, %s, %s" % (r(vD+8+2*h, 2), r(vD+8+2*h, 2), r(vD+12+2*h, 2)))
        for h in range(2): a("v_pk_add_f32 %s, %s, %s" % (r(vD+2*h, 2), r(vD+2*h, 2), r(vD+8+2*h, 2)))
        if fast1 and (par is None or role == "B"):
            a("buffer_store_dwordx4 %s, v%d, %s, 0 offen" % (r(vD, 4), vAd[8], srd(sWS)))
            for i in range(4): a("v_mov_b32 v%d, v%d" % (vO + i, vD + i))
        else:
            a("buffer_store_dwordx4 %s, v%d, %s, 0 offen sc1" % (r(vD, 4), vAd[8], srd(sWS)))
        a("s_mov_b64 exec, -1")
        stamp("opub")
    def finish(role):
        if probe and role in probe[0]:
            ia, ib = stn.index(probe[1]), stn.index(probe[2]); lp = g.newlab("L_probe"); lq = g.newlab("L_noprobe")
            if len(probe) > 4: a("s_and_b32 s%d, s2, %d" % (sT, probe[4])); a("s_cmp_lg_u32 s%d, %d" % (sT, probe[5])); a("s_cbranch_scc1 " + lq)
            a("s_waitcnt lgkmcnt(0)")
            a("s_sub_u32 s%d, s%d, s%d" % (sT, sST + 2*ib, sST + 2*ia)); a("s_mul_i32 s%d, s%d, %d" % (sT, sT, probe[3]))
            a("s_min_u32 s%d, s%d, 100000" % (sT, sT)); a("s_add_u32 s%d, s%d, %d" % (sT, sT, probe_base))
            g.lab(lp)
            a("s_memrealtime s[54:55]"); a("s_waitcnt lgkmcnt(0)"); a("s_sub_u32 s%d, s54, s%d" % (sT2, sST))
            a("s_cmp_lt_u32 s%d, s%d" % (sT2, sT)); a("s_cbranch_scc1 " + lp)
            g.lab(lq)
        if stamps:
            a("s_waitcnt lgkmcnt(0)")
            a("s_lshl_b32 s%d, s2, 2" % sT); a("s_add_u32 s%d, s%d, s%d" % (sT, sT, sW)); a("s_lshl_b32 s%d, s%d, 6" % (sT, sT)); a("s_add_u32 s%d, s%d, 0x%x" % (sT, sT, STAMP))
            a("s_mov_b64 exec, 1"); a("v_mov_b32 v%d, s%d" % (vT[0], sT))
            for i in range(16):
                a("v_mov_b32 v%d, %s" % (vG + i, ("s%d" % (sST + 2*i)) if i < nst[0] else "0"))
            for i in range(4): a("buffer_store_dwordx4 %s, v%d, %s, 0 offen offset:%d" % (r(vG+4*i, 4), vT[0], srd(sWS), 16*i))
        a("s_endpgm")
    def attn_to_hpk(x, p):
        red_swap_n("v_add_f32", G4, G4b, 32)
        rbf2(vG, vG+1, vG, vG+1, vT[0]); rbf2(vG+2, vG+3, vG+2, vG+3, vT[1])
        for h in range(2): a("v_pk_add_f32 %s, %s, %s" % (r(vG+2*h, 2), r(vG+2*h, 2), r(x+2*h, 2)))
        a("v_cvt_pk_bf16_f32 v%d, v%d, v%d" % (p, vG, vG+1)); a("v_cvt_pk_bf16_f32 v%d, v%d, v%d" % (p+1, vG+2, vG+3))

    g.lab(LB)
    a("s_lshr_b32 s%d, s%d, 1" % (sT, sCI)); a("s_lshl_b32 s%d, s%d, 16" % (sT, sT)); a("s_and_b32 s%d, s%d, 1" % (sT2, sCI)); a("s_lshl_b32 s%d, s%d, 10" % (sT2, sT2)); a("s_add_u32 s%d, s%d, s%d" % (sT, sT, sT2))
    a("s_lshl_b32 s%d, s%d, 8" % (sT2, sW)); a("s_add_u32 s%d, s%d, s%d" % (sT, sT, sT2))
    a("v_lshrrev_b32 v%d, 4, v%d" % (vT[2], vL)); a("v_and_b32 v%d, 15, v%d" % (vT[4], vL))
    a("v_lshlrev_b32 v%d, 11, v%d" % (vT[0], vT[2])); a("v_lshl_add_u32 v%d, v%d, 4, v%d" % (vT[0], vT[4], vT[0])); a("v_add_u32 v%d, s%d, v%d" % (vAd[6], sT, vT[0]))
    a("s_lshl_b32 s%d, s%d, 13" % (sT, sW))
    a("v_lshrrev_b32 v%d, 5, v%d" % (vT[0], vL)); a("v_lshlrev_b32 v%d, 10, v%d" % (vT[0], vT[0]))
    a("v_and_b32 v%d, 31, v%d" % (vT[1], vL)); a("v_lshl_add_u32 v%d, v%d, 3, v%d" % (vT[0], vT[1], vT[0])); a("v_add_u32 v%d, s%d, v%d" % (vT[3], sT, vT[0]))
    a("s_lshl_b32 s%d, s%d, 8" % (sT, sW)); a("v_lshl_add_u32 v%d, v%d, 3, s%d" % (vAd[2], vT[4], sT))
    a("s_add_u32 s%d, s%d, %d" % (sT, sT, LACT2)); a("v_lshl_add_u32 v%d, v%d, 3, s%d" % (vAd[3], vT[2], sT))
    a("s_lshl_b32 s%d, s%d, 2" % (sT, sW)); a("v_lshl_add_u32 v%d, v%d, 4, s%d" % (vAd[4], vL, sT))
    a("s_lshl_b32 s%d, s%d, 11" % (sT, sCI)); a("s_lshl_b32 s%d, s%d, 8" % (sT2, sCB)); a("s_add_u32 s%d, s%d, s%d" % (sT, sT, sT2)); a("s_add_u32 s%d, s%d, 0x%x" % (sT, sT, AX))
    a("v_lshl_add_u32 v%d, v%d, 2, s%d" % (vAd[7], vL, sT)); a("v_lshlrev_b32 v%d, 4, v%d" % (vAd[9], vL))
    if wo_at or wo_late: drain_publish(role='B')
    elif D > 8 + ex_at: drain_publish([w_load(i) for i in range(8)], 'B')
    else:
        for i in range(9 + ex_at - D): w_load(i)()
        drain_publish([w_load(i) for i in range(9 + ex_at - D, 8)], 'B')
    def b_pre():
        if wo_late:
            if wo_late == 2: g.wait("g7")
            for i in range(8): w_load(i)()
        g.wait("w7")
        for ks in range(2):
            for c in range(4):
                for rr in range(2):
                    a("ds_read_b64_tr_b16 %s, v%d offset:%d" % (r(vW + 16*ks + 4*c + 2*rr, 2), vT[3], LW + (4*ks + 2*rr)*1024 + c*256))
    gather(8, vAd[6], [OX + 4*i*2048 for i in range(8)], b_pre, post=(lambda: republish('B')) if fast1 else None)
    stamp("x1ok")
    red_swap_n("v_add_f32", G4, G4b, 16); red_swap_n("v_add_f32", G4, G4b, 32)
    a("v_cvt_pk_bf16_f32 v%d, v%d, v%d" % (vT[4], vG, vG+1)); a("v_cvt_pk_bf16_f32 v%d, v%d, v%d" % (vT[5], vG+2, vG+3))
    a("ds_write_b64 v%d, %s offset:%d" % (vAd[2], r(vT[4], 2), LACT2))
    for ks in range(2): a("ds_read2_b64 %s, v%d offset0:%d offset1:%d" % (r(vA + 4*ks, 4), vAd[3], ks*8, ks*8 + 4))
    for ks in range(2):
        a("s_waitcnt lgkmcnt(%d)" % (1 - ks))
        for c in range(4):
            a("v_mfma_f32_16x16x32_bf16 %s, %s, %s, %s" % (r(vD + 4*c, 4), r(vA + 4*ks, 4), r(vW + 16*ks + 4*c, 4), r(vD + 4*c, 4) if ks else "0"))
    nop(7)
    sel_tile(vT[0], vD)
    a("ds_write_b32 v%d, v%d offset:%d" % (vAd[4], vT[0], LRED2))
    lb = g.newlab("L_bdone")
    a("s_cmp_lg_u32 s%d, 0" % sW)
    a("s_waitcnt lgkmcnt(0)"); a("s_barrier")
    a("s_cbranch_scc1 " + lb)
    a("ds_read_b128 %s, v%d offset:%d" % (r(vD, 4), vAd[9], LRED2)); a("s_waitcnt lgkmcnt(0)")
    sum4(vD)
    a("buffer_store_dword v%d, v%d, %s, 0 offen sc1" % (vD, vAd[7], srd(sWS)))
    g.lab(lb)
    stamp("bpub")
    finish("B")
    stB = list(stn)

    g.lab(LC); g.q = list(q_save); pvn[0] = pv_save; nst[0] = nst_save; del stn[nst_save:]
    a("v_lshrrev_b32 v%d, 4, v%d" % (vT[2], vL)); a("v_and_b32 v%d, 15, v%d" % (vT[4], vL))
    a("s_lshl_b32 s%d, s%d, 14" % (sT, sCI)); a("s_lshl_b32 s%d, s%d, 8" % (sT2, sW)); a("s_add_u32 s%d, s%d, s%d" % (sT, sT, sT2))
    a("v_lshlrev_b32 v%d, 12, v%d" % (vT[0], vT[2])); a("v_lshl_add_u32 v%d, v%d, 4, v%d" % (vT[0], vT[4], vT[0])); a("v_add_u32 v%d, s%d, v%d" % (vAd[7], sT, vT[0]))
    def wd_load(t):
        return lambda: None if "wd" in abl else g.vm("buffer_load_dwordx4 %s, v%d, %s, 0 offen offset:%d %s" % (r(vWD + 4*t, 4), vAd[7], srd(sWD), t*1024, wpol), "wd%d" % t)
    wdl = [wd_load(t) for t in range(4)]
    if cw_late:
        drain_publish(wdl if wd_pos == 'drain' else ()); c_pf()
    else:
        c_pf(); drain_publish(wdl if wd_pos == 'drain' else ())
    if wd_pos == 'before':
        for f in wdl: f()
    for i in range(8): w_load(i, 'cw')()
    if wd_pos == 'after':
        for f in wdl: f()
    a("v_and_b32 v%d, 4, v%d" % (vT[0], vL)); a("v_cmp_ne_u32 vcc, 0, v%d" % vT[0])
    a("s_lshl_b32 s%d, s%d, 13" % (sT, sW)); a("v_lshl_add_u32 v%d, v%d, 3, s%d" % (vT[3], vL, sT))
    cnd(vP, "v%d" % vM0, "0", "vcc"); cnd(vP+1, "v%d" % vM1, "0", "vcc"); cnd(vP+2, "0", "v%d" % vM0, "vcc"); cnd(vP+3, "0", "v%d" % vM1, "vcc")
    a("s_lshl_b32 s%d, s%d, 8" % (sT, sW)); a("s_add_u32 s%d, s%d, %d" % (sT, sT, LACT2)); a("v_lshl_add_u32 v%d, v%d, 3, s%d" % (vAd[3], vT[2], sT))
    a("v_mov_b32 v%d, %d" % (vT[0], LONE)); cnd(vAd[3], "v%d" % vAd[3], "v%d" % vT[0], sp(sB0))
    a("v_and_b32 v%d, 31, v%d" % (vT[0], vL)); a("s_lshl_b32 s%d, s%d, 2" % (sT, sW)); a("v_lshl_add_u32 v%d, v%d, 4, s%d" % (vAd[4], vT[0], sT))
    a("v_and_b32 v%d, 3, v%d" % (vT[1], vL)); a("v_lshl_add_u32 v%d, v%d, 2, v%d" % (vT[0], vT[2], vT[1])); a("v_lshlrev_b32 v%d, 4, v%d" % (vAd[9], vT[0]))
    a("s_lshl_b32 s%d, s%d, 11" % (sT, sCI)); a("s_lshl_b32 s%d, s%d, 9" % (sT2, sW)); a("s_add_u32 s%d, s%d, s%d" % (sT, sT, sT2)); a("s_add_u32 s%d, s%d, 0x%x" % (sT, sT, DX))
    a("v_bfe_u32 v%d, v%d, 4, 1" % (vT[1], vL)); a("v_lshlrev_b32 v%d, 5, v%d" % (vT[0], vT[4])); a("v_lshl_add_u32 v%d, v%d, 4, v%d" % (vT[0], vT[1], vT[0])); a("v_add_u32 v%d, s%d, v%d" % (vAd[2], sT, vT[0]))
    a("s_lshl_b32 s%d, s%d, 2" % (sT, sW)); a("s_add_u32 s%d, s%d, %d" % (sT, sT, LST2)); a("v_mov_b32 v%d, s%d" % (vAd[0], sT)); a("v_mov_b32 v%d, %d" % (vAd[5], LST2))
    def c_pre():
        g.wait("w7")
        for mi in range(2):
            for ks in range(4):
                for rr in range(2):
                    a("ds_read_b64_tr_b16 %s, v%d offset:%d" % (r(vW + 16*mi + 4*ks + 2*rr, 2), vT[3], LW + mi*4096 + ks*1024 + rr*512))
        stamp("cwok")
    if ax_early: gather(8, vAd[6], [AX + 2*i*2048 for i in range(8)], c_pre)
    else: c_pre(); gather(8, vAd[6], [AX + 2*i*2048 for i in range(8)])
    stamp("x2ok")
    attn_to_hpk(vX, vT[4])
    a("ds_write_b64 v%d, %s offset:%d" % (vAd[1], r(vT[4], 2), LACT2))
    for ks in range(4): a("ds_read2_b64 %s, v%d offset0:%d offset1:%d" % (r(vA + 4*ks, 4), vAd[3], ks*8, ks*8 + 4))
    unpack4(vH, vT[4])
    a("v_pk_mul_f32 %s, %s, %s" % (r(vG, 2), r(vH, 2), r(vH, 2))); a("v_pk_add_f32 %s, %s, %s" % (r(vG+2, 2), r(vH, 2), r(vH+2, 2)))
    a("v_pk_fma_f32 %s, %s, %s, %s" % (r(vG, 2), r(vH+2, 2), r(vH+2, 2), r(vG, 2)))
    a("v_add_f32 v%d, v%d, v%d" % (vT[6], vG+2, vG+3)); a("v_add_f32 v%d, v%d, v%d" % (vT[7], vG, vG+1))
    for ks in range(4):
        a("s_waitcnt lgkmcnt(%d)" % (3 - ks))
        for mi in range(2):
            a("v_mfma_f32_16x16x32_bf16 %s, %s, %s, %s" % (r(vD + 4*mi, 4), r(vA + 4*ks, 4), r(vW + 16*mi + 4*ks, 4), r(vD + 4*mi, 4) if ks else "0"))
    red32x2(vT[6], vT[7], vT[0], vT[1])
    cnd(vT[0], "v%d" % vD, "v%d" % (vD+4), sp(sR1)); cnd(vT[1], "v%d" % (vD+1), "v%d" % (vD+5), sp(sR1))
    a("ds_write2st64_b32 v%d, v%d, v%d offset0:%d offset1:%d" % (vAd[4], vT[0], vT[1], LRED2//256, LRED2//256 + 2))
    a("s_mov_b64 exec, 1"); a("ds_write2_b32 v%d, v%d, v%d offset0:0 offset1:4" % (vAd[0], vT[6], vT[7])); a("s_mov_b64 exec, -1")
    a("s_waitcnt lgkmcnt(0)"); a("s_barrier")
    a("ds_read_b128 %s, v%d" % (r(vG, 4), vAd[5])); a("ds_read_b128 %s, v%d offset:16" % (r(vG+4, 4), vAd[5]))
    for i in range(4): a("ds_read_b128 %s, v%d offset:%d" % (r(vD + 4*i, 4), vAd[9], LRED2 + 256*i))
    a("s_waitcnt lgkmcnt(4)")
    a("v_pk_add_f32 %s, %s, %s" % (r(vG, 2), r(vG, 2), r(vG+2, 2))); a("v_pk_add_f32 %s, %s, %s" % (r(vG+4, 2), r(vG+4, 2), r(vG+6, 2)))
    a("v_add_f32 v%d, v%d, v%d" % (vG, vG, vG+1)); a("v_add_f32 v%d, v%d, v%d" % (vG+4, vG+4, vG+5))
    a("v_mul_f32 v%d, 0x3b000000, v%d" % (vG, vG)); a("v_mul_f32 v%d, 0x3b000000, v%d" % (vG+4, vG+4))
    a("v_fma_f32 v%d, -v%d, v%d, v%d" % (vG+4, vG, vG, vG+4)); a("v_max_f32 v%d, 0, v%d" % (vG+4, vG+4))
    if exactLN:
        rbf2(vG, vG+4, vG, vG+4, vT[1]); a("v_add_f32 v%d, 0x%x, v%d" % (vG+4, EPS, vG+4)); rbf(vG+4, vG+4); a("v_sqrt_f32 v%d, v%d" % (vG+4, vG+4))
        a("s_waitcnt lgkmcnt(0)")
        a("v_pk_add_f32 %s, %s, %s" % (r(vD, 2), r(vD, 2), r(vD+2, 2)))
        rbf(vG+4, vG+4); a("v_rcp_f32 v%d, v%d" % (vG+4, vG+4))
    else:
        a("v_add_f32 v%d, 0x%x, v%d" % (vG+4, EPS, vG+4)); a("v_rsq_f32 v%d, v%d" % (vG+4, vG+4))
        a("s_waitcnt lgkmcnt(0)")
        a("v_pk_add_f32 %s, %s, %s" % (r(vD, 2), r(vD, 2), r(vD+2, 2)))
    for i in range(1, 4): a("v_pk_add_f32 %s, %s, %s" % (r(vD+4*i, 2), r(vD+4*i, 2), r(vD+4*i+2, 2)))
    for i in range(4): a("v_add_f32 v%d, v%d, v%d" % (vD+4*i, vD+4*i, vD+4*i+1))
    a("v_fma_f32 v%d, -v%d, v%d, v%d" % (vD, vG, vD+8, vD)); a("v_fma_f32 v%d, -v%d, v%d, v%d" % (vD+4, vG, vD+12, vD+4))
    a("v_mul_f32 v%d, v%d, v%d" % (vD, vD, vG+4)); a("v_mul_f32 v%d, v%d, v%d" % (vD+4, vD+4, vG+4))
    rbf2(vT[0], vT[1], vD, vD+4, vT[2])
    a("v_mul_f32 v%d, s%d, v%d" % (vT[0], sL2E, vT[0])); a("v_exp_f32 v%d, -v%d" % (vT[0], vT[0])); nop(1)
    a("v_add_f32 v%d, 1.0, v%d" % (vT[0], vT[0])); a("v_rcp_f32 v%d, v%d" % (vT[0], vT[0])); nop(1)
    rbf(vT[0], vT[0]); a("v_mul_f32 v%d, v%d, v%d" % (vT[0], vT[0], vT[1])); a("v_cvt_pk_bf16_f32 v%d, v%d, v%d" % (vT[0], vT[0], vT[0])); nop(2)
    for t in range(4):
        for j in range(4): dpp("v_and_b32", vA + 4*t + j, vT[0], vP + j, "quad_perm:[%d,%d,%d,%d]" % (t, t, t, t))
        if t >= 1: a("v_mfma_f32_16x16x32_bf16 %s, %s, %s, %s" % (r(vD, 4), r(vA + 4*(t-1), 4), r(vWD + 4*(t-1), 4), r(vD, 4) if t > 1 else "0"))
    nop(1)
    a("v_mfma_f32_16x16x32_bf16 %s, %s, %s, %s" % (r(vD, 4), r(vA + 12, 4), r(vWD + 12, 4), r(vD, 4)))
    nop(7)
    a("s_mov_b64 exec, 0xffffffff")
    a("buffer_store_dwordx4 %s, v%d, %s, 0 offen sc1" % (r(vD, 4), vAd[2], srd(sWS)))
    a("s_mov_b64 exec, -1")
    stamp("cpub")
    finish("C")
    stC = list(stn)

    g.lab(LD); g.q = list(q_save); pvn[0] = pv_save; nst[0] = nst_save; del stn[nst_save:]
    a("v_and_b32 v%d, 7, v%d" % (vT[4], vL)); a("s_lshl_b32 s%d, s%d, 6" % (sT, sCI)); a("v_lshl_add_u32 v%d, v%d, 3, s%d" % (vAd[7], vT[4], sT))
    g.vm("buffer_load_dwordx2 %s, v%d, %s, 0 offen" % (r(vXr, 2), vAd[7], srd(sX)), "x2")
    a("s_lshl_b32 s%d, s%d, 7" % (sT, sCI)); a("v_lshrrev_b32 v%d, 5, v%d" % (vT[0], vL)); a("v_lshlrev_b32 v%d, 11, v%d" % (vT[0], vT[0]))
    a("v_lshl_add_u32 v%d, v%d, 4, v%d" % (vT[0], vT[4], vT[0])); a("v_add_u32 v%d, s%d, v%d" % (vAd[6], sT, vT[0]))
    a("s_lshl_b32 s%d, s%d, 14" % (sT2, sW)); a("s_add_u32 s%d, s%d, s%d" % (sT, sT, sT2))
    a("v_lshrrev_b32 v%d, 3, v%d" % (vT[0], vL)); a("v_lshlrev_b32 v%d, 11, v%d" % (vT[0], vT[0])); a("v_lshl_add_u32 v%d, v%d, 4, v%d" % (vT[0], vT[4], vT[0])); a("v_add_u32 v%d, s%d, v%d" % (vAd[5], sT, vT[0]))
    a("s_lshl_b32 s%d, s%d, 7" % (sT, sW)); a("v_lshl_add_u32 v%d, v%d, 4, s%d" % (vAd[4], vT[4], sT)); a("v_lshlrev_b32 v%d, 4, v%d" % (vAd[9], vT[4]))
    if cw_late:
        drain_publish(); c_pf()
    else:
        c_pf(); drain_publish()
    gather(8, vAd[6], [AX + 2*i*2048 for i in range(8)])
    stamp("x2ok")
    unpack4(vX, vXr)
    attn_to_hpk(vX, vT[4]); unpack4(vH, vT[4])
    l3, l4 = g.newlab("L_d3"), g.newlab("L_d4")
    a("s_cmp_ge_u32 s%d, 2" % sW); a("s_cbranch_scc1 " + l3)
    gather(4, vAd[5], [DX + 32*i*2048 for i in range(4)], delay=d3)
    a("s_branch " + l4)
    g.lab(l3)
    gather(3, vAd[5], [DX + 32*i*2048 for i in range(3)], delay=d3)
    g.lab(l4)
    stamp("x3ok")
    nop(1)
    for i in range(4): dpp("v_add_f32", vG+i, vG+i, vG+i, "row_ror:8")
    red_swap_n("v_add_f32", G4, G4b, 16); red_swap_n("v_add_f32", G4, G4b, 32)
    a("s_mov_b64 exec, 0xff"); a("ds_write_b128 v%d, %s offset:%d" % (vAd[4], r(vG, 4), LRED2))
    ld = g.newlab("L_ddone")
    a("s_cmp_lg_u32 s%d, 0" % sW)
    a("s_waitcnt lgkmcnt(0)"); a("s_barrier")
    a("s_cbranch_scc1 " + ld)
    for w in range(4): a("ds_read_b128 %s, v%d offset:%d" % (r(vG + 4*w, 4), vAd[9], LRED2 + 128*w))
    a("s_waitcnt lgkmcnt(0)")
    sum_g(4)
    rbf2(vG, vG+1, vG, vG+1, vT[0]); rbf2(vG+2, vG+3, vG+2, vG+3, vT[1])
    for h in range(2): a("v_pk_add_f32 %s, %s, %s" % (r(vG+2*h, 2), r(vG+2*h, 2), r(vH+2*h, 2)))
    a("v_cvt_pk_bf16_f32 v%d, v%d, v%d" % (vT[4], vG, vG+1)); a("v_cvt_pk_bf16_f32 v%d, v%d, v%d" % (vT[5], vG+2, vG+3))
    a("buffer_store_dwordx2 %s, v%d, %s, 0 offen" % (r(vT[4], 2), vAd[7], srd(sOUT)))
    g.lab(ld)
    a("s_mov_b64 exec, -1")
    stamp("out")
    g.lab("L_fin")
    finish("D")
    stD = list(stn)
    g.lab("L_end"); a("s_endpgm")

    import numpy as np
    gg, ss = np.arange(256) & 7, np.arange(256) >> 3
    roles = {"B": ss < 16, "C": (ss >= 16) & (ss < 30), "D": ss >= 30} if par is None else {"B": (gg & 1) == par, "C": ((gg & 1) != par) & (ss < 28), "D": ((gg & 1) != par) & (ss >= 28)}
    hdr = """; Fused decode layer: LN -> q proj -> GQA attention over the KV cache -> out proj -> LN -> GLU MLP, one persistent launch.
; 256 workgroups (one per CU) x 4 waves. Hand-offs through d_ws carry self-validating words (cleared at entry, clears counted in d_debug).
; @launch grid=(256,1,1) block=(256,1,1) lds=%d
.amdgcn_target "amdgcn-amd-amdhsa--gfx950"
.text
.globl %s_kernel
.p2align 8
.type %s_kernel,@function
%s_kernel:
""" % (LDS_SIZE, KN, KN, KN)
    ftr = """
.section .rodata,"a"
.p2align 6
.amdhsa_kernel %s_kernel
  .amdhsa_next_free_vgpr 512
  .amdhsa_next_free_sgpr 102
  .amdhsa_accum_offset 256
  .amdhsa_group_segment_fixed_size 0
  .amdhsa_kernarg_size 96
  .amdhsa_user_sgpr_count 2
  .amdhsa_user_sgpr_kernarg_segment_ptr 1
  .amdhsa_system_sgpr_workgroup_id_x 1
  .amdhsa_float_denorm_mode_32 3
.end_amdhsa_kernel
""" % KN
    return hdr + "\n".join(g.L) + ftr, dict(B=stB, C=stC, D=stD, nv=g.vn, roles=roles)

if __name__ == "__main__":
    kw = eval("dict(%s)" % (sys.argv[2] if len(sys.argv) > 2 else ""))
    src, info = gen(**kw)
    open(sys.argv[1], "w").write(src); print(len(src))
```

```python
import sys
KN = "sequential_preLN__gqa_block_cached__glu_gated_glu__decode"

SX = 0x60000
TX = 0x2000
AX = 0x4000
QX = 0x10000
DX = 0x20000
OX = 0x80000
WS_USED = 0x100000
OOB = 0x20000000
STAMP = 0x200000
LW   = 0
LWQ  = 0x8000
LACT = 0xC000
LACT2= 0xC400
LQ   = 0xC800
LRED = 0xCC00
LRED2= 0xD000
LONE = 0xD400
LST  = 0xD600
LST2 = 0xD640
LS2  = 0xD680
LO   = 0xD800
LDS_SIZE = 0xF800

LOG2E = 0x3FB8AA3B
SCALE = 0x3DB504F3
EPS   = 0x3727C5AC

class G:
    def __init__(s):
        s.L = []; s.q = []; s.nlab = 0; s.vn = 0; s.names = {}
    def a(s, x): s.L.append("  " + x)
    def lab(s, x): s.L.append(x + ":")
    def newlab(s, p="L"):
        s.nlab += 1; return "%s_%d" % (p, s.nlab)
    def v(s, name, n=1, align=1):
        if n > 1: align = max(align, 2)
        s.vn = (s.vn + align - 1)//align*align
        r = s.vn; s.vn += n; s.names[name] = r
        assert s.vn <= 256
        return r
    def vm(s, txt, tag):
        s.a(txt); s.q.append(tag)
    def wait(s, tag):
        if tag not in s.q: return
        i = s.q.index(tag); n = len(s.q) - 1 - i
        assert n <= 63
        s.a("s_waitcnt vmcnt(%d)" % n); s.q = s.q[i+1:]
    def waitall(s):
        s.a("s_waitcnt vmcnt(0)"); s.q = []

def r(a, n): return "v[%d:%d]" % (a, a+n-1)
def ar(a, n): return "a[%d:%d]" % (a, a+n-1)
def sp(a): return "s[%d:%d]" % (a, a+1)
DPP = " row_mask:0xf bank_mask:0xf"

def gen(D=8, D0=None, pol="nt", wpol="nt", stamps=False, n_x0=None, n_cnt=None, n_q=None, n_qk=60, n_sg=None, n_pv=108, K0=8, pv_rate=6,
        n_pf=None, pfpol="", ex_at=0, spin=1 << 16, probe=None, probe_base=4000, exactLN=True, retry_mode="mask", cyc=False, psleep=1, abl=(), d3=28, wo_at=None, par=0, pf_role=True, n_t=None, tsleep=2, fast1=False, repub_at=3, cw_late=True, wo_late=False, wd_pos='drain', ax_early=False, ssig=True, early=True, outpol='', dbgst=False, cpf=True, cpfpol=''):
    g = G(); a = g.a
    if D0 is None: D0 = D
    if n_x0 is None: n_x0 = D0 + D
    if n_q is None: n_q = n_qk - D
    if n_cnt is None: n_cnt = n_q - D
    if n_sg is None: n_sg = n_pv - D
    sW, sG, sS = 3, 4, 5
    sK, sV, sWS, sX, sWQ, sR1_, sR2_, sWD, sOUT, sDBG = 8, 12, 16, 20, 24, 28, 32, 36, 40, 44
    sWOp, sWGp, sWUp = 48, 50, 52
    sB0, sB1, sR1, sR2 = 54, 56, 58, 60
    sT, sT2, sOFF, sCNT = 62, 63, 6, 7
    sKB, sCB, sCI = 64, 65, 66
    sL2E, sSC = 67, 68
    sWST, sWH = 69, 70
    sMK = 48
    sPF = 72
    sBASE = 74
    sROLE = 71
    sST = 76
    nst = [0]; stn = []
    def stamp(name):
        if stamps or probe:
            a("%s s[%d:%d]" % ("s_memtime" if cyc else "s_memrealtime", sST + 2*nst[0], sST + 2*nst[0] + 1)); nst[0] += 1; stn.append(name)
            assert sST + 2*nst[0] <= 104
    def srd(b): return "s[%d:%d]" % (b, b+3)
    g.v("tid"); vL = g.v("lane"); vKo = g.v("koff"); vVo = g.v("voff")
    vM0 = g.v("m0"); vM1 = g.v("m1")
    vT = [g.v("t%d" % i) for i in range(12)]
    vX = g.v("x", 4); vQ = g.v("q", 4); vS = g.v("S", 16); vD = g.v("D", 16); vO = g.v("O", 8); vTP = g.v("TP", 8)
    vA = g.v("A", 16); vW = g.v("W", 32); vWD = g.v("WD", 16); vG = g.v("G", 32); vH = g.v("H", 4); vP = g.v("P", 4)
    vAd = [g.v("ad%d" % i) for i in range(10)]
    vMx = g.v("mx"); vRl = g.v("rl"); vCn = g.v("cn"); vCSg = g.v("csg"); vCSu = g.v("csu")
    vSG = g.v("sg", 4); vSen = g.v("sen", 4); vXr = g.v("xr", 2); vE = g.v("E", 8); vXf = g.v("xf", 4); vXa = g.v("xa", 4); vTX = g.v("tx"); vTv = g.v("tv")
    assert vT[4] % 2 == 0

    def nop(n): a("s_nop %d" % (n-1))
    def dpp(op, d, s0, s1, ctl): a("%s_dpp v%d, v%d, v%d %s%s" % (op, d, s0, s1, ctl, DPP))
    def red_quad(op, x):
        nop(2); dpp(op, x, x, x, "quad_perm:[1,0,3,2]"); nop(2); dpp(op, x, x, x, "quad_perm:[2,3,0,1]")
    def red_swap(op, x, t, which):
        a("v_mov_b32 v%d, v%d" % (t, x)); nop(2); a("v_permlane%d_swap_b32 v%d, v%d" % (which, x, t)); a("%s v%d, v%d, v%d" % (op, x, x, t))
    def red_swap_n(op, xs, ts, which):
        for x, t in zip(xs, ts): a("v_mov_b32 v%d, v%d" % (t, x))
        if len(xs) < 3: nop(3 - len(xs))
        for x, t in zip(xs, ts): a("v_permlane%d_swap_b32 v%d, v%d" % (which, x, t))
        for x, t in zip(xs, ts): a("%s v%d, v%d, v%d" % (op, x, x, t))
    def red32(x, t):
        red_quad("v_add_f32", x); nop(2); dpp("v_add_f32", x, x, x, "row_half_mirror"); nop(2); dpp("v_add_f32", x, x, x, "row_mirror")
        red_swap("v_add_f32", x, t, 16)
    def red32x2(x, y, t, t2):
        nop(1)
        for ctl in ("quad_perm:[1,0,3,2]", "quad_perm:[2,3,0,1]", "row_half_mirror", "row_mirror"):
            dpp("v_add_f32", x, x, x, ctl); dpp("v_add_f32", y, y, y, ctl); nop(1)
        red_swap_n("v_add_f32", [x, y], [t, t2], 16)
    def rbf(d, s_):
        a("v_cvt_pk_bf16_f32 v%d, v%d, v%d" % (d, s_, s_)); a("v_lshlrev_b32 v%d, 16, v%d" % (d, d))
    def rbf2(d0, d1, s0, s1, t):
        a("v_cvt_pk_bf16_f32 v%d, v%d, v%d" % (t, s0, s1)); a("v_lshlrev_b32 v%d, 16, v%d" % (d0, t)); a("v_and_b32 v%d, 0xffff0000, v%d" % (d1, t))
    def unpack4(d, p):
        a("v_lshlrev_b32 v%d, 16, v%d" % (d, p)); a("v_and_b32 v%d, 0xffff0000, v%d" % (d+1, p))
        a("v_lshlrev_b32 v%d, 16, v%d" % (d+2, p+1)); a("v_and_b32 v%d, 0xffff0000, v%d" % (d+3, p+1))
    def expsub(d, x, m):
        a("v_sub_f32 v%d, v%d, v%d" % (d, x, m)); a("v_mul_f32 v%d, s%d, v%d" % (d, sL2E, d)); a("v_exp_f32 v%d, v%d" % (d, d))
    def sum4(b):
        a("v_add_f32 v%d, v%d, v%d" % (b, b, b+1)); a("v_add_f32 v%d, v%d, v%d" % (b+2, b+2, b+3)); a("v_add_f32 v%d, v%d, v%d" % (b, b, b+2))
    def cnd(d, f, t, m): a("v_cndmask_b32_e64 v%d, %s, %s, %s" % (d, f, t, m))
    def wg_lin(dst):
        a("s_lshl_b32 s%d, s%d, 5" % (dst, sG)); a("s_add_u32 s%d, s%d, s%d" % (dst, dst, sS))

    def issue(n):
        t, j = divmod(n, 64); st, c = divmod(j, 4)
        if c == 0:
            if st: a("s_add_u32 s%d, s%d, 0x%x" % (sOFF, sBASE, st << 19))
            elif n: a("s_mov_b32 s%d, s%d" % (sOFF, sBASE))
        g.vm("buffer_load_dwordx4 %s, v%d, %s, s%d offen offset:%d %s" % (ar(4*j, 4), vVo if t else vKo, srd(sV if t else sK), sOFF, c*1024, pol), "n%d" % n)

    a("s_cmp_ge_u32 s2, 256"); a("s_cbranch_scc1 L_end")
    stamp("start")
    a("s_load_dwordx2 s[%d:%d], s[0:1], 8" % (sK, sK+1))
    a("s_lshr_b32 s%d, s2, 3" % sS); a("v_lshrrev_b32 v%d, 6, v0" % vT[0])
    if cpf:
        a("s_getpc_b64 %s" % sp(sT)); g.lab("L_pc")
        a("v_lshl_add_u32 v%d, s%d, 2, v%d" % (vT[4], sS, vT[0])); a("v_and_b32 v%d, 1, v0" % vT[5]); a("v_lshl_add_u32 v%d, v%d, 1, v%d" % (vT[4], vT[4], vT[5]))
        a("v_lshlrev_b32 v%d, 7, v%d" % (vT[4], vT[4])); a("v_min_u32 v%d, L_end-L_pc, v%d" % (vT[4], vT[4])); a("v_mov_b32 v%d, s%d" % (vT[5], sT+1))
        a("v_add_co_u32 v%d, vcc, s%d, v%d" % (vT[4], sT, vT[4])); a("s_mov_b64 exec, 3"); a("s_and_b32 s%d, s2, 7" % sG)
        a("v_addc_co_u32 v%d, vcc, 0, v%d, vcc" % (vT[5], vT[5]))
        g.vm("global_load_dword v%d, %s, off %s" % (vCn, r(vT[4], 2), cpfpol), "cpf")
        a("s_mov_b64 exec, -1")
    else: a("s_and_b32 s%d, s2, 7" % sG)
    a("s_lshl_b32 s%d, s%d, 23" % (sBASE, sG)); a("s_lshl_b32 s%d, s%d, 14" % (sOFF, sS)); a("s_add_u32 s%d, s%d, s%d" % (sBASE, sBASE, sOFF)); a("s_mov_b32 s%d, s%d" % (sOFF, sBASE))
    a("v_and_b32 v%d, 15, v0" % vT[1]); a("v_bfe_u32 v%d, v0, 4, 2" % vT[2])
    a("v_lshlrev_b32 v%d, 6, v%d" % (vAd[0], vT[1])); a("v_lshl_add_u32 v%d, v%d, 4, v%d" % (vAd[0], vT[2], vAd[0]))
    a("v_lshl_add_u32 v%d, v%d, 12, v%d" % (vKo, vT[0], vAd[0]))
    def rest_setup():
        for b, off in ((sV, 16), (sX, 0), (sWQ, 24), (sWS, 88), (sDBG, 80), (sWOp, 32), (sWGp, 48), (sWUp, 56), (sWD, 64), (sOUT, 72)):
            a("s_load_dwordx2 s[%d:%d], s[0:1], %d" % (b, b+1, off))
        a("v_and_b32 v%d, 63, v0" % vL); a("v_readfirstlane_b32 s%d, v%d" % (sW, vT[0]))
        a("v_lshlrev_b32 v%d, 4, v%d" % (vVo, vL)); a("v_lshl_add_u32 v%d, v%d, 12, v%d" % (vVo, vT[0], vVo))
        if "lin" in abl: a("v_mov_b32 v%d, v%d" % (vKo, vVo))
        for b, n in ((sV, 1 << 26), (sX, 1024), (sWQ, 1 << 22), (sWS, WS_USED if not stamps else 1 << 28), (sDBG, 256), (sWD, 1792*1024), (sOUT, 1024)):
            a("s_mov_b32 s%d, 0x%x" % (b+2, n)); a("s_mov_b32 s%d, 0x20000" % (b+3))
        a("v_and_b32 v%d, 31, v%d" % (vT[3], vL)); a("s_lshl_b32 s%d, s%d, 8" % (sT, sW)); a("v_lshl_add_u32 v%d, v%d, 3, s%d" % (vAd[1], vT[3], sT))
        a("v_bfe_u32 v%d, v%d, 1, 3" % (vT[4], vL)); a("v_and_b32 v%d, 1, v%d" % (vT[5], vL))
        a("v_lshlrev_b32 v%d, 5, v%d" % (vT[6], vT[2])); a("v_lshl_add_u32 v%d, v%d, 4, v%d" % (vT[6], vT[5], vT[6]))
        a("s_lshr_b32 s%d, s%d, 3" % (sKB, sS)); a("s_and_b32 s%d, s%d, 7" % (sCB, sS))
        a("s_lshl_b32 s%d, s%d, 2" % (sT, sKB)); a("s_add_u32 s%d, s%d, s%d" % (sT, sT, sW)); a("s_lshl_b32 s%d, s%d, 18" % (sT, sT))
        a("s_lshl_b32 s%d, s%d, 10" % (sT2, sG)); a("s_add_u32 s%d, s%d, s%d" % (sT, sT, sT2)); a("s_lshl_b32 s%d, s%d, 7" % (sT2, sCB)); a("s_add_u32 s%d, s%d, s%d" % (sT, sT, sT2))
        a("v_lshl_add_u32 v%d, v%d, 13, v%d" % (vAd[2], vT[4], vT[6])); a("v_add_u32 v%d, s%d, v%d" % (vAd[2], sT, vAd[2]))
    a("s_brev_b32 s%d, 32" % (sK+2)); a("s_mov_b32 s%d, 0x20000" % (sK+3))
    a("s_waitcnt lgkmcnt(0)")
    if dbgst: stamp('karg')
    for n in range(K0): issue(n)
    if dbgst: stamp('iss0')
    rest_setup(); a("s_waitcnt lgkmcnt(0)")
    for i in range(4): a("v_mov_b32 v%d, -1" % (vSen + i))
    if par is None:
        a("s_cmp_ge_u32 s%d, 16" % sS); a("s_cselect_b32 s%d, 1, 0" % sROLE); a("s_cmp_ge_u32 s%d, 30" % sS); a("s_cselect_b32 s%d, 2, s%d" % (sROLE, sROLE))
    else:
        a("s_cmp_ge_u32 s%d, 28" % sS); a("s_cselect_b32 s%d, 2, 1" % sROLE); a("s_and_b32 s%d, s%d, 1" % (sT, sG)); a("s_cmp_eq_u32 s%d, %d" % (sT, par)); a("s_cselect_b32 s%d, 0, s%d" % (sROLE, sROLE))
    wg_lin(sT); a("s_lshl_b32 s%d, s%d, 11" % (sT, sT)); a("s_lshl_b32 s%d, s%d, 9" % (sT2, sW)); a("s_add_u32 s%d, s%d, s%d" % (sT, sT, sT2)); a("s_add_u32 s%d, s%d, 0x%x" % (sT, sT, OX))
    a("v_lshl_add_u32 v%d, v%d, 4, s%d" % (vAd[8], vT[3], sT))
    a("s_mov_b32 s%d, 0x20000" % (sR1_+3)); a("s_mov_b32 s%d, 0x20000" % (sR2_+3))
    lC, lD, lJ = g.newlab("L_setC"), g.newlab("L_setD"), g.newlab("L_setJ")
    a("s_cmp_eq_u32 s%d, 2" % sROLE); a("s_cbranch_scc1 " + lD)
    a("s_cmp_eq_u32 s%d, 1" % sROLE); a("s_cbranch_scc1 " + lC)
    if par is None: a("s_lshl_b32 s%d, s%d, 1" % (sT, sG))
    else: a("s_lshr_b32 s%d, s%d, 1" % (sT, sG)); a("s_lshl_b32 s%d, s%d, 2" % (sT, sT))
    a("s_add_u32 s%d, s%d, s%d" % (sCI, sT, sKB))
    for b in (sR1_, sR2_): a("s_mov_b64 %s, %s" % (sp(b), sp(sWOp))); a("s_mov_b32 s%d, 0x400000" % (b+2))
    a("s_mov_b32 s%d, 8192" % sWST); a("s_mov_b32 s%d, 32768" % sWH)
    a("s_lshl_b32 s%d, s%d, 18" % (sT, sCI)); a("s_lshl_b32 s%d, s%d, 16" % (sT2, sW)); a("s_add_u32 s%d, s%d, s%d" % (sT, sT, sT2)); a("s_lshl_b32 s%d, s%d, 7" % (sT2, sCB)); a("s_add_u32 s%d, s%d, s%d" % (sT, sT, sT2))
    a("v_lshl_add_u32 v%d, v%d, 10, v%d" % (vAd[5], vT[4], vT[6])); a("v_add_u32 v%d, s%d, v%d" % (vAd[5], sT, vAd[5]))
    a("s_lshl_b32 s%d, s%d, 11" % (sT, sCI)); a("s_lshl_b32 s%d, s%d, 8" % (sT2, sCB)); a("s_add_u32 s%d, s%d, s%d" % (sT, sT, sT2)); a("s_lshl_b32 s%d, s%d, 6" % (sT2, sW)); a("s_add_u32 s%d, s%d, s%d" % (sT, sT, sT2)); a("s_add_u32 s%d, s%d, 0x%x" % (sT, sT, AX))
    a("v_lshl_add_u32 v%d, v%d, 4, s%d" % (vT[7], vT[3], sT)); a("v_cmp_gt_u32 vcc, 4, v%d" % vT[3]); a("v_mov_b32 v%d, 0x%x" % (vT[8], OOB)); nop(1)
    a("v_cndmask_b32 v%d, v%d, v%d, vcc" % (vT[7], vT[8], vT[7]))
    a("s_branch " + lJ)
    g.lab(lC)
    if par is None: a("s_mul_i32 s%d, s%d, 14" % (sCI, sG)); a("s_add_u32 s%d, s%d, s%d" % (sCI, sCI, sS)); a("s_sub_u32 s%d, s%d, 16" % (sCI, sCI))
    else: a("s_lshr_b32 s%d, s%d, 1" % (sT, sG)); a("s_mul_i32 s%d, s%d, 28" % (sCI, sT)); a("s_add_u32 s%d, s%d, s%d" % (sCI, sCI, sS))
    a("s_mov_b64 %s, %s" % (sp(sR1_), sp(sWGp))); a("s_mov_b64 %s, %s" % (sp(sR2_), sp(sWUp)))
    for b in (sR1_, sR2_): a("s_mov_b32 s%d, %d" % (b+2, 512*3584))
    a("s_mov_b32 s%d, %d" % (sWST, 32*3584)); a("s_mov_b32 s%d, 0" % sWH)
    a("v_lshrrev_b32 v%d, 1, v%d" % (vT[7], vL)); a("v_mul_u32_u24 v%d, 3584, v%d" % (vT[7], vT[7])); a("v_lshl_add_u32 v%d, v%d, 4, v%d" % (vT[7], vT[5], vT[7]))
    a("s_mul_i32 s%d, s%d, %d" % (sT, sW, 128*3584)); a("s_lshl_b32 s%d, s%d, 5" % (sT2, sCI)); a("s_add_u32 s%d, s%d, s%d" % (sT, sT, sT2)); a("v_add_u32 v%d, s%d, v%d" % (vAd[5], sT, vT[7]))
    a("s_lshl_b32 s%d, s%d, 11" % (sT, sCI)); a("s_lshl_b32 s%d, s%d, 9" % (sT2, sW)); a("s_add_u32 s%d, s%d, s%d" % (sT, sT, sT2)); a("s_add_u32 s%d, s%d, 0x%x" % (sT, sT, DX))
    a("v_lshl_add_u32 v%d, v%d, 4, s%d" % (vT[7], vT[3], sT))
    a("s_branch " + lJ)
    g.lab(lD)
    if par is None: a("s_lshl_b32 s%d, s%d, 1" % (sCI, sG)); a("s_add_u32 s%d, s%d, s%d" % (sCI, sCI, sS)); a("s_sub_u32 s%d, s%d, 30" % (sCI, sCI))
    else: a("s_lshr_b32 s%d, s%d, 1" % (sT, sG)); a("s_lshl_b32 s%d, s%d, 2" % (sCI, sT)); a("s_add_u32 s%d, s%d, s%d" % (sCI, sCI, sS)); a("s_sub_u32 s%d, s%d, 28" % (sCI, sCI))
    for b in (sR1_, sR2_): a("s_mov_b64 %s, %s" % (sp(b), sp(sWOp))); a("s_mov_b32 s%d, 0" % (b+2))
    a("s_mov_b32 s%d, 0" % sWST); a("s_mov_b32 s%d, 0" % sWH)
    a("v_mov_b32 v%d, 0" % vAd[5]); a("v_mov_b32 v%d, 0x%x" % (vT[7], OOB))
    g.lab(lJ)
    a("v_cmp_gt_u32 vcc, 32, v%d" % vL)
    a("s_lshl_b32 s%d, s%d, 13" % (sT, sG)); a("s_lshl_b32 s%d, s%d, 8" % (sT2, sS)); a("s_add_u32 s%d, s%d, s%d" % (sT, sT, sT2)); a("s_add_u32 s%d, s%d, 0x%x" % (sT, sT, QX))
    a("v_cndmask_b32 v%d, v%d, v%d, vcc" % (vT[7], vT[7], vAd[8]))
    if "clr" not in abl: g.vm("buffer_store_dwordx4 %s, v%d, %s, 0 offen sc1" % (r(vSen, 4), vT[7], srd(sWS)), "clr0")
    a("v_lshl_add_u32 v%d, v%d, 2, s%d" % (vAd[9], vL, sT))
    a("s_lshl_b32 s%d, s%d, 6" % (sT2, sW)); a("s_add_u32 s%d, s%d, s%d" % (sT, sT, sT2)); a("v_lshl_add_u32 v%d, v%d, 4, s%d" % (vT[8], vL, sT))
    wg_lin(sT); a("s_lshl_b32 s%d, s%d, 7" % (sT, sT)); a("s_add_u32 s%d, s%d, %d" % (sT, sT, SX - 64)); a("s_cmp_eq_u32 s%d, 0" % sW); a("s_cselect_b32 s%d, s%d, 0x%x" % (sT, sT, OOB))
    a("v_lshl_add_u32 v%d, v%d, 4, s%d" % (vT[9], vL, sT)); a("v_cmp_gt_u32 vcc, 4, v%d" % vL); nop(2)
    a("v_cndmask_b32 v%d, v%d, v%d, vcc" % (vT[8], vT[9], vT[8]))
    if n_t:
        a("s_lshl_b32 s%d, s%d, 7" % (sT, sG)); a("s_add_u32 s%d, s%d, 0x%x" % (sT, sT, TX)); a("v_mov_b32 v%d, s%d" % (vTX, sT)); a("v_cmp_eq_u32 vcc, 6, v%d" % vL); nop(2)
        a("v_cndmask_b32 v%d, v%d, v%d, vcc" % (vT[8], vT[8], vTX))
    a("s_mov_b64 exec, %s" % ("0x7f" if n_t else "63"))
    if "clr" not in abl: g.vm("buffer_store_dwordx4 %s, v%d, %s, 0 offen sc1" % (r(vSen, 4), vT[8], srd(sWS)), "clr1")
    a("s_mov_b64 exec, -1")
    for n in range(K0, D0): issue(n)
    g.vm("buffer_load_dwordx2 %s, v%d, %s, 0 offen" % (r(vXr, 2), vAd[1], srd(sX)), "x")
    a("v_lshlrev_b32 v%d, 4, v%d" % (vT[0], vL)); g.vm("buffer_load_dwordx4 %s, v%d, %s, 0 offen" % (r(vXf, 4), vT[0], srd(sX)), "xf")
    a("s_lshl_b32 s%d, s%d, 2" % (sT, sKB)); a("s_add_u32 s%d, s%d, s%d" % (sT, sT, sW)); a("s_lshl_b32 s%d, s%d, 6" % (sT, sT)); a("v_lshl_add_u32 v%d, v%d, 3, s%d" % (vT[0], vT[2], sT))
    g.vm("buffer_load_dwordx2 %s, v%d, %s, 0 offen" % (r(vXa, 2), vT[0], srd(sX)), "xa0"); g.vm("buffer_load_dwordx2 %s, v%d, %s, 0 offen offset:32" % (r(vXa+2, 2), vT[0], srd(sX)), "xa1")
    a("s_lshl_b32 s%d, s%d, 12" % (sT, sW))
    for i in range(4):
        a("s_add_u32 m0, s%d, %d" % (sT, LWQ + i*1024)); a("s_mov_b32 s%d, %d" % (sT2, i*65536))
        if "wq" not in abl: g.vm("buffer_load_dwordx4 v%d, %s, s%d offen %s lds" % (vAd[2], srd(sWQ), sT2, wpol), "wq%d" % i)
    if dbgst: stamp('issD')
    a("s_mov_b32 s%d, 0x%x" % (sL2E, LOG2E)); a("s_mov_b32 s%d, 0x%x" % (sSC, SCALE))
    for m, bit in ((sB0, 1), (sB1, 2), (sR1, 16), (sR2, 32)):
        a("v_and_b32 v%d, %d, v%d" % (vT[0], bit, vL)); a("v_cmp_ne_u32 %s, 0, v%d" % (sp(m), vT[0]))
    a("v_mov_b32 v%d, 0xffff" % vT[0]); a("v_mov_b32 v%d, 0xffff0000" % vT[1])
    cnd(vT[0], "v%d" % vT[0], "v%d" % vT[1], sp(sB0)); cnd(vM0, "v%d" % vT[0], "0", sp(sB1)); cnd(vM1, "0", "v%d" % vT[0], sp(sB1))
    for i in range(8): a("v_mov_b32 v%d, 0" % (vO + i))

    work = []; nxt = [D0]; qk_done = [0]
    def at(n, f): work.append((n, len(work), f))
    def pump(k=1):
        for _ in range(k):
            n = nxt[0]
            if n >= 128: return
            if n >= 64: assert qk_done[0] > (n - 64)//4 or "qk" in abl, "V load would overwrite unread K"
            if n >= D: g.wait("n%d" % (n - D))
            issue(n); nxt[0] += 1
    def barrier():
        pump(); a("s_waitcnt lgkmcnt(0)"); a("s_barrier")
    def sel_tile(d, b):
        cnd(d, "v%d" % b, "v%d" % (b+4), sp(sR1)); cnd(vT[1], "v%d" % (b+8), "v%d" % (b+12), sp(sR1)); cnd(d, "v%d" % d, "v%d" % vT[1], sp(sR2))
    def red64(x, t):
        red32(x, t); red_swap("v_add_f32", x, t, 32)

    def c_x0():
        g.wait("wq3")
        stamp("x0in")
        a("s_lshl_b32 s%d, s%d, 12" % (sT, sW)); a("v_lshrrev_b32 v%d, 5, v%d" % (vT[0], vL)); a("v_lshlrev_b32 v%d, 10, v%d" % (vT[0], vT[0]))
        a("v_and_b32 v%d, 31, v%d" % (vT[1], vL)); a("v_lshl_add_u32 v%d, v%d, 3, v%d" % (vT[0], vT[1], vT[0])); a("v_add_u32 v%d, s%d, v%d" % (vT[3], sT, vT[0]))
        for c in range(4):
            for rr in range(2): a("ds_read_b64_tr_b16 %s, v%d offset:%d" % (r(vW + 4*c + 2*rr, 2), vT[3], LWQ + 2*rr*1024 + c*256))
        unpack4(vX, vXr); unpack4(vD, vXf); unpack4(vD+4, vXf+2)
        a("v_pk_add_f32 %s, %s, %s" % (r(vD+8, 2), r(vD, 2), r(vD+2, 2))); a("v_pk_add_f32 %s, %s, %s" % (r(vD+10, 2), r(vD+4, 2), r(vD+6, 2)))
        a("v_pk_add_f32 %s, %s, %s" % (r(vD+8, 2), r(vD+8, 2), r(vD+10, 2))); a("v_add_f32 v%d, v%d, v%d" % (vT[0], vD+8, vD+9))
        pump()
        red64(vT[0], vT[1])
        a("v_mul_f32 v%d, 0x3b000000, v%d" % (vT[0], vT[0]))
        for e in range(8): a("v_sub_f32 v%d, v%d, v%d" % (vD+e, vD+e, vT[0]))
        a("v_mul_f32 v%d, v%d, v%d" % (vT[2], vD, vD))
        for e in range(1, 8): a("v_fmac_f32 v%d, v%d, v%d" % (vT[2], vD+e, vD+e))
        pump()
        red64(vT[2], vT[1])
        a("v_mul_f32 v%d, 0x3b000000, v%d" % (vT[2], vT[2]))
        rbf2(vT[0], vT[2], vT[0], vT[2], vT[1])
        a("v_add_f32 v%d, 0x%x, v%d" % (vT[2], EPS, vT[2])); rbf(vT[2], vT[2]); a("v_sqrt_f32 v%d, v%d" % (vT[2], vT[2]))
        unpack4(vD, vXa); unpack4(vD+4, vXa+2)
        rbf(vT[2], vT[2]); a("v_rcp_f32 v%d, v%d" % (vT[2], vT[2]))
        pump()
        for e in range(8): a("v_sub_f32 v%d, v%d, v%d" % (vD+e, vD+e, vT[0]))
        for e in range(0, 8, 2): rbf2(vD+e, vD+e+1, vD+e, vD+e+1, vT[1])
        for e in range(8): a("v_mul_f32 v%d, v%d, v%d" % (vD+e, vD+e, vT[2]))
        for e in range(4): a("v_cvt_pk_bf16_f32 v%d, v%d, v%d" % (vA+e, vD+2*e, vD+2*e+1))
        a("s_lshl_b32 s%d, s%d, 2" % (sT, sW)); a("v_lshl_add_u32 v%d, v%d, 4, s%d" % (vT[9], vL, sT))
        a("s_waitcnt lgkmcnt(0)")
        for c in range(4): a("v_mfma_f32_16x16x32_bf16 %s, %s, %s, 0" % (r(vD + 4*c, 4), r(vA, 4), r(vW + 4*c, 4)))
        pump(); nop(8)
        sel_tile(vT[0], vD)
        a("ds_write_b32 v%d, v%d offset:%d" % (vT[9], vT[0], LRED))
        a("v_mov_b32 v%d, 0x3f803f80" % vT[2]); a("v_lshlrev_b32 v%d, 2, v%d" % (vT[3], vL)); a("ds_write_b32 v%d, v%d offset:%d" % (vT[3], vT[2], LONE))
        barrier()
        l2, l3 = g.newlab("L_nosig"), g.newlab("L_noq")
        a("s_cmp_lg_u32 s%d, 3" % sW); a("s_cbranch_scc1 " + l2)
        if ssig:
            a("s_and_b32 s%d, s2, 63" % sT); a("s_lshl_b32 s%d, s%d, 2" % (sT, sT)); a("s_mov_b32 s%d, 1" % sCNT)
            a("s_atomic_add s%d, %s, s%d" % (sCNT, sp(sDBG), sT))
        elif "sig" not in abl:
            a("s_and_b32 s%d, s2, 63" % sT); a("s_lshl_b32 s%d, s%d, 2" % (sT, sT)); a("v_mov_b32 v%d, s%d" % (vT[0], sT)); a("v_mov_b32 v%d, 1" % vT[1])
            a("s_mov_b64 exec, 1"); a("buffer_atomic_add v%d, v%d, %s, 0 offen sc1" % (vT[1], vT[0], srd(sDBG))); a("s_mov_b64 exec, -1")
        g.lab(l2)
        a("s_cmp_lg_u32 s%d, 0" % sW); a("s_cbranch_scc1 " + l3)
        a("v_lshlrev_b32 v%d, 4, v%d" % (vT[0], vL)); a("ds_read_b128 %s, v%d offset:%d" % (r(vD, 4), vT[0], LRED)); a("s_waitcnt lgkmcnt(0)")
        sum4(vD)
        a("buffer_store_dword v%d, v%d, %s, 0 offen sc1" % (vD, vAd[9], srd(sWS)))
        g.lab(l3)
        if not dbgst: stamp("qpub")
    if 'x0' not in abl: at(n_x0, c_x0)
    else: at(n_x0, lambda: stamp('x0in')); at(n_x0+2, lambda: stamp('qpub'))

    def retry(check, reload):
        if "poll" in abl: return
        lp, ok = g.newlab("L_retry"), g.newlab("L_ok")
        check()
        a("s_cbranch_vccz " + ok)
        a("s_mov_b32 s%d, 0" % sCNT)
        g.lab(lp)
        a("s_mov_b64 exec, vcc")
        reload()
        a("s_mov_b64 exec, -1")
        a("s_waitcnt vmcnt(0)")
        check()
        a("s_add_u32 s%d, s%d, 1" % (sCNT, sCNT)); a("s_cmp_ge_u32 s%d, %d" % (sCNT, spin)); a("s_cbranch_scc1 " + ok)
        a("s_cbranch_vccnz " + lp)
        g.lab(ok)
    def chk_sen(base, n):
        def f():
            t = vT[0]
            if n == 4:
                a("v_max3_u32 v%d, v%d, v%d, v%d" % (t, base, base+1, base+2)); a("v_max_u32 v%d, v%d, v%d" % (t, t, base+3))
            else:
                t2 = vT[1]; h = n//2
                a("v_max_u32 v%d, v%d, v%d" % (t, base, base+1)); a("v_max_u32 v%d, v%d, v%d" % (t2, base+h, base+h+1))
                for i in range(2, h, 2):
                    a("v_max3_u32 v%d, v%d, v%d, v%d" % (t, t, base+i, base+i+1)); a("v_max3_u32 v%d, v%d, v%d, v%d" % (t2, t2, base+h+i, base+h+i+1))
                a("v_max_u32 v%d, v%d, v%d" % (t, t, t2))
            a("v_cmp_eq_u32 vcc, -1, v%d" % t)
        return f
    MK = [8, 10, 12, 14, 24, 26, 48, 50]
    SO = [20, 21, 22, 23, 44, 45, 46, 47]
    def gather(n, addr, offs, pre=None, delay=0, post=None):
        if "exit" in abl: g.waitall(); return
        ld = lambda i: "buffer_load_dwordx4 %s, v%d, %s, s%d offen sc1" % (r(vG + 4*i, 4), addr, srd(sWS), SO[i])
        top, lp, ok, done = g.newlab("L_gather"), g.newlab("L_retry"), g.newlab("L_ok"), g.newlab("L_done")
        for i in range(n): a("s_mov_b32 s%d, 0x%x" % (SO[i], offs[i]))
        a("s_mov_b32 s%d, 0" % sCNT)
        if delay: a("s_sleep %d" % delay)
        if pre:
            for i in range(n): g.vm(ld(i), "g%d" % i)
            pre()
            a("s_branch %s_w" % top)
        g.lab(top)
        for i in range(n): a(ld(i))
        g.lab(top + "_w")
        chk = lambda i: a("v_cmp_eq_u32 %s, -1, v%d" % (sp(MK[i]), vG + 4*i))
        def anym():
            a("s_or_b64 vcc, %s, %s" % (sp(MK[0]), sp(MK[1])))
            for i in range(2, n): a("s_or_b64 vcc, vcc, %s" % sp(MK[i]))
        g.waitall()
        g.lab(top + "_c")
        for i in range(n): chk(i)
        anym(); a("s_cbranch_scc0 " + ok)
        g.lab(lp)
        if psleep: a("s_sleep %d" % psleep)
        if post:
            a("s_and_b32 s%d, s%d, 15" % (sT, sCNT)); a("s_cmp_lg_u32 s%d, %d" % (sT, repub_at)); a("s_cbranch_scc1 %s_n" % lp); post(); g.lab(lp + "_n")
        for i in range(n):
            a("s_mov_b64 exec, %s" % sp(MK[i])); a(ld(i))
        a("s_mov_b64 exec, -1")
        a("s_add_u32 s%d, s%d, 1" % (sCNT, sCNT)); a("s_cmp_ge_u32 s%d, %d" % (sCNT, spin))
        a("s_waitcnt vmcnt(0)")
        a("s_cbranch_scc1 " + ok)
        for i in range(n): chk(i)
        anym(); a("s_cbranch_scc1 " + lp)
        g.lab(ok)
        sum_g(n)
        a("s_add_u32 s%d, s%d, 1" % (sCNT, sCNT))
        a("v_cmp_u_f32 vcc, v%d, v%d" % (vG, vG+1)); a("v_cmp_u_f32 %s, v%d, v%d" % (sp(MK[0]), vG+2, vG+3))
        a("s_cmp_ge_u32 s%d, %d" % (sCNT, spin)); a("s_cbranch_scc1 " + done)
        a("s_or_b64 vcc, vcc, %s" % sp(MK[0])); a("s_cbranch_scc1 " + top)
        g.lab(done)
        if post: post()
    def sum_g(n):
        st = 1
        while st < n:
            for i in range(0, n, 2*st):
                if i + st < n:
                    for h in range(2): a("v_pk_add_f32 %s, %s, %s" % (r(vG+4*i+2*h, 2), r(vG+4*i+2*h, 2), r(vG+4*(i+st)+2*h, 2)))
            st *= 2
    G4 = [vG+i for i in range(4)]; G4b = [vG+4+i for i in range(4)]

    ld_cnt = lambda: "buffer_load_dword v%d, v%d, %s, 0 offen sc1" % (vCn, vAd[3], srd(sDBG))
    def c_cnt():
        a("v_lshlrev_b32 v%d, 2, v%d" % (vAd[3], vL)); g.vm(ld_cnt(), "cnt")
    def ld_q(emit):
        for i in range(2): emit("buffer_load_dwordx4 %s, v%d, %s, s%d offen sc1" % (r(vG + 4*i, 4), vAd[6], srd(sWS), sT2 if i == 0 else sT), "q%d" % i)
    def q_base():
        a("s_lshl_b32 s%d, s%d, 13" % (sT2, sG)); a("s_add_u32 s%d, s%d, 0x%x" % (sT2, sT2, QX)); a("s_add_u32 s%d, s%d, 4096" % (sT, sT2))
    def c_qld():
        g.wait("cnt")
        if "cnt" not in abl: retry(lambda: a("v_cmp_gt_u32 vcc, 4, v%d" % vCn), lambda: a(ld_cnt()))
        a("s_lshl_b32 s%d, s%d, 9" % (sT, sW)); a("v_lshrrev_b32 v%d, 5, v%d" % (vT[0], vL)); a("v_and_b32 v%d, 31, v%d" % (vT[1], vL))
        a("v_lshlrev_b32 v%d, 11, v%d" % (vT[0], vT[0])); a("v_lshl_add_u32 v%d, v%d, 4, v%d" % (vT[0], vT[1], vT[0])); a("v_add_u32 v%d, s%d, v%d" % (vAd[6], sT, vT[0]))
        q_base(); ld_q(g.vm)
    def c_qchk():
        g.wait("q1"); q_base()
        retry(chk_sen(vG, 8), lambda: ld_q(lambda t, tag: a(t)))
        sum_g(2); red_swap_n("v_add_f32", G4, G4b, 32)
        a("v_cvt_pk_bf16_f32 v%d, v%d, v%d" % (vT[4], vG, vG+1)); a("v_cvt_pk_bf16_f32 v%d, v%d, v%d" % (vT[5], vG+2, vG+3))
        a("ds_write_b64 v%d, %s offset:%d" % (vAd[1], r(vT[4], 2), LQ))
        barrier()
        a("ds_read_b128 %s, v%d offset:%d" % (r(vQ, 4), vAd[0], LQ)); a("s_waitcnt lgkmcnt(0)")
        if not dbgst: stamp("qok")
    if 'qg' not in abl: at(n_cnt, c_cnt); at(n_q, c_qld); at(n_qk, c_qchk)
    else: at(n_qk, lambda: stamp('qok'))

    def qk_step(T):
        def f():
            g.wait("n%d" % (4*T + 3))
            for u in range(4):
                a("v_mfma_f32_16x16x32_bf16 %s, %s, %s, 0" % (r(vD + 4*u, 4), ar(16*T + 4*u, 4), r(vQ, 4)))
            nop(8)
            Dv = lambda u, j: vD + 4*u + j
            for rr in (3, 2, 1, 0):
                X = [Dv(aa ^ rr, aa) for aa in range(4)]
                cnd(vT[4], "v%d" % X[0], "v%d" % X[1], sp(sB0)); cnd(vT[5], "v%d" % X[2], "v%d" % X[3], sp(sB0)); cnd(vT[rr], "v%d" % vT[4], "v%d" % vT[5], sp(sB1))
            dpp("v_add_f32", vT[2], vT[3], vT[2], "quad_perm:[1,0,3,2]"); nop(1)
            dpp("v_add_f32", vT[0], vT[1], vT[0], "quad_perm:[1,0,3,2]"); nop(2)
            dpp("v_add_f32", vT[0], vT[2], vT[0], "quad_perm:[2,3,0,1]")
            rbf(vT[0], vT[0]); a("v_mul_f32 v%d, s%d, v%d" % (vT[0], sSC, vT[0])); rbf(vS + T, vT[0])
            qk_done[0] += 1
        return f
    nq = n_qk + 2
    for T in range(16):
        nq = max(nq, 4*T + 3 + D)
        assert nq < 64 + 4*T
        if 'qk' not in abl: at(nq, qk_step(T))
        nq += 1
    n_st = nq

    def red_hs(op, x, t):
        red_quad(op, x); red_swap(op, x, t, 16); red_swap(op, x, t, 32)
    def c_stat1():
        if not dbgst: stamp("qkdone")
        a("v_max3_f32 v%d, v%d, v%d, v%d" % (vMx, vS, vS+1, vS+2))
        for i in range(3, 15, 2): a("v_max3_f32 v%d, v%d, v%d, v%d" % (vMx, vMx, vS+i, vS+i+1))
        a("v_max_f32 v%d, v%d, v%d" % (vMx, vMx, vS+15))
        red_hs("v_max_f32", vMx, vT[0])
    def c_stat2():
        for i in range(16):
            expsub(vD + i, vS + i, vMx)
            if i == 9: pump()
        nop(1)
        for st in (8, 4, 2, 1):
            for i in range(st): a("v_add_f32 v%d, v%d, v%d" % (vD+i, vD+i, vD+i+st))
        pump()
        red_hs("v_add_f32", vD, vT[0])
        a("v_mov_b32 v%d, v%d" % (vT[4], vMx)); a("v_mov_b32 v%d, v%d" % (vT[5], vD))
        a("v_bfe_u32 v%d, v%d, 2, 2" % (vT[0], vL)); a("s_lshl_b32 s%d, s%d, 3" % (sT, sW)); a("s_add_u32 s%d, s%d, %d" % (sT, sT, LS2))
        a("v_lshl_add_u32 v%d, v%d, 5, s%d" % (vT[1], vT[0], sT))
        a("s_mov_b64 exec, 0x1111"); a("ds_write_b64 v%d, %s" % (vT[1], r(vT[4], 2))); a("s_mov_b64 exec, -1")
        barrier()
        l2 = g.newlab("L_nost")
        a("s_cmp_lg_u32 s%d, 0" % sW); a("s_cbranch_scc1 " + l2)
        a("s_mov_b64 exec, 0x1111")
        a("v_lshlrev_b32 v%d, 5, v%d" % (vT[1], vT[0]))
        a("ds_read_b128 %s, v%d offset:%d" % (r(vD, 4), vT[1], LS2)); a("ds_read_b128 %s, v%d offset:%d" % (r(vD+4, 4), vT[1], LS2+16))
        wg_lin(sT); a("s_lshl_b32 s%d, s%d, 7" % (sT, sT)); a("s_add_u32 s%d, s%d, 0x%x" % (sT, sT, SX))
        a("v_lshlrev_b32 v%d, 3, v%d" % (vT[1], vT[0]))
        a("s_waitcnt lgkmcnt(0)")
        a("v_max3_f32 v%d, v%d, v%d, v%d" % (vT[4], vD, vD+2, vD+4)); a("v_max_f32 v%d, v%d, v%d" % (vT[4], vT[4], vD+6))
        for i in range(4): expsub(vD + 2*i, vD + 2*i, vT[4])
        nop(1)
        a("v_mul_f32 v%d, v%d, v%d" % (vT[5], vD, vD+1))
        for i in range(1, 4): a("v_fmac_f32 v%d, v%d, v%d" % (vT[5], vD+2*i, vD+2*i+1))
        a("buffer_store_dwordx2 %s, v%d, %s, s%d offen sc1" % (r(vT[4], 2), vT[1], srd(sWS), sT))
        a("s_mov_b64 exec, -1")
        g.lab(l2)
    if 'stat' not in abl: at(n_st, c_stat1); at(n_st+1, c_stat2)
    else: at(n_st, lambda: stamp('qkdone')); pass
    assert n_sg > n_st + 1
    def ld_sg(emit):
        emit("buffer_load_dwordx2 %s, v%d, %s, s%d offen sc1" % (r(vSG, 2), vAd[4], srd(sWS), sT2), "sg0")
        emit("buffer_load_dwordx2 %s, v%d, %s, s%d offen offset:2048 sc1" % (r(vSG+2, 2), vAd[4], srd(sWS), sT2), "sg1")
    def sg_base(): a("s_lshl_b32 s%d, s%d, 12" % (sT2, sG)); a("s_add_u32 s%d, s%d, 0x%x" % (sT2, sT2, SX))
    def c_sg():
        a("v_lshrrev_b32 v%d, 4, v%d" % (vT[0], vL)); a("v_and_b32 v%d, 3, v%d" % (vT[1], vL)); a("v_lshl_add_u32 v%d, v%d, 2, v%d" % (vT[0], vT[0], vT[1]))
        a("v_bfe_u32 v%d, v%d, 2, 2" % (vT[1], vL)); a("v_lshlrev_b32 v%d, 3, v%d" % (vT[1], vT[1])); a("v_lshl_add_u32 v%d, v%d, 7, v%d" % (vAd[4], vT[0], vT[1]))
        sg_base(); ld_sg(g.vm)
    def c_p():
        g.wait("sg1"); sg_base()
        retry(chk_sen(vSG, 4), lambda: ld_sg(lambda t, tag: a(t)))
        stamp("sgok")
        a("v_max_f32 v%d, v%d, v%d" % (vMx, vSG, vSG+2)); red_hs("v_max_f32", vMx, vT[0])
        pump()
        expsub(vSG, vSG, vMx); expsub(vSG+2, vSG+2, vMx); nop(1)
        a("v_mul_f32 v%d, v%d, v%d" % (vRl, vSG, vSG+1)); a("v_fmac_f32 v%d, v%d, v%d" % (vRl, vSG+2, vSG+3))
        red_hs("v_add_f32", vRl, vT[0]); a("v_rcp_f32 v%d, v%d" % (vRl, vRl))
    def c_p2():
        for i in range(16):
            expsub(vS + i, vS + i, vMx)
            if i == 9: pump()
        pump()
        for i in range(16): a("v_mul_f32 v%d, v%d, v%d" % (vS+i, vS+i, vRl))
        for i in range(16): a("v_cvt_pk_bf16_f32 v%d, v%d, v%d" % (vS+i, vS+i, vS+i))
        nop(2)
    if 'stat' not in abl: at(n_sg, c_sg); at(n_pv, c_p); at(n_pv+1, c_p2)
    else: at(n_pv, lambda: stamp('sgok'))

    pvn = [0]
    def pv_prep(j):
        if "pv" in abl: return
        T, u = divmod(j, 4); tp = vTP + 2*(j % 4)
        ctl = "quad_perm:[%d,%d,%d,%d]" % (u, u, u, u)
        dpp("v_and_b32", tp, vS + T, vM0, ctl); dpp("v_and_b32", tp+1, vS + T, vM1, ctl)
    def pv_mma(j):
        if "pv" in abl: return
        tp = vTP + 2*(j % 4)
        a("v_mfma_f32_16x16x16_bf16 %s, %s, %s, %s" % (r(vO, 4), r(tp, 2), ar(4*j, 2), r(vO, 4)))
        a("v_mfma_f32_16x16x16_bf16 %s, %s, %s, %s" % (r(vO+4, 4), r(tp, 2), ar(4*j+2, 2), r(vO+4, 4)))
    def pv_upto(jmax):
        while pvn[0] < jmax:
            j = pvn[0]
            if j == 0: pv_prep(0)
            if j + 1 < 64: pv_prep(j + 1)
            else: nop(1)
            g.wait("n%d" % (64 + j))
            pv_mma(j); pvn[0] += 1
    for n in range(n_pv + 5, 128):
        at(n, lambda: pv_upto(min(pvn[0] + pv_rate, nxt[0] - D - 64)))

    def w_load(i, kind="wo"):
        def f():
            if kind in abl: return
            a("s_lshl_b32 s%d, s%d, 13" % (sT, sW)); a("s_add_u32 m0, s%d, %d" % (sT, LW + i*1024))
            a("s_mul_i32 s%d, s%d, %d" % (sT2, sWST, i & 3))
            if i >= 4: a("s_add_u32 s%d, s%d, s%d" % (sT2, sT2, sWH))
            g.vm("buffer_load_dwordx4 v%d, %s, s%d offen %s lds" % (vAd[5], srd(sR1_ if i < 4 else sR2_), sT2, wpol), "w%d" % i)
        return f
    def c_pf():
        if "pf" in abl: return
        a("s_cmp_lt_u32 s%d, 2" % sW); a("s_cselect_b64 %s, %s, %s" % (sp(sPF), sp(sWGp), sp(sWUp)))
        a("s_mov_b32 s%d, %d" % (sPF+2, 512*3584)); a("s_mov_b32 s%d, 0x20000" % (sPF+3))
        a("s_lshl_b32 s%d, s%d, 1" % (sT, sS)); a("s_and_b32 s%d, s%d, 1" % (sT2, sW)); a("s_add_u32 s%d, s%d, s%d" % (sT, sT, sT2))
        if par is not None:
            a("s_mul_i32 s%d, s%d, %d" % (sT, sT, 8*3584)); a("s_lshr_b32 s%d, s%d, 1" % (sT2, sG)); a("s_mul_i32 s%d, s%d, 896" % (sT2, sT2)); sh, msk = 3, "0x7f7f7f7f"
        elif pf_role:
            a("s_sub_u32 s%d, s%d, 32" % (sT, sT)); a("s_mul_i32 s%d, s%d, %d" % (sT, sT, 16*3584)); a("s_mul_i32 s%d, s%d, 448" % (sT2, sG)); a("s_and_b32 s%d, s%d, 0xffffff80" % (sT2, sT2)); sh, msk = 2, None
        else:
            a("s_mul_i32 s%d, s%d, %d" % (sT, sT, 8*3584)); a("s_mul_i32 s%d, s%d, 448" % (sT2, sG)); a("s_and_b32 s%d, s%d, 0xffffff80" % (sT2, sT2)); sh, msk = 2, "lo"
        a("s_add_u32 s%d, s%d, s%d" % (sT, sT, sT2))
        a("v_lshrrev_b32 v%d, %d, v%d" % (vT[0], sh, vL)); a("v_mul_u32_u24 v%d, 3584, v%d" % (vT[0], vT[0])); a("v_and_b32 v%d, %d, v%d" % (vT[1], (1 << sh) - 1, vL))
        a("v_lshl_add_u32 v%d, v%d, 7, v%d" % (vT[0], vT[1], vT[0]))
        if msk == "lo": a("s_mov_b64 exec, 0xffffffff")
        elif msk: a("s_mov_b32 exec_lo, %s" % msk); a("s_mov_b32 exec_hi, %s" % msk)
        g.vm("buffer_load_dword v%d, v%d, %s, s%d offen %s" % (vCn, vT[0], srd(sPF), sT, pfpol), "pf")
        a("s_mov_b64 exec, -1")
    if par is not None: assert n_pf is None
    def c_tsig():
        l2 = g.newlab("L_notsig")
        a("s_cmp_lg_u32 s%d, 0" % sW); a("s_cbranch_scc1 " + l2)
        a("v_mov_b32 v%d, 1" % vT[1]); a("s_mov_b64 exec, 1"); a("buffer_atomic_add v%d, v%d, %s, 0 offen sc1" % (vT[1], vTX, srd(sWS))); a("s_mov_b64 exec, -1")
        g.lab(l2)
    if n_t: at(n_t, c_tsig)
    ld_t = lambda: "buffer_load_dword v%d, v%d, %s, 0 offen sc1" % (vTv, vTX, srd(sWS))
    def t_wait():
        lp, ok = g.newlab("L_twait"), g.newlab("L_tok")
        g.wait("tv"); a("s_mov_b32 s%d, 0" % sCNT)
        g.lab(lp)
        a("v_cmp_gt_i32 vcc, 31, v%d" % vTv); a("s_add_u32 s%d, s%d, 1" % (sCNT, sCNT)); a("s_cbranch_vccz " + ok)
        a("s_cmp_ge_u32 s%d, %d" % (sCNT, spin)); a("s_cbranch_scc1 " + ok)
        a("s_sleep %d" % tsleep); a(ld_t()); a("s_waitcnt vmcnt(0)"); a("s_branch " + lp)
        g.lab(ok)
    if n_pf is not None: at(n_pf, c_pf)
    def wo_early(i):
        def f():
            l2 = g.newlab("L_nowo"); a("s_cmp_lg_u32 s%d, 0" % sROLE); a("s_cbranch_scc1 " + l2); q0 = list(g.q); w_load(i)(); g.q = q0; g.lab(l2)
        return f
    if wo_at:
        for i in range(8): at(wo_at[0] + i*wo_at[1], wo_early(i))

    work.sort(key=lambda x: x[:2])
    while nxt[0] < 128 or work:
        pump()
        while work and work[0][0] <= nxt[0] - 1:
            work.pop(0)[2]()
    stamp("lastissue")
    LB, LC, LD = "L_roleB", "L_roleC", "L_roleD"
    if "tail" in abl:
        pv_upto(64); stamp("pvdone"); stamp("opub"); a("s_branch L_fin"); nst[0] -= 2; del stn[-2:]
    a("s_cmp_eq_u32 s%d, 2" % sROLE); a("s_cbranch_scc1 " + LD)
    a("s_cmp_eq_u32 s%d, 1" % sROLE); a("s_cbranch_scc1 " + LC)
    q_save = list(g.q); pv_save = pvn[0]; nst_save = nst[0]

    def republish(role):
        if fast1 and (par is None or role == "B"):
            a("s_mov_b64 exec, 0xffffffff"); a("buffer_store_dwordx4 %s, v%d, %s, 0 offen sc1" % (r(vO, 4), vAd[8], srd(sWS))); a("s_mov_b64 exec, -1")
    def drain_publish(extra=(), role="C"):
        a("s_lshl_b32 s%d, s%d, 11" % (sT, sW)); a("v_lshl_add_u32 v%d, v%d, 5, s%d" % (vT[10], vL, sT))
        a("s_lshl_b32 s%d, s%d, 9" % (sT, sW)); a("v_and_b32 v%d, 31, v%d" % (vT[11], vL)); a("v_lshl_add_u32 v%d, v%d, 4, s%d" % (vT[11], vT[11], sT))
        extra = list(extra); k = 0
        while pvn[0] < 64:
            pv_upto(pvn[0] + 1); k += 1
            if extra and k > ex_at and pvn[0] < 64: extra.pop(0)()
        assert not extra or 'tail' in abl
        stamp("pvdone")
        nop(7)
        a("ds_write_b128 v%d, %s offset:%d" % (vT[10], r(vO, 4), LO)); a("ds_write_b128 v%d, %s offset:%d" % (vT[10], r(vO+4, 4), LO + 16))
        a("s_mov_b64 exec, 0xffffffff")
        a("s_waitcnt lgkmcnt(0)"); a("s_barrier")
        for w in range(4): a("ds_read_b128 %s, v%d offset:%d" % (r(vD + 4*w, 4), vT[11], LO + 2048*w))
        a("s_waitcnt lgkmcnt(2)")
        for h in range(2): a("v_pk_add_f32 %s, %s, %s" % (r(vD+2*h, 2), r(vD+2*h, 2), r(vD+4+2*h, 2)))
        a("s_waitcnt lgkmcnt(0)")
        for h in range(2): a("v_pk_add_f32 %s, %s, %s" % (r(vD+8+2*h, 2), r(vD+8+2*h, 2), r(vD+12+2*h, 2)))
        for h in range(2): a("v_pk_add_f32 %s, %s, %s" % (r(vD+2*h, 2), r(vD+2*h, 2), r(vD+8+2*h, 2)))
        if fast1 and (par is None or role == "B"):
            a("buffer_store_dwordx4 %s, v%d, %s, 0 offen" % (r(vD, 4), vAd[8], srd(sWS)))
            for i in range(4): a("v_mov_b32 v%d, v%d" % (vO + i, vD + i))
        else:
            a("buffer_store_dwordx4 %s, v%d, %s, 0 offen sc1" % (r(vD, 4), vAd[8], srd(sWS)))
        a("s_mov_b64 exec, -1")
        stamp("opub")
    def finish(role):
        if probe and role in probe[0]:
            ia, ib = stn.index(probe[1]), stn.index(probe[2]); lp = g.newlab("L_probe"); lq = g.newlab("L_noprobe")
            if len(probe) > 4: a("s_and_b32 s%d, s2, %d" % (sT, probe[4])); a("s_cmp_lg_u32 s%d, %d" % (sT, probe[5])); a("s_cbranch_scc1 " + lq)
            a("s_waitcnt lgkmcnt(0)")
            a("s_sub_u32 s%d, s%d, s%d" % (sT, sST + 2*ib, sST + 2*ia)); a("s_mul_i32 s%d, s%d, %d" % (sT, sT, probe[3]))
            a("s_min_u32 s%d, s%d, 100000" % (sT, sT)); a("s_add_u32 s%d, s%d, %d" % (sT, sT, probe_base))
            g.lab(lp)
            a("s_memrealtime s[54:55]"); a("s_waitcnt lgkmcnt(0)"); a("s_sub_u32 s%d, s54, s%d" % (sT2, sST))
            a("s_cmp_lt_u32 s%d, s%d" % (sT2, sT)); a("s_cbranch_scc1 " + lp)
            g.lab(lq)
        if stamps:
            a("s_waitcnt lgkmcnt(0)")
            a("s_lshl_b32 s%d, s2, 2" % sT); a("s_add_u32 s%d, s%d, s%d" % (sT, sT, sW)); a("s_lshl_b32 s%d, s%d, 6" % (sT, sT)); a("s_add_u32 s%d, s%d, 0x%x" % (sT, sT, STAMP))
            a("s_mov_b64 exec, 1"); a("v_mov_b32 v%d, s%d" % (vT[0], sT))
            for i in range(16):
                a("v_mov_b32 v%d, %s" % (vG + i, ("s%d" % (sST + 2*i)) if i < nst[0] else "0"))
            for i in range(4): a("buffer_store_dwordx4 %s, v%d, %s, 0 offen offset:%d" % (r(vG+4*i, 4), vT[0], srd(sWS), 16*i))
        a("s_endpgm")
    def attn_to_hpk(x, p):
        red_swap_n("v_add_f32", G4, G4b, 32)
        rbf2(vG, vG+1, vG, vG+1, vT[0]); rbf2(vG+2, vG+3, vG+2, vG+3, vT[1])
        for h in range(2): a("v_pk_add_f32 %s, %s, %s" % (r(vG+2*h, 2), r(vG+2*h, 2), r(x+2*h, 2)))
        a("v_cvt_pk_bf16_f32 v%d, v%d, v%d" % (p, vG, vG+1)); a("v_cvt_pk_bf16_f32 v%d, v%d, v%d" % (p+1, vG+2, vG+3))

    g.lab(LB)
    a("s_lshr_b32 s%d, s%d, 1" % (sT, sCI)); a("s_lshl_b32 s%d, s%d, 16" % (sT, sT)); a("s_and_b32 s%d, s%d, 1" % (sT2, sCI)); a("s_lshl_b32 s%d, s%d, 10" % (sT2, sT2)); a("s_add_u32 s%d, s%d, s%d" % (sT, sT, sT2))
    a("s_lshl_b32 s%d, s%d, 8" % (sT2, sW)); a("s_add_u32 s%d, s%d, s%d" % (sT, sT, sT2))
    a("v_lshrrev_b32 v%d, 4, v%d" % (vT[2], vL)); a("v_and_b32 v%d, 15, v%d" % (vT[4], vL))
    a("v_lshlrev_b32 v%d, 11, v%d" % (vT[0], vT[2])); a("v_lshl_add_u32 v%d, v%d, 4, v%d" % (vT[0], vT[4], vT[0])); a("v_add_u32 v%d, s%d, v%d" % (vAd[6], sT, vT[0]))
    a("s_lshl_b32 s%d, s%d, 13" % (sT, sW))
    a("v_lshrrev_b32 v%d, 5, v%d" % (vT[0], vL)); a("v_lshlrev_b32 v%d, 10, v%d" % (vT[0], vT[0]))
    a("v_and_b32 v%d, 31, v%d" % (vT[1], vL)); a("v_lshl_add_u32 v%d, v%d, 3, v%d" % (vT[0], vT[1], vT[0])); a("v_add_u32 v%d, s%d, v%d" % (vT[3], sT, vT[0]))
    a("s_lshl_b32 s%d, s%d, 8" % (sT, sW)); a("v_lshl_add_u32 v%d, v%d, 3, s%d" % (vAd[2], vT[4], sT))
    a("s_add_u32 s%d, s%d, %d" % (sT, sT, LACT2)); a("v_lshl_add_u32 v%d, v%d, 3, s%d" % (vAd[3], vT[2], sT))
    a("s_lshl_b32 s%d, s%d, 2" % (sT, sW)); a("v_lshl_add_u32 v%d, v%d, 4, s%d" % (vAd[4], vL, sT))
    a("s_lshl_b32 s%d, s%d, 11" % (sT, sCI)); a("s_lshl_b32 s%d, s%d, 8" % (sT2, sCB)); a("s_add_u32 s%d, s%d, s%d" % (sT, sT, sT2)); a("s_add_u32 s%d, s%d, 0x%x" % (sT, sT, AX))
    a("v_lshl_add_u32 v%d, v%d, 2, s%d" % (vAd[7], vL, sT)); a("v_lshlrev_b32 v%d, 4, v%d" % (vAd[9], vL))
    if wo_at or wo_late: drain_publish(role='B')
    elif D > 8 + ex_at: drain_publish([w_load(i) for i in range(8)], 'B')
    else:
        for i in range(9 + ex_at - D): w_load(i)()
        drain_publish([w_load(i) for i in range(9 + ex_at - D, 8)], 'B')
    def b_pre():
        if wo_late:
            if wo_late == 2: g.wait("g7")
            for i in range(8): w_load(i)()
        g.wait("w7")
        for ks in range(2):
            for c in range(4):
                for rr in range(2):
                    a("ds_read_b64_tr_b16 %s, v%d offset:%d" % (r(vW + 16*ks + 4*c + 2*rr, 2), vT[3], LW + (4*ks + 2*rr)*1024 + c*256))
    gather(8, vAd[6], [OX + 4*i*2048 for i in range(8)], b_pre, post=(lambda: republish('B')) if fast1 else None)
    stamp("x1ok")
    red_swap_n("v_add_f32", G4, G4b, 16); red_swap_n("v_add_f32", G4, G4b, 32)
    a("v_cvt_pk_bf16_f32 v%d, v%d, v%d" % (vT[4], vG, vG+1)); a("v_cvt_pk_bf16_f32 v%d, v%d, v%d" % (vT[5], vG+2, vG+3))
    a("ds_write_b64 v%d, %s offset:%d" % (vAd[2], r(vT[4], 2), LACT2))
    for ks in range(2): a("ds_read2_b64 %s, v%d offset0:%d offset1:%d" % (r(vA + 4*ks, 4), vAd[3], ks*8, ks*8 + 4))
    for ks in range(2):
        a("s_waitcnt lgkmcnt(%d)" % (1 - ks))
        for c in range(4):
            a("v_mfma_f32_16x16x32_bf16 %s, %s, %s, %s" % (r(vD + 4*c, 4), r(vA + 4*ks, 4), r(vW + 16*ks + 4*c, 4), r(vD + 4*c, 4) if ks else "0"))
    nop(7)
    sel_tile(vT[0], vD)
    a("ds_write_b32 v%d, v%d offset:%d" % (vAd[4], vT[0], LRED2))
    lb = g.newlab("L_bdone")
    a("s_cmp_lg_u32 s%d, 0" % sW)
    a("s_waitcnt lgkmcnt(0)"); a("s_barrier")
    a("s_cbranch_scc1 " + lb)
    a("ds_read_b128 %s, v%d offset:%d" % (r(vD, 4), vAd[9], LRED2)); a("s_waitcnt lgkmcnt(0)")
    sum4(vD)
    a("buffer_store_dword v%d, v%d, %s, 0 offen sc1" % (vD, vAd[7], srd(sWS)))
    g.lab(lb)
    stamp("bpub")
    finish("B")
    stB = list(stn)

    g.lab(LC); g.q = list(q_save); pvn[0] = pv_save; nst[0] = nst_save; del stn[nst_save:]
    a("v_lshrrev_b32 v%d, 4, v%d" % (vT[2], vL)); a("v_and_b32 v%d, 15, v%d" % (vT[4], vL))
    a("s_lshl_b32 s%d, s%d, 14" % (sT, sCI)); a("s_lshl_b32 s%d, s%d, 8" % (sT2, sW)); a("s_add_u32 s%d, s%d, s%d" % (sT, sT, sT2))
    a("v_lshlrev_b32 v%d, 12, v%d" % (vT[0], vT[2])); a("v_lshl_add_u32 v%d, v%d, 4, v%d" % (vT[0], vT[4], vT[0])); a("v_add_u32 v%d, s%d, v%d" % (vAd[7], sT, vT[0]))
    def wd_load(t):
        return lambda: None if "wd" in abl else g.vm("buffer_load_dwordx4 %s, v%d, %s, 0 offen offset:%d %s" % (r(vWD + 4*t, 4), vAd[7], srd(sWD), t*1024, wpol), "wd%d" % t)
    wdl = [wd_load(t) for t in range(4)]
    if cw_late:
        drain_publish(wdl if wd_pos == 'drain' else ()); c_pf()
    else:
        c_pf(); drain_publish(wdl if wd_pos == 'drain' else ())
    if wd_pos == 'before':
        for f in wdl: f()
    for i in range(8): w_load(i, 'cw')()
    if wd_pos == 'after':
        for f in wdl: f()
    a("v_and_b32 v%d, 4, v%d" % (vT[0], vL)); a("v_cmp_ne_u32 vcc, 0, v%d" % vT[0])
    a("s_lshl_b32 s%d, s%d, 13" % (sT, sW)); a("v_lshl_add_u32 v%d, v%d, 3, s%d" % (vT[3], vL, sT))
    cnd(vP, "v%d" % vM0, "0", "vcc"); cnd(vP+1, "v%d" % vM1, "0", "vcc"); cnd(vP+2, "0", "v%d" % vM0, "vcc"); cnd(vP+3, "0", "v%d" % vM1, "vcc")
    a("s_lshl_b32 s%d, s%d, 8" % (sT, sW)); a("s_add_u32 s%d, s%d, %d" % (sT, sT, LACT2)); a("v_lshl_add_u32 v%d, v%d, 3, s%d" % (vAd[3], vT[2], sT))
    a("v_mov_b32 v%d, %d" % (vT[0], LONE)); cnd(vAd[3], "v%d" % vAd[3], "v%d" % vT[0], sp(sB0))
    a("v_and_b32 v%d, 31, v%d" % (vT[0], vL)); a("s_lshl_b32 s%d, s%d, 2" % (sT, sW)); a("v_lshl_add_u32 v%d, v%d, 4, s%d" % (vAd[4], vT[0], sT))
    a("v_and_b32 v%d, 3, v%d" % (vT[1], vL)); a("v_lshl_add_u32 v%d, v%d, 2, v%d" % (vT[0], vT[2], vT[1])); a("v_lshlrev_b32 v%d, 4, v%d" % (vAd[9], vT[0]))
    a("s_lshl_b32 s%d, s%d, 11" % (sT, sCI)); a("s_lshl_b32 s%d, s%d, 9" % (sT2, sW)); a("s_add_u32 s%d, s%d, s%d" % (sT, sT, sT2)); a("s_add_u32 s%d, s%d, 0x%x" % (sT, sT, DX))
    a("v_bfe_u32 v%d, v%d, 4, 1" % (vT[1], vL)); a("v_lshlrev_b32 v%d, 5, v%d" % (vT[0], vT[4])); a("v_lshl_add_u32 v%d, v%d, 4, v%d" % (vT[0], vT[1], vT[0])); a("v_add_u32 v%d, s%d, v%d" % (vAd[2], sT, vT[0]))
    a("s_lshl_b32 s%d, s%d, 2" % (sT, sW)); a("s_add_u32 s%d, s%d, %d" % (sT, sT, LST2)); a("v_mov_b32 v%d, s%d" % (vAd[0], sT)); a("v_mov_b32 v%d, %d" % (vAd[5], LST2))
    def c_pre():
        g.wait("w7")
        for mi in range(2):
            for ks in range(4):
                for rr in range(2):
                    a("ds_read_b64_tr_b16 %s, v%d offset:%d" % (r(vW + 16*mi + 4*ks + 2*rr, 2), vT[3], LW + mi*4096 + ks*1024 + rr*512))
        stamp("cwok")
    if ax_early: gather(8, vAd[6], [AX + 2*i*2048 for i in range(8)], c_pre)
    else: c_pre(); gather(8, vAd[6], [AX + 2*i*2048 for i in range(8)])
    stamp("x2ok")
    attn_to_hpk(vX, vT[4])
    a("ds_write_b64 v%d, %s offset:%d" % (vAd[1], r(vT[4], 2), LACT2))
    for ks in range(4): a("ds_read2_b64 %s, v%d offset0:%d offset1:%d" % (r(vA + 4*ks, 4), vAd[3], ks*8, ks*8 + 4))
    unpack4(vH, vT[4])
    a("v_pk_mul_f32 %s, %s, %s" % (r(vG, 2), r(vH, 2), r(vH, 2))); a("v_pk_add_f32 %s, %s, %s" % (r(vG+2, 2), r(vH, 2), r(vH+2, 2)))
    a("v_pk_fma_f32 %s, %s, %s, %s" % (r(vG, 2), r(vH+2, 2), r(vH+2, 2), r(vG, 2)))
    a("v_add_f32 v%d, v%d, v%d" % (vT[6], vG+2, vG+3)); a("v_add_f32 v%d, v%d, v%d" % (vT[7], vG, vG+1))
    for ks in range(4):
        a("s_waitcnt lgkmcnt(%d)" % (3 - ks))
        for mi in range(2):
            a("v_mfma_f32_16x16x32_bf16 %s, %s, %s, %s" % (r(vD + 4*mi, 4), r(vA + 4*ks, 4), r(vW + 16*mi + 4*ks, 4), r(vD + 4*mi, 4) if ks else "0"))
    red32x2(vT[6], vT[7], vT[0], vT[1])
    cnd(vT[0], "v%d" % vD, "v%d" % (vD+4), sp(sR1)); cnd(vT[1], "v%d" % (vD+1), "v%d" % (vD+5), sp(sR1))
    a("ds_write2st64_b32 v%d, v%d, v%d offset0:%d offset1:%d" % (vAd[4], vT[0], vT[1], LRED2//256, LRED2//256 + 2))
    a("s_mov_b64 exec, 1"); a("ds_write2_b32 v%d, v%d, v%d offset0:0 offset1:4" % (vAd[0], vT[6], vT[7])); a("s_mov_b64 exec, -1")
    a("s_waitcnt lgkmcnt(0)"); a("s_barrier")
    a("ds_read_b128 %s, v%d" % (r(vG, 4), vAd[5])); a("ds_read_b128 %s, v%d offset:16" % (r(vG+4, 4), vAd[5]))
    for i in range(4): a("ds_read_b128 %s, v%d offset:%d" % (r(vD + 4*i, 4), vAd[9], LRED2 + 256*i))
    a("s_waitcnt lgkmcnt(4)")
    a("v_pk_add_f32 %s, %s, %s" % (r(vG, 2), r(vG, 2), r(vG+2, 2))); a("v_pk_add_f32 %s, %s, %s" % (r(vG+4, 2), r(vG+4, 2), r(vG+6, 2)))
    a("v_add_f32 v%d, v%d, v%d" % (vG, vG, vG+1)); a("v_add_f32 v%d, v%d, v%d" % (vG+4, vG+4, vG+5))
    a("v_mul_f32 v%d, 0x3b000000, v%d" % (vG, vG)); a("v_mul_f32 v%d, 0x3b000000, v%d" % (vG+4, vG+4))
    a("v_fma_f32 v%d, -v%d, v%d, v%d" % (vG+4, vG, vG, vG+4)); a("v_max_f32 v%d, 0, v%d" % (vG+4, vG+4))
    if exactLN:
        rbf2(vG, vG+4, vG, vG+4, vT[1]); a("v_add_f32 v%d, 0x%x, v%d" % (vG+4, EPS, vG+4)); rbf(vG+4, vG+4); a("v_sqrt_f32 v%d, v%d" % (vG+4, vG+4))
        a("s_waitcnt lgkmcnt(0)")
        a("v_pk_add_f32 %s, %s, %s" % (r(vD, 2), r(vD, 2), r(vD+2, 2)))
        rbf(vG+4, vG+4); a("v_rcp_f32 v%d, v%d" % (vG+4, vG+4))
    else:
        a("v_add_f32 v%d, 0x%x, v%d" % (vG+4, EPS, vG+4)); a("v_rsq_f32 v%d, v%d" % (vG+4, vG+4))
        a("s_waitcnt lgkmcnt(0)")
        a("v_pk_add_f32 %s, %s, %s" % (r(vD, 2), r(vD, 2), r(vD+2, 2)))
    for i in range(1, 4): a("v_pk_add_f32 %s, %s, %s" % (r(vD+4*i, 2), r(vD+4*i, 2), r(vD+4*i+2, 2)))
    for i in range(4): a("v_add_f32 v%d, v%d, v%d" % (vD+4*i, vD+4*i, vD+4*i+1))
    a("v_fma_f32 v%d, -v%d, v%d, v%d" % (vD, vG, vD+8, vD)); a("v_fma_f32 v%d, -v%d, v%d, v%d" % (vD+4, vG, vD+12, vD+4))
    a("v_mul_f32 v%d, v%d, v%d" % (vD, vD, vG+4)); a("v_mul_f32 v%d, v%d, v%d" % (vD+4, vD+4, vG+4))
    rbf2(vT[0], vT[1], vD, vD+4, vT[2])
    a("v_mul_f32 v%d, s%d, v%d" % (vT[0], sL2E, vT[0])); a("v_exp_f32 v%d, -v%d" % (vT[0], vT[0])); nop(1)
    a("v_add_f32 v%d, 1.0, v%d" % (vT[0], vT[0])); a("v_rcp_f32 v%d, v%d" % (vT[0], vT[0])); nop(1)
    rbf(vT[0], vT[0]); a("v_mul_f32 v%d, v%d, v%d" % (vT[0], vT[0], vT[1])); a("v_cvt_pk_bf16_f32 v%d, v%d, v%d" % (vT[0], vT[0], vT[0])); nop(2)
    for t in range(4):
        for j in range(4): dpp("v_and_b32", vA + 4*t + j, vT[0], vP + j, "quad_perm:[%d,%d,%d,%d]" % (t, t, t, t))
        if t >= 1: a("v_mfma_f32_16x16x32_bf16 %s, %s, %s, %s" % (r(vD, 4), r(vA + 4*(t-1), 4), r(vWD + 4*(t-1), 4), r(vD, 4) if t > 1 else "0"))
    nop(1)
    a("v_mfma_f32_16x16x32_bf16 %s, %s, %s, %s" % (r(vD, 4), r(vA + 12, 4), r(vWD + 12, 4), r(vD, 4)))
    nop(7)
    a("s_mov_b64 exec, 0xffffffff")
    a("buffer_store_dwordx4 %s, v%d, %s, 0 offen sc1" % (r(vD, 4), vAd[2], srd(sWS)))
    a("s_mov_b64 exec, -1")
    stamp("cpub")
    finish("C")
    stC = list(stn)

    g.lab(LD); g.q = list(q_save); pvn[0] = pv_save; nst[0] = nst_save; del stn[nst_save:]
    a("v_and_b32 v%d, 7, v%d" % (vT[4], vL)); a("s_lshl_b32 s%d, s%d, 6" % (sT, sCI)); a("v_lshl_add_u32 v%d, v%d, 3, s%d" % (vAd[7], vT[4], sT))
    g.vm("buffer_load_dwordx2 %s, v%d, %s, 0 offen" % (r(vXr, 2), vAd[7], srd(sX)), "x2")
    a("s_lshl_b32 s%d, s%d, 7" % (sT, sCI)); a("v_lshrrev_b32 v%d, 5, v%d" % (vT[0], vL)); a("v_lshlrev_b32 v%d, 11, v%d" % (vT[0], vT[0]))
    a("v_lshl_add_u32 v%d, v%d, 4, v%d" % (vT[0], vT[4], vT[0])); a("v_add_u32 v%d, s%d, v%d" % (vAd[6], sT, vT[0]))
    a("s_lshl_b32 s%d, s%d, 14" % (sT2, sW)); a("s_add_u32 s%d, s%d, s%d" % (sT, sT, sT2))
    a("v_lshrrev_b32 v%d, 3, v%d" % (vT[0], vL)); a("v_lshlrev_b32 v%d, 11, v%d" % (vT[0], vT[0])); a("v_lshl_add_u32 v%d, v%d, 4, v%d" % (vT[0], vT[4], vT[0])); a("v_add_u32 v%d, s%d, v%d" % (vAd[5], sT, vT[0]))
    a("s_lshl_b32 s%d, s%d, 7" % (sT, sW)); a("v_lshl_add_u32 v%d, v%d, 4, s%d" % (vAd[4], vT[4], sT)); a("v_lshlrev_b32 v%d, 4, v%d" % (vAd[9], vT[4]))
    if cw_late:
        drain_publish(); c_pf()
    else:
        c_pf(); drain_publish()
    gather(8, vAd[6], [AX + 2*i*2048 for i in range(8)])
    stamp("x2ok")
    unpack4(vX, vXr)
    attn_to_hpk(vX, vT[4]); unpack4(vH, vT[4])
    l3, l4 = g.newlab("L_d3"), g.newlab("L_d4")
    a("s_cmp_ge_u32 s%d, 2" % sW); a("s_cbranch_scc1 " + l3)
    gather(4, vAd[5], [DX + 32*i*2048 for i in range(4)], delay=d3)
    a("s_branch " + l4)
    g.lab(l3)
    gather(3, vAd[5], [DX + 32*i*2048 for i in range(3)], delay=d3)
    g.lab(l4)
    stamp("x3ok")
    nop(1)
    for i in range(4): dpp("v_add_f32", vG+i, vG+i, vG+i, "row_ror:8")
    red_swap_n("v_add_f32", G4, G4b, 16); red_swap_n("v_add_f32", G4, G4b, 32)
    a("s_mov_b64 exec, 0xff"); a("ds_write_b128 v%d, %s offset:%d" % (vAd[4], r(vG, 4), LRED2))
    ld = g.newlab("L_ddone")
    a("s_cmp_lg_u32 s%d, 0" % sW)
    a("s_waitcnt lgkmcnt(0)"); a("s_barrier")
    a("s_cbranch_scc1 " + ld)
    for w in range(4): a("ds_read_b128 %s, v%d offset:%d" % (r(vG + 4*w, 4), vAd[9], LRED2 + 128*w))
    a("s_waitcnt lgkmcnt(0)")
    sum_g(4)
    rbf2(vG, vG+1, vG, vG+1, vT[0]); rbf2(vG+2, vG+3, vG+2, vG+3, vT[1])
    for h in range(2): a("v_pk_add_f32 %s, %s, %s" % (r(vG+2*h, 2), r(vG+2*h, 2), r(vH+2*h, 2)))
    a("v_cvt_pk_bf16_f32 v%d, v%d, v%d" % (vT[4], vG, vG+1)); a("v_cvt_pk_bf16_f32 v%d, v%d, v%d" % (vT[5], vG+2, vG+3))
    a("buffer_store_dwordx2 %s, v%d, %s, 0 offen" % (r(vT[4], 2), vAd[7], srd(sOUT)) + (" " + outpol if outpol else ""))
    g.lab(ld)
    a("s_mov_b64 exec, -1")
    stamp("out")
    g.lab("L_fin")
    finish("D")
    stD = list(stn)
    g.lab("L_end"); a("s_endpgm")

    import numpy as np
    gg, ss = np.arange(256) & 7, np.arange(256) >> 3
    roles = {"B": ss < 16, "C": (ss >= 16) & (ss < 30), "D": ss >= 30} if par is None else {"B": (gg & 1) == par, "C": ((gg & 1) != par) & (ss < 28), "D": ((gg & 1) != par) & (ss >= 28)}
    hdr = """; Fused decode layer: LN -> q proj -> GQA attention over the KV cache -> out proj -> LN -> GLU MLP, one persistent launch.
; 256 workgroups (one per CU) x 4 waves. Hand-offs through d_ws carry self-validating words (cleared at entry, clears counted in d_debug).
; @launch grid=(256,1,1) block=(256,1,1) lds=%d
.amdgcn_target "amdgcn-amd-amdhsa--gfx950"
.text
.globl %s_kernel
.p2align 8
.type %s_kernel,@function
%s_kernel:
""" % (LDS_SIZE, KN, KN, KN)
    ftr = """
.section .rodata,"a"
.p2align 6
.amdhsa_kernel %s_kernel
  .amdhsa_next_free_vgpr 512
  .amdhsa_next_free_sgpr 102
  .amdhsa_accum_offset 256
  .amdhsa_group_segment_fixed_size 0
  .amdhsa_kernarg_size 96
  .amdhsa_user_sgpr_count 2
  .amdhsa_user_sgpr_kernarg_segment_ptr 1
  .amdhsa_system_sgpr_workgroup_id_x 1
  .amdhsa_float_denorm_mode_32 3
.end_amdhsa_kernel
""" % KN
    return hdr + "\n".join(g.L) + ftr, dict(B=stB, C=stC, D=stD, nv=g.vn, roles=roles)

if __name__ == "__main__":
    kw = eval("dict(%s)" % (sys.argv[2] if len(sys.argv) > 2 else ""))
    src, info = gen(**kw)
    open(sys.argv[1], "w").write(src); print(len(src))
```

```python
import sys
KN = "sequential_preLN__gqa_block_cached__glu_gated_glu__decode"

SX = 0x60000
TX = 0x2000
AX = 0x4000
QX = 0x10000
DX = 0x20000
OX = 0x80000
WS_USED = 0x100000
OOB = 0x20000000
STAMP = 0x200000
LW   = 0
LWQ  = 0x8000
LACT = 0xC000
LACT2= 0xC400
LQ   = 0xC800
LRED = 0xCC00
LRED2= 0xD000
LONE = 0xD400
LST  = 0xD600
LST2 = 0xD640
LS2  = 0xD680
LO   = 0xD800
LDS_SIZE = 0xF800

LOG2E = 0x3FB8AA3B
SCALE = 0x3DB504F3
EPS   = 0x3727C5AC

class G:
    def __init__(s):
        s.L = []; s.q = []; s.nlab = 0; s.vn = 0; s.names = {}
    def a(s, x): s.L.append("  " + x)
    def lab(s, x): s.L.append(x + ":")
    def newlab(s, p="L"):
        s.nlab += 1; return "%s_%d" % (p, s.nlab)
    def v(s, name, n=1, align=1):
        if n > 1: align = max(align, 2)
        s.vn = (s.vn + align - 1)//align*align
        r = s.vn; s.vn += n; s.names[name] = r
        assert s.vn <= 256
        return r
    def vm(s, txt, tag):
        s.a(txt); s.q.append(tag)
    def wait(s, tag):
        if tag not in s.q: return
        i = s.q.index(tag); n = len(s.q) - 1 - i
        assert n <= 63
        s.a("s_waitcnt vmcnt(%d)" % n); s.q = s.q[i+1:]
    def waitall(s):
        s.a("s_waitcnt vmcnt(0)"); s.q = []

def r(a, n): return "v[%d:%d]" % (a, a+n-1)
def ar(a, n): return "a[%d:%d]" % (a, a+n-1)
def sp(a): return "s[%d:%d]" % (a, a+1)
DPP = " row_mask:0xf bank_mask:0xf"

def gen(D=8, D0=None, pol="nt", wpol="nt", stamps=False, n_x0=None, n_cnt=None, n_q=None, n_qk=60, n_sg=None, n_pv=108, K0=8, pv_rate=6,
        n_pf=None, pfpol="", ex_at=0, spin=1 << 16, probe=None, probe_base=4000, exactLN=True, retry_mode="mask", cyc=False, psleep=0, abl=(), d3=28, wo_at=None, par=0, pf_role=True, n_t=None, tsleep=2, fast1=False, repub_at=3, cw_late=True, wo_late=False, wd_pos='drain', ax_early=False, ssig=True, early=True, outpol='', dbgst=False, cpf=True, cpfpol='', pf_k=None):
    g = G(); a = g.a
    if D0 is None: D0 = D
    if n_x0 is None: n_x0 = D0 + D
    if n_q is None: n_q = n_qk - D
    if n_cnt is None: n_cnt = n_q - D
    if n_sg is None: n_sg = n_pv - D
    sW, sG, sS = 3, 4, 5
    sK, sV, sWS, sX, sWQ, sR1_, sR2_, sWD, sOUT, sDBG = 8, 12, 16, 20, 24, 28, 32, 36, 40, 44
    sWOp, sWGp, sWUp = 48, 50, 52
    sB0, sB1, sR1, sR2 = 54, 56, 58, 60
    sT, sT2, sOFF, sCNT = 62, 63, 6, 7
    sKB, sCB, sCI = 64, 65, 66
    sL2E, sSC = 67, 68
    sWST, sWH = 69, 70
    sMK = 48
    sPF = 72
    sBASE = 74
    sROLE = 71
    sST = 76
    nst = [0]; stn = []
    def stamp(name):
        if stamps or probe:
            a("%s s[%d:%d]" % ("s_memtime" if cyc else "s_memrealtime", sST + 2*nst[0], sST + 2*nst[0] + 1)); nst[0] += 1; stn.append(name)
            assert sST + 2*nst[0] <= 104
    def srd(b): return "s[%d:%d]" % (b, b+3)
    g.v("tid"); vL = g.v("lane"); vKo = g.v("koff"); vVo = g.v("voff")
    vM0 = g.v("m0"); vM1 = g.v("m1")
    vT = [g.v("t%d" % i) for i in range(12)]
    vX = g.v("x", 4); vQ = g.v("q", 4); vS = g.v("S", 16); vD = g.v("D", 16); vO = g.v("O", 8); vTP = g.v("TP", 8)
    vA = g.v("A", 16); vW = g.v("W", 32); vWD = g.v("WD", 16); vG = g.v("G", 32); vH = g.v("H", 4); vP = g.v("P", 4)
    vAd = [g.v("ad%d" % i) for i in range(10)]
    vMx = g.v("mx"); vRl = g.v("rl"); vCn = g.v("cn"); vCSg = g.v("csg"); vCSu = g.v("csu")
    vSG = g.v("sg", 4); vSen = g.v("sen", 4); vXr = g.v("xr", 2); vE = g.v("E", 8); vXf = g.v("xf", 4); vXa = g.v("xa", 4); vTX = g.v("tx"); vTv = g.v("tv")
    assert vT[4] % 2 == 0

    def nop(n): a("s_nop %d" % (n-1))
    def dpp(op, d, s0, s1, ctl): a("%s_dpp v%d, v%d, v%d %s%s" % (op, d, s0, s1, ctl, DPP))
    def red_quad(op, x):
        nop(2); dpp(op, x, x, x, "quad_perm:[1,0,3,2]"); nop(2); dpp(op, x, x, x, "quad_perm:[2,3,0,1]")
    def red_swap(op, x, t, which):
        a("v_mov_b32 v%d, v%d" % (t, x)); nop(2); a("v_permlane%d_swap_b32 v%d, v%d" % (which, x, t)); a("%s v%d, v%d, v%d" % (op, x, x, t))
    def red_swap_n(op, xs, ts, which):
        for x, t in zip(xs, ts): a("v_mov_b32 v%d, v%d" % (t, x))
        if len(xs) < 3: nop(3 - len(xs))
        for x, t in zip(xs, ts): a("v_permlane%d_swap_b32 v%d, v%d" % (which, x, t))
        for x, t in zip(xs, ts): a("%s v%d, v%d, v%d" % (op, x, x, t))
    def red32(x, t):
        red_quad("v_add_f32", x); nop(2); dpp("v_add_f32", x, x, x, "row_half_mirror"); nop(2); dpp("v_add_f32", x, x, x, "row_mirror")
        red_swap("v_add_f32", x, t, 16)
    def red32x2(x, y, t, t2):
        nop(1)
        for ctl in ("quad_perm:[1,0,3,2]", "quad_perm:[2,3,0,1]", "row_half_mirror", "row_mirror"):
            dpp("v_add_f32", x, x, x, ctl); dpp("v_add_f32", y, y, y, ctl); nop(1)
        red_swap_n("v_add_f32", [x, y], [t, t2], 16)
    def rbf(d, s_):
        a("v_cvt_pk_bf16_f32 v%d, v%d, v%d" % (d, s_, s_)); a("v_lshlrev_b32 v%d, 16, v%d" % (d, d))
    def rbf2(d0, d1, s0, s1, t):
        a("v_cvt_pk_bf16_f32 v%d, v%d, v%d" % (t, s0, s1)); a("v_lshlrev_b32 v%d, 16, v%d" % (d0, t)); a("v_and_b32 v%d, 0xffff0000, v%d" % (d1, t))
    def unpack4(d, p):
        a("v_lshlrev_b32 v%d, 16, v%d" % (d, p)); a("v_and_b32 v%d, 0xffff0000, v%d" % (d+1, p))
        a("v_lshlrev_b32 v%d, 16, v%d" % (d+2, p+1)); a("v_and_b32 v%d, 0xffff0000, v%d" % (d+3, p+1))
    def expsub(d, x, m):
        a("v_sub_f32 v%d, v%d, v%d" % (d, x, m)); a("v_mul_f32 v%d, s%d, v%d" % (d, sL2E, d)); a("v_exp_f32 v%d, v%d" % (d, d))
    def sum4(b):
        a("v_add_f32 v%d, v%d, v%d" % (b, b, b+1)); a("v_add_f32 v%d, v%d, v%d" % (b+2, b+2, b+3)); a("v_add_f32 v%d, v%d, v%d" % (b, b, b+2))
    def cnd(d, f, t, m): a("v_cndmask_b32_e64 v%d, %s, %s, %s" % (d, f, t, m))
    def wg_lin(dst):
        a("s_lshl_b32 s%d, s%d, 5" % (dst, sG)); a("s_add_u32 s%d, s%d, s%d" % (dst, dst, sS))

    def issue(n):
        t, j = divmod(n, 64); st, c = divmod(j, 4)
        if c == 0:
            if st: a("s_add_u32 s%d, s%d, 0x%x" % (sOFF, sBASE, st << 19))
            elif n: a("s_mov_b32 s%d, s%d" % (sOFF, sBASE))
        g.vm("buffer_load_dwordx4 %s, v%d, %s, s%d offen offset:%d %s" % (ar(4*j, 4), vVo if t else vKo, srd(sV if t else sK), sOFF, c*1024, pol), "n%d" % n)

    a("s_cmp_ge_u32 s2, 256"); a("s_cbranch_scc1 L_end")
    stamp("start")
    a("s_load_dwordx2 s[%d:%d], s[0:1], 8" % (sK, sK+1))
    a("s_lshr_b32 s%d, s2, 3" % sS); a("v_lshrrev_b32 v%d, 6, v0" % vT[0])
    if cpf:
        a("s_getpc_b64 %s" % sp(sT)); g.lab("L_pc")
        a("v_lshl_add_u32 v%d, s%d, 2, v%d" % (vT[4], sS, vT[0])); a("v_and_b32 v%d, 1, v0" % vT[5]); a("v_lshl_add_u32 v%d, v%d, 1, v%d" % (vT[4], vT[4], vT[5]))
        a("v_lshlrev_b32 v%d, 7, v%d" % (vT[4], vT[4])); a("v_min_u32 v%d, L_end-L_pc, v%d" % (vT[4], vT[4])); a("v_mov_b32 v%d, s%d" % (vT[5], sT+1))
        a("v_add_co_u32 v%d, vcc, s%d, v%d" % (vT[4], sT, vT[4])); a("s_mov_b64 exec, 3"); a("s_and_b32 s%d, s2, 7" % sG)
        a("v_addc_co_u32 v%d, vcc, 0, v%d, vcc" % (vT[5], vT[5]))
        g.vm("global_load_dword v%d, %s, off %s" % (vCn, r(vT[4], 2), cpfpol), "cpf")
        a("s_mov_b64 exec, -1")
    else: a("s_and_b32 s%d, s2, 7" % sG)
    a("s_lshl_b32 s%d, s%d, 23" % (sBASE, sG)); a("s_lshl_b32 s%d, s%d, 14" % (sOFF, sS)); a("s_add_u32 s%d, s%d, s%d" % (sBASE, sBASE, sOFF)); a("s_mov_b32 s%d, s%d" % (sOFF, sBASE))
    a("v_and_b32 v%d, 15, v0" % vT[1]); a("v_bfe_u32 v%d, v0, 4, 2" % vT[2])
    a("v_lshlrev_b32 v%d, 6, v%d" % (vAd[0], vT[1])); a("v_lshl_add_u32 v%d, v%d, 4, v%d" % (vAd[0], vT[2], vAd[0]))
    a("v_lshl_add_u32 v%d, v%d, 12, v%d" % (vKo, vT[0], vAd[0]))
    def rest_setup():
        for b, off in ((sV, 16), (sX, 0), (sWQ, 24), (sWS, 88), (sDBG, 80), (sWOp, 32), (sWGp, 48), (sWUp, 56), (sWD, 64), (sOUT, 72)):
            a("s_load_dwordx2 s[%d:%d], s[0:1], %d" % (b, b+1, off))
        a("v_and_b32 v%d, 63, v0" % vL); a("v_readfirstlane_b32 s%d, v%d" % (sW, vT[0]))
        a("v_lshlrev_b32 v%d, 4, v%d" % (vVo, vL)); a("v_lshl_add_u32 v%d, v%d, 12, v%d" % (vVo, vT[0], vVo))
        if "lin" in abl: a("v_mov_b32 v%d, v%d" % (vKo, vVo))
        for b, n in ((sV, 1 << 26), (sX, 1024), (sWQ, 1 << 22), (sWS, WS_USED if not stamps else 1 << 28), (sDBG, 256), (sWD, 1792*1024), (sOUT, 1024)):
            a("s_mov_b32 s%d, 0x%x" % (b+2, n)); a("s_mov_b32 s%d, 0x20000" % (b+3))
        a("v_and_b32 v%d, 31, v%d" % (vT[3], vL)); a("s_lshl_b32 s%d, s%d, 8" % (sT, sW)); a("v_lshl_add_u32 v%d, v%d, 3, s%d" % (vAd[1], vT[3], sT))
        a("v_bfe_u32 v%d, v%d, 1, 3" % (vT[4], vL)); a("v_and_b32 v%d, 1, v%d" % (vT[5], vL))
        a("v_lshlrev_b32 v%d, 5, v%d" % (vT[6], vT[2])); a("v_lshl_add_u32 v%d, v%d, 4, v%d" % (vT[6], vT[5], vT[6]))
        a("s_lshr_b32 s%d, s%d, 3" % (sKB, sS)); a("s_and_b32 s%d, s%d, 7" % (sCB, sS))
        a("s_lshl_b32 s%d, s%d, 2" % (sT, sKB)); a("s_add_u32 s%d, s%d, s%d" % (sT, sT, sW)); a("s_lshl_b32 s%d, s%d, 18" % (sT, sT))
        a("s_lshl_b32 s%d, s%d, 10" % (sT2, sG)); a("s_add_u32 s%d, s%d, s%d" % (sT, sT, sT2)); a("s_lshl_b32 s%d, s%d, 7" % (sT2, sCB)); a("s_add_u32 s%d, s%d, s%d" % (sT, sT, sT2))
        a("v_lshl_add_u32 v%d, v%d, 13, v%d" % (vAd[2], vT[4], vT[6])); a("v_add_u32 v%d, s%d, v%d" % (vAd[2], sT, vAd[2]))
    a("s_brev_b32 s%d, 32" % (sK+2)); a("s_mov_b32 s%d, 0x20000" % (sK+3))
    a("s_waitcnt lgkmcnt(0)")
    if dbgst: stamp('karg')
    for n in range(K0): issue(n)
    if dbgst: stamp('iss0')
    rest_setup(); a("s_waitcnt lgkmcnt(0)")
    for i in range(4): a("v_mov_b32 v%d, -1" % (vSen + i))
    if par is None:
        a("s_cmp_ge_u32 s%d, 16" % sS); a("s_cselect_b32 s%d, 1, 0" % sROLE); a("s_cmp_ge_u32 s%d, 30" % sS); a("s_cselect_b32 s%d, 2, s%d" % (sROLE, sROLE))
    else:
        a("s_cmp_ge_u32 s%d, 28" % sS); a("s_cselect_b32 s%d, 2, 1" % sROLE); a("s_and_b32 s%d, s%d, 1" % (sT, sG)); a("s_cmp_eq_u32 s%d, %d" % (sT, par)); a("s_cselect_b32 s%d, 0, s%d" % (sROLE, sROLE))
    wg_lin(sT); a("s_lshl_b32 s%d, s%d, 11" % (sT, sT)); a("s_lshl_b32 s%d, s%d, 9" % (sT2, sW)); a("s_add_u32 s%d, s%d, s%d" % (sT, sT, sT2)); a("s_add_u32 s%d, s%d, 0x%x" % (sT, sT, OX))
    a("v_lshl_add_u32 v%d, v%d, 4, s%d" % (vAd[8], vT[3], sT))
    a("s_mov_b32 s%d, 0x20000" % (sR1_+3)); a("s_mov_b32 s%d, 0x20000" % (sR2_+3))
    lC, lD, lJ = g.newlab("L_setC"), g.newlab("L_setD"), g.newlab("L_setJ")
    a("s_cmp_eq_u32 s%d, 2" % sROLE); a("s_cbranch_scc1 " + lD)
    a("s_cmp_eq_u32 s%d, 1" % sROLE); a("s_cbranch_scc1 " + lC)
    if par is None: a("s_lshl_b32 s%d, s%d, 1" % (sT, sG))
    else: a("s_lshr_b32 s%d, s%d, 1" % (sT, sG)); a("s_lshl_b32 s%d, s%d, 2" % (sT, sT))
    a("s_add_u32 s%d, s%d, s%d" % (sCI, sT, sKB))
    for b in (sR1_, sR2_): a("s_mov_b64 %s, %s" % (sp(b), sp(sWOp))); a("s_mov_b32 s%d, 0x400000" % (b+2))
    a("s_mov_b32 s%d, 8192" % sWST); a("s_mov_b32 s%d, 32768" % sWH)
    a("s_lshl_b32 s%d, s%d, 18" % (sT, sCI)); a("s_lshl_b32 s%d, s%d, 16" % (sT2, sW)); a("s_add_u32 s%d, s%d, s%d" % (sT, sT, sT2)); a("s_lshl_b32 s%d, s%d, 7" % (sT2, sCB)); a("s_add_u32 s%d, s%d, s%d" % (sT, sT, sT2))
    a("v_lshl_add_u32 v%d, v%d, 10, v%d" % (vAd[5], vT[4], vT[6])); a("v_add_u32 v%d, s%d, v%d" % (vAd[5], sT, vAd[5]))
    a("s_lshl_b32 s%d, s%d, 11" % (sT, sCI)); a("s_lshl_b32 s%d, s%d, 8" % (sT2, sCB)); a("s_add_u32 s%d, s%d, s%d" % (sT, sT, sT2)); a("s_lshl_b32 s%d, s%d, 6" % (sT2, sW)); a("s_add_u32 s%d, s%d, s%d" % (sT, sT, sT2)); a("s_add_u32 s%d, s%d, 0x%x" % (sT, sT, AX))
    a("v_lshl_add_u32 v%d, v%d, 4, s%d" % (vT[7], vT[3], sT)); a("v_cmp_gt_u32 vcc, 4, v%d" % vT[3]); a("v_mov_b32 v%d, 0x%x" % (vT[8], OOB)); nop(1)
    a("v_cndmask_b32 v%d, v%d, v%d, vcc" % (vT[7], vT[8], vT[7]))
    a("s_branch " + lJ)
    g.lab(lC)
    if par is None: a("s_mul_i32 s%d, s%d, 14" % (sCI, sG)); a("s_add_u32 s%d, s%d, s%d" % (sCI, sCI, sS)); a("s_sub_u32 s%d, s%d, 16" % (sCI, sCI))
    else: a("s_lshr_b32 s%d, s%d, 1" % (sT, sG)); a("s_mul_i32 s%d, s%d, 28" % (sCI, sT)); a("s_add_u32 s%d, s%d, s%d" % (sCI, sCI, sS))
    a("s_mov_b64 %s, %s" % (sp(sR1_), sp(sWGp))); a("s_mov_b64 %s, %s" % (sp(sR2_), sp(sWUp)))
    for b in (sR1_, sR2_): a("s_mov_b32 s%d, %d" % (b+2, 512*3584))
    a("s_mov_b32 s%d, %d" % (sWST, 32*3584)); a("s_mov_b32 s%d, 0" % sWH)
    a("v_lshrrev_b32 v%d, 1, v%d" % (vT[7], vL)); a("v_mul_u32_u24 v%d, 3584, v%d" % (vT[7], vT[7])); a("v_lshl_add_u32 v%d, v%d, 4, v%d" % (vT[7], vT[5], vT[7]))
    a("s_mul_i32 s%d, s%d, %d" % (sT, sW, 128*3584)); a("s_lshl_b32 s%d, s%d, 5" % (sT2, sCI)); a("s_add_u32 s%d, s%d, s%d" % (sT, sT, sT2)); a("v_add_u32 v%d, s%d, v%d" % (vAd[5], sT, vT[7]))
    a("s_lshl_b32 s%d, s%d, 11" % (sT, sCI)); a("s_lshl_b32 s%d, s%d, 9" % (sT2, sW)); a("s_add_u32 s%d, s%d, s%d" % (sT, sT, sT2)); a("s_add_u32 s%d, s%d, 0x%x" % (sT, sT, DX))
    a("v_lshl_add_u32 v%d, v%d, 4, s%d" % (vT[7], vT[3], sT))
    a("s_branch " + lJ)
    g.lab(lD)
    if par is None: a("s_lshl_b32 s%d, s%d, 1" % (sCI, sG)); a("s_add_u32 s%d, s%d, s%d" % (sCI, sCI, sS)); a("s_sub_u32 s%d, s%d, 30" % (sCI, sCI))
    else: a("s_lshr_b32 s%d, s%d, 1" % (sT, sG)); a("s_lshl_b32 s%d, s%d, 2" % (sCI, sT)); a("s_add_u32 s%d, s%d, s%d" % (sCI, sCI, sS)); a("s_sub_u32 s%d, s%d, 28" % (sCI, sCI))
    for b in (sR1_, sR2_): a("s_mov_b64 %s, %s" % (sp(b), sp(sWOp))); a("s_mov_b32 s%d, 0" % (b+2))
    a("s_mov_b32 s%d, 0" % sWST); a("s_mov_b32 s%d, 0" % sWH)
    a("v_mov_b32 v%d, 0" % vAd[5]); a("v_mov_b32 v%d, 0x%x" % (vT[7], OOB))
    g.lab(lJ)
    a("v_cmp_gt_u32 vcc, 32, v%d" % vL)
    a("s_lshl_b32 s%d, s%d, 13" % (sT, sG)); a("s_lshl_b32 s%d, s%d, 8" % (sT2, sS)); a("s_add_u32 s%d, s%d, s%d" % (sT, sT, sT2)); a("s_add_u32 s%d, s%d, 0x%x" % (sT, sT, QX))
    a("v_cndmask_b32 v%d, v%d, v%d, vcc" % (vT[7], vT[7], vAd[8]))
    if "clr" not in abl: g.vm("buffer_store_dwordx4 %s, v%d, %s, 0 offen sc1" % (r(vSen, 4), vT[7], srd(sWS)), "clr0")
    a("v_lshl_add_u32 v%d, v%d, 2, s%d" % (vAd[9], vL, sT))
    a("s_lshl_b32 s%d, s%d, 6" % (sT2, sW)); a("s_add_u32 s%d, s%d, s%d" % (sT, sT, sT2)); a("v_lshl_add_u32 v%d, v%d, 4, s%d" % (vT[8], vL, sT))
    wg_lin(sT); a("s_lshl_b32 s%d, s%d, 7" % (sT, sT)); a("s_add_u32 s%d, s%d, %d" % (sT, sT, SX - 64)); a("s_cmp_eq_u32 s%d, 0" % sW); a("s_cselect_b32 s%d, s%d, 0x%x" % (sT, sT, OOB))
    a("v_lshl_add_u32 v%d, v%d, 4, s%d" % (vT[9], vL, sT)); a("v_cmp_gt_u32 vcc, 4, v%d" % vL); nop(2)
    a("v_cndmask_b32 v%d, v%d, v%d, vcc" % (vT[8], vT[9], vT[8]))
    if n_t:
        a("s_lshl_b32 s%d, s%d, 7" % (sT, sG)); a("s_add_u32 s%d, s%d, 0x%x" % (sT, sT, TX)); a("v_mov_b32 v%d, s%d" % (vTX, sT)); a("v_cmp_eq_u32 vcc, 6, v%d" % vL); nop(2)
        a("v_cndmask_b32 v%d, v%d, v%d, vcc" % (vT[8], vT[8], vTX))
    a("s_mov_b64 exec, %s" % ("0x7f" if n_t else "63"))
    if "clr" not in abl: g.vm("buffer_store_dwordx4 %s, v%d, %s, 0 offen sc1" % (r(vSen, 4), vT[8], srd(sWS)), "clr1")
    a("s_mov_b64 exec, -1")
    for n in range(K0, D0): issue(n)
    g.vm("buffer_load_dwordx2 %s, v%d, %s, 0 offen" % (r(vXr, 2), vAd[1], srd(sX)), "x")
    a("v_lshlrev_b32 v%d, 4, v%d" % (vT[0], vL)); g.vm("buffer_load_dwordx4 %s, v%d, %s, 0 offen" % (r(vXf, 4), vT[0], srd(sX)), "xf")
    a("s_lshl_b32 s%d, s%d, 2" % (sT, sKB)); a("s_add_u32 s%d, s%d, s%d" % (sT, sT, sW)); a("s_lshl_b32 s%d, s%d, 6" % (sT, sT)); a("v_lshl_add_u32 v%d, v%d, 3, s%d" % (vT[0], vT[2], sT))
    g.vm("buffer_load_dwordx2 %s, v%d, %s, 0 offen" % (r(vXa, 2), vT[0], srd(sX)), "xa0"); g.vm("buffer_load_dwordx2 %s, v%d, %s, 0 offen offset:32" % (r(vXa+2, 2), vT[0], srd(sX)), "xa1")
    a("s_lshl_b32 s%d, s%d, 12" % (sT, sW))
    for i in range(4):
        a("s_add_u32 m0, s%d, %d" % (sT, LWQ + i*1024)); a("s_mov_b32 s%d, %d" % (sT2, i*65536))
        if "wq" not in abl: g.vm("buffer_load_dwordx4 v%d, %s, s%d offen %s lds" % (vAd[2], srd(sWQ), sT2, wpol), "wq%d" % i)
    if dbgst: stamp('issD')
    a("s_mov_b32 s%d, 0x%x" % (sL2E, LOG2E)); a("s_mov_b32 s%d, 0x%x" % (sSC, SCALE))
    for m, bit in ((sB0, 1), (sB1, 2), (sR1, 16), (sR2, 32)):
        a("v_and_b32 v%d, %d, v%d" % (vT[0], bit, vL)); a("v_cmp_ne_u32 %s, 0, v%d" % (sp(m), vT[0]))
    a("v_mov_b32 v%d, 0xffff" % vT[0]); a("v_mov_b32 v%d, 0xffff0000" % vT[1])
    cnd(vT[0], "v%d" % vT[0], "v%d" % vT[1], sp(sB0)); cnd(vM0, "v%d" % vT[0], "0", sp(sB1)); cnd(vM1, "0", "v%d" % vT[0], sp(sB1))
    for i in range(8): a("v_mov_b32 v%d, 0" % (vO + i))

    work = []; nxt = [D0]; qk_done = [0]
    def at(n, f): work.append((n, len(work), f))
    def pump(k=1):
        for _ in range(k):
            n = nxt[0]
            if n >= 128: return
            if n >= 64: assert qk_done[0] > (n - 64)//4 or "qk" in abl, "V load would overwrite unread K"
            if n >= D: g.wait("n%d" % (n - D))
            issue(n); nxt[0] += 1
    def barrier():
        pump(); a("s_waitcnt lgkmcnt(0)"); a("s_barrier")
    def sel_tile(d, b):
        cnd(d, "v%d" % b, "v%d" % (b+4), sp(sR1)); cnd(vT[1], "v%d" % (b+8), "v%d" % (b+12), sp(sR1)); cnd(d, "v%d" % d, "v%d" % vT[1], sp(sR2))
    def red64(x, t):
        red32(x, t); red_swap("v_add_f32", x, t, 32)

    def c_x0():
        g.wait("wq3")
        stamp("x0in")
        a("s_lshl_b32 s%d, s%d, 12" % (sT, sW)); a("v_lshrrev_b32 v%d, 5, v%d" % (vT[0], vL)); a("v_lshlrev_b32 v%d, 10, v%d" % (vT[0], vT[0]))
        a("v_and_b32 v%d, 31, v%d" % (vT[1], vL)); a("v_lshl_add_u32 v%d, v%d, 3, v%d" % (vT[0], vT[1], vT[0])); a("v_add_u32 v%d, s%d, v%d" % (vT[3], sT, vT[0]))
        for c in range(4):
            for rr in range(2): a("ds_read_b64_tr_b16 %s, v%d offset:%d" % (r(vW + 4*c + 2*rr, 2), vT[3], LWQ + 2*rr*1024 + c*256))
        unpack4(vX, vXr); unpack4(vD, vXf); unpack4(vD+4, vXf+2)
        a("v_pk_add_f32 %s, %s, %s" % (r(vD+8, 2), r(vD, 2), r(vD+2, 2))); a("v_pk_add_f32 %s, %s, %s" % (r(vD+10, 2), r(vD+4, 2), r(vD+6, 2)))
        a("v_pk_add_f32 %s, %s, %s" % (r(vD+8, 2), r(vD+8, 2), r(vD+10, 2))); a("v_add_f32 v%d, v%d, v%d" % (vT[0], vD+8, vD+9))
        pump()
        red64(vT[0], vT[1])
        a("v_mul_f32 v%d, 0x3b000000, v%d" % (vT[0], vT[0]))
        for e in range(8): a("v_sub_f32 v%d, v%d, v%d" % (vD+e, vD+e, vT[0]))
        a("v_mul_f32 v%d, v%d, v%d" % (vT[2], vD, vD))
        for e in range(1, 8): a("v_fmac_f32 v%d, v%d, v%d" % (vT[2], vD+e, vD+e))
        pump()
        red64(vT[2], vT[1])
        a("v_mul_f32 v%d, 0x3b000000, v%d" % (vT[2], vT[2]))
        rbf2(vT[0], vT[2], vT[0], vT[2], vT[1])
        a("v_add_f32 v%d, 0x%x, v%d" % (vT[2], EPS, vT[2])); rbf(vT[2], vT[2]); a("v_sqrt_f32 v%d, v%d" % (vT[2], vT[2]))
        unpack4(vD, vXa); unpack4(vD+4, vXa+2)
        rbf(vT[2], vT[2]); a("v_rcp_f32 v%d, v%d" % (vT[2], vT[2]))
        pump()
        for e in range(8): a("v_sub_f32 v%d, v%d, v%d" % (vD+e, vD+e, vT[0]))
        for e in range(0, 8, 2): rbf2(vD+e, vD+e+1, vD+e, vD+e+1, vT[1])
        for e in range(8): a("v_mul_f32 v%d, v%d, v%d" % (vD+e, vD+e, vT[2]))
        for e in range(4): a("v_cvt_pk_bf16_f32 v%d, v%d, v%d" % (vA+e, vD+2*e, vD+2*e+1))
        a("s_lshl_b32 s%d, s%d, 2" % (sT, sW)); a("v_lshl_add_u32 v%d, v%d, 4, s%d" % (vT[9], vL, sT))
        a("s_waitcnt lgkmcnt(0)")
        for c in range(4): a("v_mfma_f32_16x16x32_bf16 %s, %s, %s, 0" % (r(vD + 4*c, 4), r(vA, 4), r(vW + 4*c, 4)))
        pump(); nop(8)
        sel_tile(vT[0], vD)
        a("ds_write_b32 v%d, v%d offset:%d" % (vT[9], vT[0], LRED))
        a("v_mov_b32 v%d, 0x3f803f80" % vT[2]); a("v_lshlrev_b32 v%d, 2, v%d" % (vT[3], vL)); a("ds_write_b32 v%d, v%d offset:%d" % (vT[3], vT[2], LONE))
        barrier()
        l2, l3 = g.newlab("L_nosig"), g.newlab("L_noq")
        a("s_cmp_lg_u32 s%d, 3" % sW); a("s_cbranch_scc1 " + l2)
        if ssig:
            a("s_and_b32 s%d, s2, 63" % sT); a("s_lshl_b32 s%d, s%d, 2" % (sT, sT)); a("s_mov_b32 s%d, 1" % sCNT)
            a("s_atomic_add s%d, %s, s%d" % (sCNT, sp(sDBG), sT))
        elif "sig" not in abl:
            a("s_and_b32 s%d, s2, 63" % sT); a("s_lshl_b32 s%d, s%d, 2" % (sT, sT)); a("v_mov_b32 v%d, s%d" % (vT[0], sT)); a("v_mov_b32 v%d, 1" % vT[1])
            a("s_mov_b64 exec, 1"); a("buffer_atomic_add v%d, v%d, %s, 0 offen sc1" % (vT[1], vT[0], srd(sDBG))); a("s_mov_b64 exec, -1")
        g.lab(l2)
        a("s_cmp_lg_u32 s%d, 0" % sW); a("s_cbranch_scc1 " + l3)
        a("v_lshlrev_b32 v%d, 4, v%d" % (vT[0], vL)); a("ds_read_b128 %s, v%d offset:%d" % (r(vD, 4), vT[0], LRED)); a("s_waitcnt lgkmcnt(0)")
        sum4(vD)
        a("buffer_store_dword v%d, v%d, %s, 0 offen sc1" % (vD, vAd[9], srd(sWS)))
        g.lab(l3)
        if not dbgst: stamp("qpub")
    if 'x0' not in abl: at(n_x0, c_x0)
    else: at(n_x0, lambda: stamp('x0in')); at(n_x0+2, lambda: stamp('qpub'))

    def retry(check, reload):
        if "poll" in abl: return
        lp, ok = g.newlab("L_retry"), g.newlab("L_ok")
        check()
        a("s_cbranch_vccz " + ok)
        a("s_mov_b32 s%d, 0" % sCNT)
        g.lab(lp)
        a("s_mov_b64 exec, vcc")
        reload()
        a("s_mov_b64 exec, -1")
        a("s_waitcnt vmcnt(0)")
        check()
        a("s_add_u32 s%d, s%d, 1" % (sCNT, sCNT)); a("s_cmp_ge_u32 s%d, %d" % (sCNT, spin)); a("s_cbranch_scc1 " + ok)
        a("s_cbranch_vccnz " + lp)
        g.lab(ok)
    def chk_sen(base, n):
        def f():
            t = vT[0]
            if n == 4:
                a("v_max3_u32 v%d, v%d, v%d, v%d" % (t, base, base+1, base+2)); a("v_max_u32 v%d, v%d, v%d" % (t, t, base+3))
            else:
                t2 = vT[1]; h = n//2
                a("v_max_u32 v%d, v%d, v%d" % (t, base, base+1)); a("v_max_u32 v%d, v%d, v%d" % (t2, base+h, base+h+1))
                for i in range(2, h, 2):
                    a("v_max3_u32 v%d, v%d, v%d, v%d" % (t, t, base+i, base+i+1)); a("v_max3_u32 v%d, v%d, v%d, v%d" % (t2, t2, base+h+i, base+h+i+1))
                a("v_max_u32 v%d, v%d, v%d" % (t, t, t2))
            a("v_cmp_eq_u32 vcc, -1, v%d" % t)
        return f
    MK = [8, 10, 12, 14, 24, 26, 48, 50]
    SO = [20, 21, 22, 23, 44, 45, 46, 47]
    def gather(n, addr, offs, pre=None, delay=0, post=None):
        if "exit" in abl: g.waitall(); return
        ld = lambda i: "buffer_load_dwordx4 %s, v%d, %s, s%d offen sc1" % (r(vG + 4*i, 4), addr, srd(sWS), SO[i])
        top, lp, ok, done = g.newlab("L_gather"), g.newlab("L_retry"), g.newlab("L_ok"), g.newlab("L_done")
        for i in range(n): a("s_mov_b32 s%d, 0x%x" % (SO[i], offs[i]))
        a("s_mov_b32 s%d, 0" % sCNT)
        if delay: a("s_sleep %d" % delay)
        if pre:
            for i in range(n): g.vm(ld(i), "g%d" % i)
            pre()
            a("s_branch %s_w" % top)
        g.lab(top)
        for i in range(n): a(ld(i))
        g.lab(top + "_w")
        chk = lambda i: a("v_cmp_eq_u32 %s, -1, v%d" % (sp(MK[i]), vG + 4*i))
        def anym():
            a("s_or_b64 vcc, %s, %s" % (sp(MK[0]), sp(MK[1])))
            for i in range(2, n): a("s_or_b64 vcc, vcc, %s" % sp(MK[i]))
        g.waitall()
        g.lab(top + "_c")
        for i in range(n): chk(i)
        anym(); a("s_cbranch_scc0 " + ok)
        g.lab(lp)
        if psleep: a("s_sleep %d" % psleep)
        if post:
            a("s_and_b32 s%d, s%d, 15" % (sT, sCNT)); a("s_cmp_lg_u32 s%d, %d" % (sT, repub_at)); a("s_cbranch_scc1 %s_n" % lp); post(); g.lab(lp + "_n")
        for i in range(n):
            a("s_mov_b64 exec, %s" % sp(MK[i])); a(ld(i))
        a("s_mov_b64 exec, -1")
        a("s_add_u32 s%d, s%d, 1" % (sCNT, sCNT)); a("s_cmp_ge_u32 s%d, %d" % (sCNT, spin))
        a("s_waitcnt vmcnt(0)")
        a("s_cbranch_scc1 " + ok)
        for i in range(n): chk(i)
        anym(); a("s_cbranch_scc1 " + lp)
        g.lab(ok)
        sum_g(n)
        a("s_add_u32 s%d, s%d, 1" % (sCNT, sCNT))
        a("v_cmp_u_f32 vcc, v%d, v%d" % (vG, vG+1)); a("v_cmp_u_f32 %s, v%d, v%d" % (sp(MK[0]), vG+2, vG+3))
        a("s_cmp_ge_u32 s%d, %d" % (sCNT, spin)); a("s_cbranch_scc1 " + done)
        a("s_or_b64 vcc, vcc, %s" % sp(MK[0])); a("s_cbranch_scc1 " + top)
        g.lab(done)
        if post: post()
    def sum_g(n):
        st = 1
        while st < n:
            for i in range(0, n, 2*st):
                if i + st < n:
                    for h in range(2): a("v_pk_add_f32 %s, %s, %s" % (r(vG+4*i+2*h, 2), r(vG+4*i+2*h, 2), r(vG+4*(i+st)+2*h, 2)))
            st *= 2
    G4 = [vG+i for i in range(4)]; G4b = [vG+4+i for i in range(4)]

    ld_cnt = lambda: "buffer_load_dword v%d, v%d, %s, 0 offen sc1" % (vCn, vAd[3], srd(sDBG))
    def c_cnt():
        a("v_lshlrev_b32 v%d, 2, v%d" % (vAd[3], vL)); g.vm(ld_cnt(), "cnt")
    def ld_q(emit):
        for i in range(2): emit("buffer_load_dwordx4 %s, v%d, %s, s%d offen sc1" % (r(vG + 4*i, 4), vAd[6], srd(sWS), sT2 if i == 0 else sT), "q%d" % i)
    def q_base():
        a("s_lshl_b32 s%d, s%d, 13" % (sT2, sG)); a("s_add_u32 s%d, s%d, 0x%x" % (sT2, sT2, QX)); a("s_add_u32 s%d, s%d, 4096" % (sT, sT2))
    def c_qld():
        g.wait("cnt")
        if "cnt" not in abl: retry(lambda: a("v_cmp_gt_u32 vcc, 4, v%d" % vCn), lambda: a(ld_cnt()))
        a("s_lshl_b32 s%d, s%d, 9" % (sT, sW)); a("v_lshrrev_b32 v%d, 5, v%d" % (vT[0], vL)); a("v_and_b32 v%d, 31, v%d" % (vT[1], vL))
        a("v_lshlrev_b32 v%d, 11, v%d" % (vT[0], vT[0])); a("v_lshl_add_u32 v%d, v%d, 4, v%d" % (vT[0], vT[1], vT[0])); a("v_add_u32 v%d, s%d, v%d" % (vAd[6], sT, vT[0]))
        q_base(); ld_q(g.vm)
    def c_qchk():
        g.wait("q1"); q_base()
        retry(chk_sen(vG, 8), lambda: ld_q(lambda t, tag: a(t)))
        sum_g(2); red_swap_n("v_add_f32", G4, G4b, 32)
        a("v_cvt_pk_bf16_f32 v%d, v%d, v%d" % (vT[4], vG, vG+1)); a("v_cvt_pk_bf16_f32 v%d, v%d, v%d" % (vT[5], vG+2, vG+3))
        a("ds_write_b64 v%d, %s offset:%d" % (vAd[1], r(vT[4], 2), LQ))
        barrier()
        a("ds_read_b128 %s, v%d offset:%d" % (r(vQ, 4), vAd[0], LQ)); a("s_waitcnt lgkmcnt(0)")
        if not dbgst: stamp("qok")
    if 'qg' not in abl: at(n_cnt, c_cnt); at(n_q, c_qld); at(n_qk, c_qchk)
    else: at(n_qk, lambda: stamp('qok'))

    def qk_step(T):
        def f():
            g.wait("n%d" % (4*T + 3))
            for u in range(4):
                a("v_mfma_f32_16x16x32_bf16 %s, %s, %s, 0" % (r(vD + 4*u, 4), ar(16*T + 4*u, 4), r(vQ, 4)))
            nop(8)
            Dv = lambda u, j: vD + 4*u + j
            for rr in (3, 2, 1, 0):
                X = [Dv(aa ^ rr, aa) for aa in range(4)]
                cnd(vT[4], "v%d" % X[0], "v%d" % X[1], sp(sB0)); cnd(vT[5], "v%d" % X[2], "v%d" % X[3], sp(sB0)); cnd(vT[rr], "v%d" % vT[4], "v%d" % vT[5], sp(sB1))
            dpp("v_add_f32", vT[2], vT[3], vT[2], "quad_perm:[1,0,3,2]"); nop(1)
            dpp("v_add_f32", vT[0], vT[1], vT[0], "quad_perm:[1,0,3,2]"); nop(2)
            dpp("v_add_f32", vT[0], vT[2], vT[0], "quad_perm:[2,3,0,1]")
            rbf(vT[0], vT[0]); a("v_mul_f32 v%d, s%d, v%d" % (vT[0], sSC, vT[0])); rbf(vS + T, vT[0])
            qk_done[0] += 1
        return f
    nq = n_qk + 2
    for T in range(16):
        nq = max(nq, 4*T + 3 + D)
        assert nq < 64 + 4*T
        if 'qk' not in abl: at(nq, qk_step(T))
        nq += 1
    n_st = nq

    def red_hs(op, x, t):
        red_quad(op, x); red_swap(op, x, t, 16); red_swap(op, x, t, 32)
    def c_stat1():
        if not dbgst: stamp("qkdone")
        a("v_max3_f32 v%d, v%d, v%d, v%d" % (vMx, vS, vS+1, vS+2))
        for i in range(3, 15, 2): a("v_max3_f32 v%d, v%d, v%d, v%d" % (vMx, vMx, vS+i, vS+i+1))
        a("v_max_f32 v%d, v%d, v%d" % (vMx, vMx, vS+15))
        red_hs("v_max_f32", vMx, vT[0])
    def c_stat2():
        for i in range(16):
            expsub(vD + i, vS + i, vMx)
            if i == 9: pump()
        nop(1)
        for st in (8, 4, 2, 1):
            for i in range(st): a("v_add_f32 v%d, v%d, v%d" % (vD+i, vD+i, vD+i+st))
        pump()
        red_hs("v_add_f32", vD, vT[0])
        a("v_mov_b32 v%d, v%d" % (vT[4], vMx)); a("v_mov_b32 v%d, v%d" % (vT[5], vD))
        a("v_bfe_u32 v%d, v%d, 2, 2" % (vT[0], vL)); a("s_lshl_b32 s%d, s%d, 3" % (sT, sW)); a("s_add_u32 s%d, s%d, %d" % (sT, sT, LS2))
        a("v_lshl_add_u32 v%d, v%d, 5, s%d" % (vT[1], vT[0], sT))
        a("s_mov_b64 exec, 0x1111"); a("ds_write_b64 v%d, %s" % (vT[1], r(vT[4], 2))); a("s_mov_b64 exec, -1")
        barrier()
        l2 = g.newlab("L_nost")
        a("s_cmp_lg_u32 s%d, 0" % sW); a("s_cbranch_scc1 " + l2)
        a("s_mov_b64 exec, 0x1111")
        a("v_lshlrev_b32 v%d, 5, v%d" % (vT[1], vT[0]))
        a("ds_read_b128 %s, v%d offset:%d" % (r(vD, 4), vT[1], LS2)); a("ds_read_b128 %s, v%d offset:%d" % (r(vD+4, 4), vT[1], LS2+16))
        wg_lin(sT); a("s_lshl_b32 s%d, s%d, 7" % (sT, sT)); a("s_add_u32 s%d, s%d, 0x%x" % (sT, sT, SX))
        a("v_lshlrev_b32 v%d, 3, v%d" % (vT[1], vT[0]))
        a("s_waitcnt lgkmcnt(0)")
        a("v_max3_f32 v%d, v%d, v%d, v%d" % (vT[4], vD, vD+2, vD+4)); a("v_max_f32 v%d, v%d, v%d" % (vT[4], vT[4], vD+6))
        for i in range(4): expsub(vD + 2*i, vD + 2*i, vT[4])
        nop(1)
        a("v_mul_f32 v%d, v%d, v%d" % (vT[5], vD, vD+1))
        for i in range(1, 4): a("v_fmac_f32 v%d, v%d, v%d" % (vT[5], vD+2*i, vD+2*i+1))
        a("buffer_store_dwordx2 %s, v%d, %s, s%d offen sc1" % (r(vT[4], 2), vT[1], srd(sWS), sT))
        a("s_mov_b64 exec, -1")
        g.lab(l2)
    if 'stat' not in abl: at(n_st, c_stat1); at(n_st+1, c_stat2)
    else: at(n_st, lambda: stamp('qkdone')); pass
    assert n_sg > n_st + 1
    def ld_sg(emit):
        emit("buffer_load_dwordx2 %s, v%d, %s, s%d offen sc1" % (r(vSG, 2), vAd[4], srd(sWS), sT2), "sg0")
        emit("buffer_load_dwordx2 %s, v%d, %s, s%d offen offset:2048 sc1" % (r(vSG+2, 2), vAd[4], srd(sWS), sT2), "sg1")
    def sg_base(): a("s_lshl_b32 s%d, s%d, 12" % (sT2, sG)); a("s_add_u32 s%d, s%d, 0x%x" % (sT2, sT2, SX))
    def c_sg():
        a("v_lshrrev_b32 v%d, 4, v%d" % (vT[0], vL)); a("v_and_b32 v%d, 3, v%d" % (vT[1], vL)); a("v_lshl_add_u32 v%d, v%d, 2, v%d" % (vT[0], vT[0], vT[1]))
        a("v_bfe_u32 v%d, v%d, 2, 2" % (vT[1], vL)); a("v_lshlrev_b32 v%d, 3, v%d" % (vT[1], vT[1])); a("v_lshl_add_u32 v%d, v%d, 7, v%d" % (vAd[4], vT[0], vT[1]))
        sg_base(); ld_sg(g.vm)
    def c_p():
        g.wait("sg1"); sg_base()
        retry(chk_sen(vSG, 4), lambda: ld_sg(lambda t, tag: a(t)))
        stamp("sgok")
        a("v_max_f32 v%d, v%d, v%d" % (vMx, vSG, vSG+2)); red_hs("v_max_f32", vMx, vT[0])
        pump()
        expsub(vSG, vSG, vMx); expsub(vSG+2, vSG+2, vMx); nop(1)
        a("v_mul_f32 v%d, v%d, v%d" % (vRl, vSG, vSG+1)); a("v_fmac_f32 v%d, v%d, v%d" % (vRl, vSG+2, vSG+3))
        red_hs("v_add_f32", vRl, vT[0]); a("v_rcp_f32 v%d, v%d" % (vRl, vRl))
    def c_p2():
        for i in range(16):
            expsub(vS + i, vS + i, vMx)
            if i == 9: pump()
        pump()
        for i in range(16): a("v_mul_f32 v%d, v%d, v%d" % (vS+i, vS+i, vRl))
        for i in range(16): a("v_cvt_pk_bf16_f32 v%d, v%d, v%d" % (vS+i, vS+i, vS+i))
        nop(2)
    if 'stat' not in abl: at(n_sg, c_sg); at(n_pv, c_p); at(n_pv+1, c_p2)
    else: at(n_pv, lambda: stamp('sgok'))

    pvn = [0]
    def pv_prep(j):
        if "pv" in abl: return
        T, u = divmod(j, 4); tp = vTP + 2*(j % 4)
        ctl = "quad_perm:[%d,%d,%d,%d]" % (u, u, u, u)
        dpp("v_and_b32", tp, vS + T, vM0, ctl); dpp("v_and_b32", tp+1, vS + T, vM1, ctl)
    def pv_mma(j):
        if "pv" in abl: return
        tp = vTP + 2*(j % 4)
        a("v_mfma_f32_16x16x16_bf16 %s, %s, %s, %s" % (r(vO, 4), r(tp, 2), ar(4*j, 2), r(vO, 4)))
        a("v_mfma_f32_16x16x16_bf16 %s, %s, %s, %s" % (r(vO+4, 4), r(tp, 2), ar(4*j+2, 2), r(vO+4, 4)))
    def pv_upto(jmax):
        while pvn[0] < jmax:
            j = pvn[0]
            if j == 0: pv_prep(0)
            if j + 1 < 64: pv_prep(j + 1)
            else: nop(1)
            g.wait("n%d" % (64 + j))
            pv_mma(j); pvn[0] += 1
    for n in range(n_pv + 5, 128):
        at(n, lambda: pv_upto(min(pvn[0] + pv_rate, nxt[0] - D - 64)))

    def w_load(i, kind="wo"):
        def f():
            if kind in abl: return
            a("s_lshl_b32 s%d, s%d, 13" % (sT, sW)); a("s_add_u32 m0, s%d, %d" % (sT, LW + i*1024))
            a("s_mul_i32 s%d, s%d, %d" % (sT2, sWST, i & 3))
            if i >= 4: a("s_add_u32 s%d, s%d, s%d" % (sT2, sT2, sWH))
            g.vm("buffer_load_dwordx4 v%d, %s, s%d offen %s lds" % (vAd[5], srd(sR1_ if i < 4 else sR2_), sT2, wpol), "w%d" % i)
        return f
    def c_pf():
        if "pf" in abl: return
        a("s_cmp_lt_u32 s%d, 2" % sW); a("s_cselect_b64 %s, %s, %s" % (sp(sPF), sp(sWGp), sp(sWUp)))
        a("s_mov_b32 s%d, %d" % (sPF+2, 512*3584)); a("s_mov_b32 s%d, 0x20000" % (sPF+3))
        a("s_lshl_b32 s%d, s%d, 1" % (sT, sS)); a("s_and_b32 s%d, s%d, 1" % (sT2, sW)); a("s_add_u32 s%d, s%d, s%d" % (sT, sT, sT2))
        if par is not None:
            a("s_mul_i32 s%d, s%d, %d" % (sT, sT, 8*3584)); a("s_lshr_b32 s%d, s%d, 1" % (sT2, sG)); a("s_mul_i32 s%d, s%d, 896" % (sT2, sT2)); sh, msk = 3, "0x7f7f7f7f"
        elif pf_role:
            a("s_sub_u32 s%d, s%d, 32" % (sT, sT)); a("s_mul_i32 s%d, s%d, %d" % (sT, sT, 16*3584)); a("s_mul_i32 s%d, s%d, 448" % (sT2, sG)); a("s_and_b32 s%d, s%d, 0xffffff80" % (sT2, sT2)); sh, msk = 2, None
        else:
            a("s_mul_i32 s%d, s%d, %d" % (sT, sT, 8*3584)); a("s_mul_i32 s%d, s%d, 448" % (sT2, sG)); a("s_and_b32 s%d, s%d, 0xffffff80" % (sT2, sT2)); sh, msk = 2, "lo"
        a("s_add_u32 s%d, s%d, s%d" % (sT, sT, sT2))
        a("v_lshrrev_b32 v%d, %d, v%d" % (vT[0], sh, vL)); a("v_mul_u32_u24 v%d, 3584, v%d" % (vT[0], vT[0])); a("v_and_b32 v%d, %d, v%d" % (vT[1], (1 << sh) - 1, vL))
        a("v_lshl_add_u32 v%d, v%d, 7, v%d" % (vT[0], vT[1], vT[0]))
        if msk == "lo": a("s_mov_b64 exec, 0xffffffff")
        elif msk: a("s_mov_b32 exec_lo, %s" % msk); a("s_mov_b32 exec_hi, %s" % msk)
        g.vm("buffer_load_dword v%d, v%d, %s, s%d offen %s" % (vCn, vT[0], srd(sPF), sT, pfpol), "pf")
        a("s_mov_b64 exec, -1")
    if par is not None: assert n_pf is None
    def c_tsig():
        l2 = g.newlab("L_notsig")
        a("s_cmp_lg_u32 s%d, 0" % sW); a("s_cbranch_scc1 " + l2)
        a("v_mov_b32 v%d, 1" % vT[1]); a("s_mov_b64 exec, 1"); a("buffer_atomic_add v%d, v%d, %s, 0 offen sc1" % (vT[1], vTX, srd(sWS))); a("s_mov_b64 exec, -1")
        g.lab(l2)
    if n_t: at(n_t, c_tsig)
    ld_t = lambda: "buffer_load_dword v%d, v%d, %s, 0 offen sc1" % (vTv, vTX, srd(sWS))
    def t_wait():
        lp, ok = g.newlab("L_twait"), g.newlab("L_tok")
        g.wait("tv"); a("s_mov_b32 s%d, 0" % sCNT)
        g.lab(lp)
        a("v_cmp_gt_i32 vcc, 31, v%d" % vTv); a("s_add_u32 s%d, s%d, 1" % (sCNT, sCNT)); a("s_cbranch_vccz " + ok)
        a("s_cmp_ge_u32 s%d, %d" % (sCNT, spin)); a("s_cbranch_scc1 " + ok)
        a("s_sleep %d" % tsleep); a(ld_t()); a("s_waitcnt vmcnt(0)"); a("s_branch " + lp)
        g.lab(ok)
    if n_pf is not None: at(n_pf, c_pf)
    def wo_early(i):
        def f():
            l2 = g.newlab("L_nowo"); a("s_cmp_lg_u32 s%d, 0" % sROLE); a("s_cbranch_scc1 " + l2); q0 = list(g.q); w_load(i)(); g.q = q0; g.lab(l2)
        return f
    if wo_at:
        for i in range(8): at(wo_at[0] + i*wo_at[1], wo_early(i))

    work.sort(key=lambda x: x[:2])
    while nxt[0] < 128 or work:
        pump()
        while work and work[0][0] <= nxt[0] - 1:
            work.pop(0)[2]()
    stamp("lastissue")
    LB, LC, LD = "L_roleB", "L_roleC", "L_roleD"
    if "tail" in abl:
        pv_upto(64); stamp("pvdone"); stamp("opub"); a("s_branch L_fin"); nst[0] -= 2; del stn[-2:]
    a("s_cmp_eq_u32 s%d, 2" % sROLE); a("s_cbranch_scc1 " + LD)
    a("s_cmp_eq_u32 s%d, 1" % sROLE); a("s_cbranch_scc1 " + LC)
    q_save = list(g.q); pv_save = pvn[0]; nst_save = nst[0]

    def republish(role):
        if fast1 and (par is None or role == "B"):
            a("s_mov_b64 exec, 0xffffffff"); a("buffer_store_dwordx4 %s, v%d, %s, 0 offen sc1" % (r(vO, 4), vAd[8], srd(sWS))); a("s_mov_b64 exec, -1")
    def drain_publish(extra=(), role="C"):
        a("s_lshl_b32 s%d, s%d, 11" % (sT, sW)); a("v_lshl_add_u32 v%d, v%d, 5, s%d" % (vT[10], vL, sT))
        a("s_lshl_b32 s%d, s%d, 9" % (sT, sW)); a("v_and_b32 v%d, 31, v%d" % (vT[11], vL)); a("v_lshl_add_u32 v%d, v%d, 4, s%d" % (vT[11], vT[11], sT))
        extra = list(extra); k = 0
        while pvn[0] < 64:
            pv_upto(pvn[0] + 1); k += 1
            if extra and k > ex_at and pvn[0] < 64: extra.pop(0)()
        assert not extra or 'tail' in abl
        stamp("pvdone")
        nop(7)
        a("ds_write_b128 v%d, %s offset:%d" % (vT[10], r(vO, 4), LO)); a("ds_write_b128 v%d, %s offset:%d" % (vT[10], r(vO+4, 4), LO + 16))
        a("s_mov_b64 exec, 0xffffffff")
        a("s_waitcnt lgkmcnt(0)"); a("s_barrier")
        for w in range(4): a("ds_read_b128 %s, v%d offset:%d" % (r(vD + 4*w, 4), vT[11], LO + 2048*w))
        a("s_waitcnt lgkmcnt(2)")
        for h in range(2): a("v_pk_add_f32 %s, %s, %s" % (r(vD+2*h, 2), r(vD+2*h, 2), r(vD+4+2*h, 2)))
        a("s_waitcnt lgkmcnt(0)")
        for h in range(2): a("v_pk_add_f32 %s, %s, %s" % (r(vD+8+2*h, 2), r(vD+8+2*h, 2), r(vD+12+2*h, 2)))
        for h in range(2): a("v_pk_add_f32 %s, %s, %s" % (r(vD+2*h, 2), r(vD+2*h, 2), r(vD+8+2*h, 2)))
        if fast1 and (par is None or role == "B"):
            a("buffer_store_dwordx4 %s, v%d, %s, 0 offen" % (r(vD, 4), vAd[8], srd(sWS)))
            for i in range(4): a("v_mov_b32 v%d, v%d" % (vO + i, vD + i))
        else:
            a("buffer_store_dwordx4 %s, v%d, %s, 0 offen sc1" % (r(vD, 4), vAd[8], srd(sWS)))
        a("s_mov_b64 exec, -1")
        stamp("opub")
    def finish(role):
        if probe and role in probe[0]:
            ia, ib = stn.index(probe[1]), stn.index(probe[2]); lp = g.newlab("L_probe"); lq = g.newlab("L_noprobe")
            if len(probe) > 4: a("s_and_b32 s%d, s2, %d" % (sT, probe[4])); a("s_cmp_lg_u32 s%d, %d" % (sT, probe[5])); a("s_cbranch_scc1 " + lq)
            a("s_waitcnt lgkmcnt(0)")
            a("s_sub_u32 s%d, s%d, s%d" % (sT, sST + 2*ib, sST + 2*ia)); a("s_mul_i32 s%d, s%d, %d" % (sT, sT, probe[3]))
            a("s_min_u32 s%d, s%d, 100000" % (sT, sT)); a("s_add_u32 s%d, s%d, %d" % (sT, sT, probe_base))
            g.lab(lp)
            a("s_memrealtime s[54:55]"); a("s_waitcnt lgkmcnt(0)"); a("s_sub_u32 s%d, s54, s%d" % (sT2, sST))
            a("s_cmp_lt_u32 s%d, s%d" % (sT2, sT)); a("s_cbranch_scc1 " + lp)
            g.lab(lq)
        if stamps:
            a("s_waitcnt lgkmcnt(0)")
            a("s_lshl_b32 s%d, s2, 2" % sT); a("s_add_u32 s%d, s%d, s%d" % (sT, sT, sW)); a("s_lshl_b32 s%d, s%d, 6" % (sT, sT)); a("s_add_u32 s%d, s%d, 0x%x" % (sT, sT, STAMP))
            a("s_mov_b64 exec, 1"); a("v_mov_b32 v%d, s%d" % (vT[0], sT))
            for i in range(16):
                a("v_mov_b32 v%d, %s" % (vG + i, ("s%d" % (sST + 2*i)) if i < nst[0] else "0"))
            for i in range(4): a("buffer_store_dwordx4 %s, v%d, %s, 0 offen offset:%d" % (r(vG+4*i, 4), vT[0], srd(sWS), 16*i))
        a("s_endpgm")
    def attn_to_hpk(x, p):
        red_swap_n("v_add_f32", G4, G4b, 32)
        rbf2(vG, vG+1, vG, vG+1, vT[0]); rbf2(vG+2, vG+3, vG+2, vG+3, vT[1])
        for h in range(2): a("v_pk_add_f32 %s, %s, %s" % (r(vG+2*h, 2), r(vG+2*h, 2), r(x+2*h, 2)))
        a("v_cvt_pk_bf16_f32 v%d, v%d, v%d" % (p, vG, vG+1)); a("v_cvt_pk_bf16_f32 v%d, v%d, v%d" % (p+1, vG+2, vG+3))

    g.lab(LB)
    a("s_lshr_b32 s%d, s%d, 1" % (sT, sCI)); a("s_lshl_b32 s%d, s%d, 16" % (sT, sT)); a("s_and_b32 s%d, s%d, 1" % (sT2, sCI)); a("s_lshl_b32 s%d, s%d, 10" % (sT2, sT2)); a("s_add_u32 s%d, s%d, s%d" % (sT, sT, sT2))
    a("s_lshl_b32 s%d, s%d, 8" % (sT2, sW)); a("s_add_u32 s%d, s%d, s%d" % (sT, sT, sT2))
    a("v_lshrrev_b32 v%d, 4, v%d" % (vT[2], vL)); a("v_and_b32 v%d, 15, v%d" % (vT[4], vL))
    a("v_lshlrev_b32 v%d, 11, v%d" % (vT[0], vT[2])); a("v_lshl_add_u32 v%d, v%d, 4, v%d" % (vT[0], vT[4], vT[0])); a("v_add_u32 v%d, s%d, v%d" % (vAd[6], sT, vT[0]))
    a("s_lshl_b32 s%d, s%d, 13" % (sT, sW))
    a("v_lshrrev_b32 v%d, 5, v%d" % (vT[0], vL)); a("v_lshlrev_b32 v%d, 10, v%d" % (vT[0], vT[0]))
    a("v_and_b32 v%d, 31, v%d" % (vT[1], vL)); a("v_lshl_add_u32 v%d, v%d, 3, v%d" % (vT[0], vT[1], vT[0])); a("v_add_u32 v%d, s%d, v%d" % (vT[3], sT, vT[0]))
    a("s_lshl_b32 s%d, s%d, 8" % (sT, sW)); a("v_lshl_add_u32 v%d, v%d, 3, s%d" % (vAd[2], vT[4], sT))
    a("s_add_u32 s%d, s%d, %d" % (sT, sT, LACT2)); a("v_lshl_add_u32 v%d, v%d, 3, s%d" % (vAd[3], vT[2], sT))
    a("s_lshl_b32 s%d, s%d, 2" % (sT, sW)); a("v_lshl_add_u32 v%d, v%d, 4, s%d" % (vAd[4], vL, sT))
    a("s_lshl_b32 s%d, s%d, 11" % (sT, sCI)); a("s_lshl_b32 s%d, s%d, 8" % (sT2, sCB)); a("s_add_u32 s%d, s%d, s%d" % (sT, sT, sT2)); a("s_add_u32 s%d, s%d, 0x%x" % (sT, sT, AX))
    a("v_lshl_add_u32 v%d, v%d, 2, s%d" % (vAd[7], vL, sT)); a("v_lshlrev_b32 v%d, 4, v%d" % (vAd[9], vL))
    if wo_at or wo_late: drain_publish(role='B')
    elif D > 8 + ex_at: drain_publish([w_load(i) for i in range(8)], 'B')
    else:
        for i in range(9 + ex_at - D): w_load(i)()
        drain_publish([w_load(i) for i in range(9 + ex_at - D, 8)], 'B')
    def b_pre():
        if wo_late:
            if wo_late == 2: g.wait("g7")
            for i in range(8): w_load(i)()
        g.wait("w7")
        for ks in range(2):
            for c in range(4):
                for rr in range(2):
                    a("ds_read_b64_tr_b16 %s, v%d offset:%d" % (r(vW + 16*ks + 4*c + 2*rr, 2), vT[3], LW + (4*ks + 2*rr)*1024 + c*256))
    gather(8, vAd[6], [OX + 4*i*2048 for i in range(8)], b_pre, post=(lambda: republish('B')) if fast1 else None)
    stamp("x1ok")
    red_swap_n("v_add_f32", G4, G4b, 16); red_swap_n("v_add_f32", G4, G4b, 32)
    a("v_cvt_pk_bf16_f32 v%d, v%d, v%d" % (vT[4], vG, vG+1)); a("v_cvt_pk_bf16_f32 v%d, v%d, v%d" % (vT[5], vG+2, vG+3))
    a("ds_write_b64 v%d, %s offset:%d" % (vAd[2], r(vT[4], 2), LACT2))
    for ks in range(2): a("ds_read2_b64 %s, v%d offset0:%d offset1:%d" % (r(vA + 4*ks, 4), vAd[3], ks*8, ks*8 + 4))
    for ks in range(2):
        a("s_waitcnt lgkmcnt(%d)" % (1 - ks))
        for c in range(4):
            a("v_mfma_f32_16x16x32_bf16 %s, %s, %s, %s" % (r(vD + 4*c, 4), r(vA + 4*ks, 4), r(vW + 16*ks + 4*c, 4), r(vD + 4*c, 4) if ks else "0"))
    nop(7)
    sel_tile(vT[0], vD)
    a("ds_write_b32 v%d, v%d offset:%d" % (vAd[4], vT[0], LRED2))
    lb = g.newlab("L_bdone")
    a("s_cmp_lg_u32 s%d, 0" % sW)
    a("s_waitcnt lgkmcnt(0)"); a("s_barrier")
    a("s_cbranch_scc1 " + lb)
    a("ds_read_b128 %s, v%d offset:%d" % (r(vD, 4), vAd[9], LRED2)); a("s_waitcnt lgkmcnt(0)")
    sum4(vD)
    a("buffer_store_dword v%d, v%d, %s, 0 offen sc1" % (vD, vAd[7], srd(sWS)))
    g.lab(lb)
    stamp("bpub")
    finish("B")
    stB = list(stn)

    g.lab(LC); g.q = list(q_save); pvn[0] = pv_save; nst[0] = nst_save; del stn[nst_save:]
    a("v_lshrrev_b32 v%d, 4, v%d" % (vT[2], vL)); a("v_and_b32 v%d, 15, v%d" % (vT[4], vL))
    a("s_lshl_b32 s%d, s%d, 14" % (sT, sCI)); a("s_lshl_b32 s%d, s%d, 8" % (sT2, sW)); a("s_add_u32 s%d, s%d, s%d" % (sT, sT, sT2))
    a("v_lshlrev_b32 v%d, 12, v%d" % (vT[0], vT[2])); a("v_lshl_add_u32 v%d, v%d, 4, v%d" % (vT[0], vT[4], vT[0])); a("v_add_u32 v%d, s%d, v%d" % (vAd[7], sT, vT[0]))
    def wd_load(t):
        return lambda: None if "wd" in abl else g.vm("buffer_load_dwordx4 %s, v%d, %s, 0 offen offset:%d %s" % (r(vWD + 4*t, 4), vAd[7], srd(sWD), t*1024, wpol), "wd%d" % t)
    wdl = [wd_load(t) for t in range(4)]
    if pf_k is not None:
        ex = (wdl + [lambda: None]*8)[:pf_k] + [c_pf] + wdl[pf_k:]
        drain_publish(ex[:max(pf_k + 1, 5)])
    elif cw_late:
        drain_publish(wdl if wd_pos == 'drain' else ()); c_pf()
    else:
        c_pf(); drain_publish(wdl if wd_pos == 'drain' else ())
    if wd_pos == 'before':
        for f in wdl: f()
    for i in range(8): w_load(i, 'cw')()
    if wd_pos == 'after':
        for f in wdl: f()
    a("v_and_b32 v%d, 4, v%d" % (vT[0], vL)); a("v_cmp_ne_u32 vcc, 0, v%d" % vT[0])
    a("s_lshl_b32 s%d, s%d, 13" % (sT, sW)); a("v_lshl_add_u32 v%d, v%d, 3, s%d" % (vT[3], vL, sT))
    cnd(vP, "v%d" % vM0, "0", "vcc"); cnd(vP+1, "v%d" % vM1, "0", "vcc"); cnd(vP+2, "0", "v%d" % vM0, "vcc"); cnd(vP+3, "0", "v%d" % vM1, "vcc")
    a("s_lshl_b32 s%d, s%d, 8" % (sT, sW)); a("s_add_u32 s%d, s%d, %d" % (sT, sT, LACT2)); a("v_lshl_add_u32 v%d, v%d, 3, s%d" % (vAd[3], vT[2], sT))
    a("v_mov_b32 v%d, %d" % (vT[0], LONE)); cnd(vAd[3], "v%d" % vAd[3], "v%d" % vT[0], sp(sB0))
    a("v_and_b32 v%d, 31, v%d" % (vT[0], vL)); a("s_lshl_b32 s%d, s%d, 2" % (sT, sW)); a("v_lshl_add_u32 v%d, v%d, 4, s%d" % (vAd[4], vT[0], sT))
    a("v_and_b32 v%d, 3, v%d" % (vT[1], vL)); a("v_lshl_add_u32 v%d, v%d, 2, v%d" % (vT[0], vT[2], vT[1])); a("v_lshlrev_b32 v%d, 4, v%d" % (vAd[9], vT[0]))
    a("s_lshl_b32 s%d, s%d, 11" % (sT, sCI)); a("s_lshl_b32 s%d, s%d, 9" % (sT2, sW)); a("s_add_u32 s%d, s%d, s%d" % (sT, sT, sT2)); a("s_add_u32 s%d, s%d, 0x%x" % (sT, sT, DX))
    a("v_bfe_u32 v%d, v%d, 4, 1" % (vT[1], vL)); a("v_lshlrev_b32 v%d, 5, v%d" % (vT[0], vT[4])); a("v_lshl_add_u32 v%d, v%d, 4, v%d" % (vT[0], vT[1], vT[0])); a("v_add_u32 v%d, s%d, v%d" % (vAd[2], sT, vT[0]))
    a("s_lshl_b32 s%d, s%d, 2" % (sT, sW)); a("s_add_u32 s%d, s%d, %d" % (sT, sT, LST2)); a("v_mov_b32 v%d, s%d" % (vAd[0], sT)); a("v_mov_b32 v%d, %d" % (vAd[5], LST2))
    def c_pre():
        g.wait("w7")
        for mi in range(2):
            for ks in range(4):
                for rr in range(2):
                    a("ds_read_b64_tr_b16 %s, v%d offset:%d" % (r(vW + 16*mi + 4*ks + 2*rr, 2), vT[3], LW + mi*4096 + ks*1024 + rr*512))
        stamp("cwok")
    if ax_early: gather(8, vAd[6], [AX + 2*i*2048 for i in range(8)], c_pre)
    else: c_pre(); gather(8, vAd[6], [AX + 2*i*2048 for i in range(8)])
    stamp("x2ok")
    attn_to_hpk(vX, vT[4])
    a("ds_write_b64 v%d, %s offset:%d" % (vAd[1], r(vT[4], 2), LACT2))
    for ks in range(4): a("ds_read2_b64 %s, v%d offset0:%d offset1:%d" % (r(vA + 4*ks, 4), vAd[3], ks*8, ks*8 + 4))
    unpack4(vH, vT[4])
    a("v_pk_mul_f32 %s, %s, %s" % (r(vG, 2), r(vH, 2), r(vH, 2))); a("v_pk_add_f32 %s, %s, %s" % (r(vG+2, 2), r(vH, 2), r(vH+2, 2)))
    a("v_pk_fma_f32 %s, %s, %s, %s" % (r(vG, 2), r(vH+2, 2), r(vH+2, 2), r(vG, 2)))
    a("v_add_f32 v%d, v%d, v%d" % (vT[6], vG+2, vG+3)); a("v_add_f32 v%d, v%d, v%d" % (vT[7], vG, vG+1))
    for ks in range(4):
        a("s_waitcnt lgkmcnt(%d)" % (3 - ks))
        for mi in range(2):
            a("v_mfma_f32_16x16x32_bf16 %s, %s, %s, %s" % (r(vD + 4*mi, 4), r(vA + 4*ks, 4), r(vW + 16*mi + 4*ks, 4), r(vD + 4*mi, 4) if ks else "0"))
    red32x2(vT[6], vT[7], vT[0], vT[1])
    cnd(vT[0], "v%d" % vD, "v%d" % (vD+4), sp(sR1)); cnd(vT[1], "v%d" % (vD+1), "v%d" % (vD+5), sp(sR1))
    a("ds_write2st64_b32 v%d, v%d, v%d offset0:%d offset1:%d" % (vAd[4], vT[0], vT[1], LRED2//256, LRED2//256 + 2))
    a("s_mov_b64 exec, 1"); a("ds_write2_b32 v%d, v%d, v%d offset0:0 offset1:4" % (vAd[0], vT[6], vT[7])); a("s_mov_b64 exec, -1")
    a("s_waitcnt lgkmcnt(0)"); a("s_barrier")
    a("ds_read_b128 %s, v%d" % (r(vG, 4), vAd[5])); a("ds_read_b128 %s, v%d offset:16" % (r(vG+4, 4), vAd[5]))
    for i in range(4): a("ds_read_b128 %s, v%d offset:%d" % (r(vD + 4*i, 4), vAd[9], LRED2 + 256*i))
    a("s_waitcnt lgkmcnt(4)")
    a("v_pk_add_f32 %s, %s, %s" % (r(vG, 2), r(vG, 2), r(vG+2, 2))); a("v_pk_add_f32 %s, %s, %s" % (r(vG+4, 2), r(vG+4, 2), r(vG+6, 2)))
    a("v_add_f32 v%d, v%d, v%d" % (vG, vG, vG+1)); a("v_add_f32 v%d, v%d, v%d" % (vG+4, vG+4, vG+5))
    a("v_mul_f32 v%d, 0x3b000000, v%d" % (vG, vG)); a("v_mul_f32 v%d, 0x3b000000, v%d" % (vG+4, vG+4))
    a("v_fma_f32 v%d, -v%d, v%d, v%d" % (vG+4, vG, vG, vG+4)); a("v_max_f32 v%d, 0, v%d" % (vG+4, vG+4))
    if exactLN:
        rbf2(vG, vG+4, vG, vG+4, vT[1]); a("v_add_f32 v%d, 0x%x, v%d" % (vG+4, EPS, vG+4)); rbf(vG+4, vG+4); a("v_sqrt_f32 v%d, v%d" % (vG+4, vG+4))
        a("s_waitcnt lgkmcnt(0)")
        a("v_pk_add_f32 %s, %s, %s" % (r(vD, 2), r(vD, 2), r(vD+2, 2)))
        rbf(vG+4, vG+4); a("v_rcp_f32 v%d, v%d" % (vG+4, vG+4))
    else:
        a("v_add_f32 v%d, 0x%x, v%d" % (vG+4, EPS, vG+4)); a("v_rsq_f32 v%d, v%d" % (vG+4, vG+4))
        a("s_waitcnt lgkmcnt(0)")
        a("v_pk_add_f32 %s, %s, %s" % (r(vD, 2), r(vD, 2), r(vD+2, 2)))
    for i in range(1, 4): a("v_pk_add_f32 %s, %s, %s" % (r(vD+4*i, 2), r(vD+4*i, 2), r(vD+4*i+2, 2)))
    for i in range(4): a("v_add_f32 v%d, v%d, v%d" % (vD+4*i, vD+4*i, vD+4*i+1))
    a("v_fma_f32 v%d, -v%d, v%d, v%d" % (vD, vG, vD+8, vD)); a("v_fma_f32 v%d, -v%d, v%d, v%d" % (vD+4, vG, vD+12, vD+4))
    a("v_mul_f32 v%d, v%d, v%d" % (vD, vD, vG+4)); a("v_mul_f32 v%d, v%d, v%d" % (vD+4, vD+4, vG+4))
    rbf2(vT[0], vT[1], vD, vD+4, vT[2])
    a("v_mul_f32 v%d, s%d, v%d" % (vT[0], sL2E, vT[0])); a("v_exp_f32 v%d, -v%d" % (vT[0], vT[0])); nop(1)
    a("v_add_f32 v%d, 1.0, v%d" % (vT[0], vT[0])); a("v_rcp_f32 v%d, v%d" % (vT[0], vT[0])); nop(1)
    rbf(vT[0], vT[0]); a("v_mul_f32 v%d, v%d, v%d" % (vT[0], vT[0], vT[1])); a("v_cvt_pk_bf16_f32 v%d, v%d, v%d" % (vT[0], vT[0], vT[0])); nop(2)
    for t in range(4):
        for j in range(4): dpp("v_and_b32", vA + 4*t + j, vT[0], vP + j, "quad_perm:[%d,%d,%d,%d]" % (t, t, t, t))
        if t >= 1: a("v_mfma_f32_16x16x32_bf16 %s, %s, %s, %s" % (r(vD, 4), r(vA + 4*(t-1), 4), r(vWD + 4*(t-1), 4), r(vD, 4) if t > 1 else "0"))
    nop(1)
    a("v_mfma_f32_16x16x32_bf16 %s, %s, %s, %s" % (r(vD, 4), r(vA + 12, 4), r(vWD + 12, 4), r(vD, 4)))
    nop(7)
    a("s_mov_b64 exec, 0xffffffff")
    a("buffer_store_dwordx4 %s, v%d, %s, 0 offen sc1" % (r(vD, 4), vAd[2], srd(sWS)))
    a("s_mov_b64 exec, -1")
    stamp("cpub")
    finish("C")
    stC = list(stn)

    g.lab(LD); g.q = list(q_save); pvn[0] = pv_save; nst[0] = nst_save; del stn[nst_save:]
    a("v_and_b32 v%d, 7, v%d" % (vT[4], vL)); a("s_lshl_b32 s%d, s%d, 6" % (sT, sCI)); a("v_lshl_add_u32 v%d, v%d, 3, s%d" % (vAd[7], vT[4], sT))
    g.vm("buffer_load_dwordx2 %s, v%d, %s, 0 offen" % (r(vXr, 2), vAd[7], srd(sX)), "x2")
    a("s_lshl_b32 s%d, s%d, 7" % (sT, sCI)); a("v_lshrrev_b32 v%d, 5, v%d" % (vT[0], vL)); a("v_lshlrev_b32 v%d, 11, v%d" % (vT[0], vT[0]))
    a("v_lshl_add_u32 v%d, v%d, 4, v%d" % (vT[0], vT[4], vT[0])); a("v_add_u32 v%d, s%d, v%d" % (vAd[6], sT, vT[0]))
    a("s_lshl_b32 s%d, s%d, 14" % (sT2, sW)); a("s_add_u32 s%d, s%d, s%d" % (sT, sT, sT2))
    a("v_lshrrev_b32 v%d, 3, v%d" % (vT[0], vL)); a("v_lshlrev_b32 v%d, 11, v%d" % (vT[0], vT[0])); a("v_lshl_add_u32 v%d, v%d, 4, v%d" % (vT[0], vT[4], vT[0])); a("v_add_u32 v%d, s%d, v%d" % (vAd[5], sT, vT[0]))
    a("s_lshl_b32 s%d, s%d, 7" % (sT, sW)); a("v_lshl_add_u32 v%d, v%d, 4, s%d" % (vAd[4], vT[4], sT)); a("v_lshlrev_b32 v%d, 4, v%d" % (vAd[9], vT[4]))
    if pf_k is not None:
        drain_publish([lambda: None]*pf_k + [c_pf])
    elif cw_late:
        drain_publish(); c_pf()
    else:
        c_pf(); drain_publish()
    gather(8, vAd[6], [AX + 2*i*2048 for i in range(8)])
    stamp("x2ok")
    unpack4(vX, vXr)
    attn_to_hpk(vX, vT[4]); unpack4(vH, vT[4])
    l3, l4 = g.newlab("L_d3"), g.newlab("L_d4")
    a("s_cmp_ge_u32 s%d, 2" % sW); a("s_cbranch_scc1 " + l3)
    gather(4, vAd[5], [DX + 32*i*2048 for i in range(4)], delay=d3)
    a("s_branch " + l4)
    g.lab(l3)
    gather(3, vAd[5], [DX + 32*i*2048 for i in range(3)], delay=d3)
    g.lab(l4)
    stamp("x3ok")
    nop(1)
    for i in range(4): dpp("v_add_f32", vG+i, vG+i, vG+i, "row_ror:8")
    red_swap_n("v_add_f32", G4, G4b, 16); red_swap_n("v_add_f32", G4, G4b, 32)
    a("s_mov_b64 exec, 0xff"); a("ds_write_b128 v%d, %s offset:%d" % (vAd[4], r(vG, 4), LRED2))
    ld = g.newlab("L_ddone")
    a("s_cmp_lg_u32 s%d, 0" % sW)
    a("s_waitcnt lgkmcnt(0)"); a("s_barrier")
    a("s_cbranch_scc1 " + ld)
    for w in range(4): a("ds_read_b128 %s, v%d offset:%d" % (r(vG + 4*w, 4), vAd[9], LRED2 + 128*w))
    a("s_waitcnt lgkmcnt(0)")
    sum_g(4)
    rbf2(vG, vG+1, vG, vG+1, vT[0]); rbf2(vG+2, vG+3, vG+2, vG+3, vT[1])
    for h in range(2): a("v_pk_add_f32 %s, %s, %s" % (r(vG+2*h, 2), r(vG+2*h, 2), r(vH+2*h, 2)))
    a("v_cvt_pk_bf16_f32 v%d, v%d, v%d" % (vT[4], vG, vG+1)); a("v_cvt_pk_bf16_f32 v%d, v%d, v%d" % (vT[5], vG+2, vG+3))
    a("buffer_store_dwordx2 %s, v%d, %s, 0 offen" % (r(vT[4], 2), vAd[7], srd(sOUT)) + (" " + outpol if outpol else ""))
    g.lab(ld)
    a("s_mov_b64 exec, -1")
    stamp("out")
    g.lab("L_fin")
    finish("D")
    stD = list(stn)
    g.lab("L_end"); a("s_endpgm")

    import numpy as np
    gg, ss = np.arange(256) & 7, np.arange(256) >> 3
    roles = {"B": ss < 16, "C": (ss >= 16) & (ss < 30), "D": ss >= 30} if par is None else {"B": (gg & 1) == par, "C": ((gg & 1) != par) & (ss < 28), "D": ((gg & 1) != par) & (ss >= 28)}
    hdr = """; Fused decode layer: LN -> q proj -> GQA attention over the KV cache -> out proj -> LN -> GLU MLP, one persistent launch.
; 256 workgroups (one per CU) x 4 waves. Hand-offs through d_ws carry self-validating words (cleared at entry, clears counted in d_debug).
; @launch grid=(256,1,1) block=(256,1,1) lds=%d
.amdgcn_target "amdgcn-amd-amdhsa--gfx950"
.text
.globl %s_kernel
.p2align 8
.type %s_kernel,@function
%s_kernel:
""" % (LDS_SIZE, KN, KN, KN)
    ftr = """
.section .rodata,"a"
.p2align 6
.amdhsa_kernel %s_kernel
  .amdhsa_next_free_vgpr 512
  .amdhsa_next_free_sgpr 102
  .amdhsa_accum_offset 256
  .amdhsa_group_segment_fixed_size 0
  .amdhsa_kernarg_size 96
  .amdhsa_user_sgpr_count 2
  .amdhsa_user_sgpr_kernarg_segment_ptr 1
  .amdhsa_system_sgpr_workgroup_id_x 1
  .amdhsa_float_denorm_mode_32 3
.end_amdhsa_kernel
""" % KN
    return hdr + "\n".join(g.L) + ftr, dict(B=stB, C=stC, D=stD, nv=g.vn, roles=roles)

if __name__ == "__main__":
    kw = eval("dict(%s)" % (sys.argv[2] if len(sys.argv) > 2 else ""))
    src, info = gen(**kw)
    open(sys.argv[1], "w").write(src); print(len(src))
```

```python
import sys
KN = "sequential_preLN__gqa_block_cached__glu_gated_glu__decode"

SX = 0x60000
TX = 0x2000
AX = 0x4000
QX = 0x10000
DX = 0x20000
OX = 0x80000
WS_USED = 0x100000
OOB = 0x20000000
STAMP = 0x200000
LW   = 0
LWQ  = 0x8000
LACT = 0xC000
LACT2= 0xC400
LQ   = 0xC800
LRED = 0xCC00
LRED2= 0xD000
LONE = 0xD400
LST  = 0xD600
LST2 = 0xD640
LS2  = 0xD680
LBR  = 0x8000
LO   = 0xD800
LDS_SIZE = 0xF800

LOG2E = 0x3FB8AA3B
SCALE = 0x3DB504F3
EPS   = 0x3727C5AC

class G:
    def __init__(s):
        s.L = []; s.q = []; s.nlab = 0; s.vn = 0; s.names = {}
    def a(s, x): s.L.append("  " + x)
    def lab(s, x): s.L.append(x + ":")
    def newlab(s, p="L"):
        s.nlab += 1; return "%s_%d" % (p, s.nlab)
    def v(s, name, n=1, align=1):
        if n > 1: align = max(align, 2)
        s.vn = (s.vn + align - 1)//align*align
        r = s.vn; s.vn += n; s.names[name] = r
        assert s.vn <= 256
        return r
    def vm(s, txt, tag):
        s.a(txt); s.q.append(tag)
    def wait(s, tag):
        if tag not in s.q: return
        i = s.q.index(tag); n = len(s.q) - 1 - i
        assert n <= 63
        s.a("s_waitcnt vmcnt(%d)" % n); s.q = s.q[i+1:]
    def waitall(s):
        s.a("s_waitcnt vmcnt(0)"); s.q = []

def r(a, n): return "v[%d:%d]" % (a, a+n-1)
def ar(a, n): return "a[%d:%d]" % (a, a+n-1)
def sp(a): return "s[%d:%d]" % (a, a+1)
DPP = " row_mask:0xf bank_mask:0xf"

def gen(D=7, D0=6, pol="nt", wpol="nt", stamps=False, n_x0=None, n_cnt=None, n_q=None, n_qk=60, n_sg=None, n_pv=108, K0=4, pv_rate=6,
        n_pf=None, pfpol="", ex_at=0, spin=1 << 16, probe=None, probe_base=4000, exactLN=True, retry_mode="mask", cyc=False, psleep=0, abl=(), d3=28, wo_at=None, par=0, pf_role=True, n_t=None, tsleep=2, fast1=False, repub_at=6, cw_late=True, wo_late=False, wd_pos='drain', ax_early=False, ssig=True, early=True, outpol='', dbgst=False, cpf=False, cpfpol='', pf_k=None, qpar=None, quick=True, lean=True, brow=True, dmerge=True, dwait=1, defer=True, Dseg=None, half=False, skewprobe=None, wq_at=None, wqpf=None, n_sig=None, qmap=1, qrot=0, wq_first=0):
    g = G(); a = g.a
    if D0 is None: D0 = D
    if n_x0 is None: n_x0 = D0 + D if wq_at is None else wq_at[0] + 3*wq_at[1] + D + 1
    if n_q is None: n_q = n_qk - D
    if n_cnt is None: n_cnt = n_q - D
    if n_sg is None: n_sg = n_pv - D
    sW, sG, sS = 3, 4, 5
    sK, sV, sWS, sX, sWQ, sR1_, sR2_, sWD, sOUT, sDBG = 8, 12, 16, 20, 24, 28, 32, 36, 40, 44
    sWOp, sWGp, sWUp = 48, 50, 52
    sB0, sB1, sR1, sR2 = 54, 56, 58, 60
    sT, sT2, sOFF, sCNT = 62, 63, 6, 7
    sKB, sCB, sCI = 64, 65, 66
    sL2E, sSC = 67, 68
    sWST, sWH = 69, 70
    sMK = 48
    sPF = 72
    sBASE = 74
    sROLE = 71
    sCQ = 73
    sKQ = 72
    sRP = 68
    sST = 76
    nst = [0]; stn = []
    def stamp(name):
        if stamps or probe or (skewprobe is not None and name == 'start'):
            a("%s s[%d:%d]" % ("s_memtime" if cyc else "s_memrealtime", sST + 2*nst[0], sST + 2*nst[0] + 1)); nst[0] += 1; stn.append(name)
            assert sST + 2*nst[0] <= 102
    def srd(b): return "s[%d:%d]" % (b, b+3)
    g.v("tid"); vL = g.v("lane"); vKo = g.v("koff"); vVo = g.v("voff")
    vM0 = g.v("m0"); vM1 = g.v("m1")
    vT = [g.v("t%d" % i) for i in range(12)]
    vX = g.v("x", 4); vQ = g.v("q", 4); vS = g.v("S", 16); vD = g.v("D", 16); vO = g.v("O", 8); vTP = g.v("TP", 8)
    vA = g.v("A", 16); vW = g.v("W", 32); vWD = g.v("WD", 16); vG = g.v("G", 32); vH = g.v("H", 4); vP = g.v("P", 4)
    vAd = [g.v("ad%d" % i) for i in range(10)]
    vMx = g.v("mx"); vRl = g.v("rl"); vCn = g.v("cn"); vCSg = g.v("csg"); vCSu = g.v("csu")
    vSG = g.v("sg", 4); vSen = g.v("sen", 4); vXr = g.v("xr", 2); vE = g.v("E", 8); vXf = g.v("xf", 4); vXa = g.v("xa", 4); vTX = g.v("tx"); vTv = g.v("tv")
    assert vT[4] % 2 == 0

    def nop(n): a("s_nop %d" % (n-1))
    def dpp(op, d, s0, s1, ctl): a("%s_dpp v%d, v%d, v%d %s%s" % (op, d, s0, s1, ctl, DPP))
    def red_quad(op, x):
        nop(2); dpp(op, x, x, x, "quad_perm:[1,0,3,2]"); nop(2); dpp(op, x, x, x, "quad_perm:[2,3,0,1]")
    def red_swap(op, x, t, which):
        a("v_mov_b32 v%d, v%d" % (t, x)); nop(2); a("v_permlane%d_swap_b32 v%d, v%d" % (which, x, t)); a("%s v%d, v%d, v%d" % (op, x, x, t))
    def red_swap_n(op, xs, ts, which):
        for x, t in zip(xs, ts): a("v_mov_b32 v%d, v%d" % (t, x))
        if len(xs) < 3: nop(3 - len(xs))
        for x, t in zip(xs, ts): a("v_permlane%d_swap_b32 v%d, v%d" % (which, x, t))
        for x, t in zip(xs, ts): a("%s v%d, v%d, v%d" % (op, x, x, t))
    def red32(x, t):
        red_quad("v_add_f32", x); nop(2); dpp("v_add_f32", x, x, x, "row_half_mirror"); nop(2); dpp("v_add_f32", x, x, x, "row_mirror")
        red_swap("v_add_f32", x, t, 16)
    def red32x2(x, y, t, t2):
        nop(1)
        for ctl in ("quad_perm:[1,0,3,2]", "quad_perm:[2,3,0,1]", "row_half_mirror", "row_mirror"):
            dpp("v_add_f32", x, x, x, ctl); dpp("v_add_f32", y, y, y, ctl); nop(1)
        red_swap_n("v_add_f32", [x, y], [t, t2], 16)
    def rbf(d, s_):
        a("v_cvt_pk_bf16_f32 v%d, v%d, v%d" % (d, s_, s_)); a("v_lshlrev_b32 v%d, 16, v%d" % (d, d))
    def rbf2(d0, d1, s0, s1, t):
        a("v_cvt_pk_bf16_f32 v%d, v%d, v%d" % (t, s0, s1)); a("v_lshlrev_b32 v%d, 16, v%d" % (d0, t)); a("v_and_b32 v%d, 0xffff0000, v%d" % (d1, t))
    def unpack4(d, p):
        a("v_lshlrev_b32 v%d, 16, v%d" % (d, p)); a("v_and_b32 v%d, 0xffff0000, v%d" % (d+1, p))
        a("v_lshlrev_b32 v%d, 16, v%d" % (d+2, p+1)); a("v_and_b32 v%d, 0xffff0000, v%d" % (d+3, p+1))
    def expsub(d, x, m):
        a("v_sub_f32 v%d, v%d, v%d" % (d, x, m)); a("v_mul_f32 v%d, s%d, v%d" % (d, sL2E, d)); a("v_exp_f32 v%d, v%d" % (d, d))
    def sum4(b):
        a("v_add_f32 v%d, v%d, v%d" % (b, b, b+1)); a("v_add_f32 v%d, v%d, v%d" % (b+2, b+2, b+3)); a("v_add_f32 v%d, v%d, v%d" % (b, b, b+2))
    def cnd(d, f, t, m): a("v_cndmask_b32_e64 v%d, %s, %s, %s" % (d, f, t, m))
    def wg_lin(dst):
        a("s_lshl_b32 s%d, s%d, 5" % (dst, sG)); a("s_add_u32 s%d, s%d, s%d" % (dst, dst, sS))

    def issue(n):
        t, j = divmod(n, 64); st, c = divmod(j, 4)
        if c == 0:
            if st: a("s_add_u32 s%d, s%d, 0x%x" % (sOFF, sBASE, st << 19))
            elif n: a("s_mov_b32 s%d, s%d" % (sOFF, sBASE))
        g.vm("buffer_load_dwordx4 %s, v%d, %s, s%d offen offset:%d %s" % (ar(4*j, 4), vVo if t else vKo, srd(sV if t else sK), sOFF, c*1024, pol), "n%d" % n)

    a("s_cmp_ge_u32 s2, 256"); a("s_cbranch_scc1 L_end")
    stamp("start")
    a("s_load_dwordx2 s[%d:%d], s[0:1], 8" % (sK, sK+1))
    if wq_first is not None: a("s_load_dwordx2 s[%d:%d], s[0:1], 24" % (sWQ, sWQ+1))
    a("s_lshr_b32 s%d, s2, 3" % sS); a("v_lshrrev_b32 v%d, 6, v0" % vT[0])
    if cpf:
        a("s_getpc_b64 %s" % sp(sT)); g.lab("L_pc")
        a("v_lshl_add_u32 v%d, s%d, 2, v%d" % (vT[4], sS, vT[0])); a("v_and_b32 v%d, 1, v0" % vT[5]); a("v_lshl_add_u32 v%d, v%d, 1, v%d" % (vT[4], vT[4], vT[5]))
        a("v_lshlrev_b32 v%d, 7, v%d" % (vT[4], vT[4])); a("v_min_u32 v%d, L_end-L_pc, v%d" % (vT[4], vT[4])); a("v_mov_b32 v%d, s%d" % (vT[5], sT+1))
        a("v_add_co_u32 v%d, vcc, s%d, v%d" % (vT[4], sT, vT[4])); a("s_mov_b64 exec, 3"); a("s_and_b32 s%d, s2, 7" % sG)
        a("v_addc_co_u32 v%d, vcc, 0, v%d, vcc" % (vT[5], vT[5]))
        g.vm("global_load_dword v%d, %s, off %s" % (vCn, r(vT[4], 2), cpfpol), "cpf")
        a("s_mov_b64 exec, -1")
    else: a("s_and_b32 s%d, s2, 7" % sG)
    a("s_lshl_b32 s%d, s%d, 23" % (sBASE, sG)); a("s_lshl_b32 s%d, s%d, 14" % (sOFF, sS)); a("s_add_u32 s%d, s%d, s%d" % (sBASE, sBASE, sOFF)); a("s_mov_b32 s%d, s%d" % (sOFF, sBASE))
    a("v_and_b32 v%d, 15, v0" % vT[1]); a("v_bfe_u32 v%d, v0, 4, 2" % vT[2])
    a("v_lshlrev_b32 v%d, 6, v%d" % (vAd[0], vT[1])); a("v_lshl_add_u32 v%d, v%d, 4, v%d" % (vAd[0], vT[2], vAd[0]))
    a("v_lshl_add_u32 v%d, v%d, 12, v%d" % (vKo, vT[0], vAd[0]))
    def rest_setup():
        for b, off in ((sV, 16), (sX, 0)) + (((sWQ, 24),) if wq_first is None else ()) + ((sWS, 88), (sDBG, 80), (sWOp, 32), (sWGp, 48), (sWUp, 56), (sWD, 64), (sOUT, 72)):
            a("s_load_dwordx2 s[%d:%d], s[0:1], %d" % (b, b+1, off))
        a("v_and_b32 v%d, 63, v0" % vL); a("v_readfirstlane_b32 s%d, v%d" % (sW, vT[0]))
        a("v_lshlrev_b32 v%d, 4, v%d" % (vVo, vL)); a("v_lshl_add_u32 v%d, v%d, 12, v%d" % (vVo, vT[0], vVo))
        if "lin" in abl: a("v_mov_b32 v%d, v%d" % (vKo, vVo))
        for b, n in ((sV, 1 << 26), (sX, 1024), (sWQ, 1 << 22), (sWS, WS_USED if not stamps else 1 << 28), (sDBG, 256), (sWD, 1792*1024), (sOUT, 1024)):
            a("s_mov_b32 s%d, 0x%x" % (b+2, n)); a("s_mov_b32 s%d, 0x20000" % (b+3))
        a("v_and_b32 v%d, 31, v%d" % (vT[3], vL)); a("s_lshl_b32 s%d, s%d, 8" % (sT, sW)); a("v_lshl_add_u32 v%d, v%d, 3, s%d" % (vAd[1], vT[3], sT))
        a("v_bfe_u32 v%d, v%d, 1, 3" % (vT[4], vL)); a("v_and_b32 v%d, 1, v%d" % (vT[5], vL))
        a("v_lshlrev_b32 v%d, 5, v%d" % (vT[6], vT[2])); a("v_lshl_add_u32 v%d, v%d, 4, v%d" % (vT[6], vT[5], vT[6]))
        a("s_lshr_b32 s%d, s%d, 3" % (sKB, sS)); a("s_and_b32 s%d, s%d, 7" % (sCB, sS))
        a("s_add_u32 s%d, s%d, %d" % (sCQ, sS, qrot)); a("s_and_b32 s%d, s%d, 7" % (sCQ, sCQ))
        if qmap: a("s_lshr_b32 s%d, s%d, 1" % (sKQ, sG))
        else: a("s_mov_b32 s%d, s%d" % (sKQ, sKB))
        a("s_lshl_b32 s%d, s%d, 2" % (sT, sKQ)); a("s_add_u32 s%d, s%d, s%d" % (sT, sT, sW)); a("s_lshl_b32 s%d, s%d, 18" % (sT, sT))
        if qmap: a("s_and_b32 s%d, s%d, 1" % (sT2, sG)); a("s_lshl_b32 s%d, s%d, 2" % (sT2, sT2)); a("s_add_u32 s%d, s%d, s%d" % (sT2, sT2, sKB)); a("s_lshl_b32 s%d, s%d, 10" % (sT2, sT2))
        elif qpar is None: a("s_lshl_b32 s%d, s%d, 10" % (sT2, sG))
        else:
            a("s_and_b32 s%d, s%d, 1" % (sT2, sG)); a("s_cmp_eq_u32 s%d, %d" % (sT2, qpar)); a("s_cselect_b32 s%d, s%d, 0" % (sWQ+2, sWQ+2))
            a("s_and_b32 s%d, s%d, 6" % (sT2, sG)); a("s_lshl_b32 s%d, s%d, 10" % (sT2, sT2))
        a("s_add_u32 s%d, s%d, s%d" % (sT, sT, sT2)); a("s_lshl_b32 s%d, s%d, 7" % (sT2, sCQ)); a("s_add_u32 s%d, s%d, s%d" % (sT, sT, sT2))
        a("v_lshl_add_u32 v%d, v%d, 13, v%d" % (vAd[2], vT[4], vT[6])); a("v_add_u32 v%d, s%d, v%d" % (vAd[2], sT, vAd[2]))
    a("s_brev_b32 s%d, 32" % (sK+2)); a("s_mov_b32 s%d, 0x20000" % (sK+3))
    if wq_first is not None:
        assert qmap == 1 and not qrot and wq_at is None
        a("v_readfirstlane_b32 s%d, v%d" % (sW, vT[0])); a("s_mov_b32 s%d, s%d" % (sWQ+3, sK+3)); a("s_lshr_b32 s%d, s%d, 4" % (sWQ+2, sK+2))
        a("v_bfe_u32 v%d, v0, 1, 3" % vT[4]); a("v_and_b32 v%d, 1, v0" % vT[5]); a("v_lshlrev_b32 v%d, 5, v%d" % (vT[6], vT[2])); a("v_lshl_add_u32 v%d, v%d, 4, v%d" % (vT[6], vT[5], vT[6]))
        a("v_lshl_add_u32 v%d, v%d, 13, v%d" % (vAd[2], vT[4], vT[6])); a("v_lshl_add_u32 v%d, v%d, 18, v%d" % (vAd[2], vT[0], vAd[2]))
        a("s_lshr_b32 s%d, s%d, 1" % (sKQ, sG)); a("s_lshl_b32 s%d, s%d, 13" % (sT, sKQ)); a("s_and_b32 s%d, s%d, 1" % (sT2, sG)); a("s_lshl_b32 s%d, s%d, 5" % (sT2, sT2))
        a("s_add_u32 s%d, s%d, s%d" % (sT, sT, sT2)); a("s_add_u32 s%d, s%d, s%d" % (sT, sT, sS)); a("s_lshl_b32 s%d, s%d, 7" % (sT2, sT)); a("s_lshl_b32 s%d, s%d, 12" % (sT, sW)); a("s_add_u32 m0, s%d, %d" % (sT, LWQ))
    a("s_waitcnt lgkmcnt(0)")
    if dbgst: stamp('karg')
    if wq_first is not None:
        for n in range(wq_first): issue(n)
        for i in range(4):
            if i: a("s_add_u32 m0, m0, 0x400"); a("s_add_u32 s%d, s%d, 0x10000" % (sT2, sT2))
            if "wq" not in abl: g.vm("buffer_load_dwordx4 v%d, %s, s%d offen %s lds" % (vAd[2], srd(sWQ), sT2, wpol), "wq%d" % i)
    for n in range(wq_first or 0, K0): issue(n)
    if dbgst: stamp('iss0')
    rest_setup(); a("s_waitcnt lgkmcnt(0)")
    for i in range(4): a("v_mov_b32 v%d, -1" % (vSen + i))
    if par is None:
        a("s_cmp_ge_u32 s%d, 16" % sS); a("s_cselect_b32 s%d, 1, 0" % sROLE); a("s_cmp_ge_u32 s%d, 30" % sS); a("s_cselect_b32 s%d, 2, s%d" % (sROLE, sROLE))
    else:
        a("s_cmp_ge_u32 s%d, 28" % sS); a("s_cselect_b32 s%d, 2, 1" % sROLE); a("s_and_b32 s%d, s%d, 1" % (sT, sG)); a("s_cmp_eq_u32 s%d, %d" % (sT, par)); a("s_cselect_b32 s%d, 0, s%d" % (sROLE, sROLE))
    wg_lin(sT); a("s_lshl_b32 s%d, s%d, 11" % (sT, sT)); a("s_lshl_b32 s%d, s%d, 9" % (sT2, sW)); a("s_add_u32 s%d, s%d, s%d" % (sT, sT, sT2)); a("s_add_u32 s%d, s%d, 0x%x" % (sT, sT, OX))
    a("v_lshl_add_u32 v%d, v%d, 4, s%d" % (vAd[8], vT[3], sT))
    a("s_mov_b32 s%d, 0x20000" % (sR1_+3)); a("s_mov_b32 s%d, 0x20000" % (sR2_+3))
    lC, lD, lJ = g.newlab("L_setC"), g.newlab("L_setD"), g.newlab("L_setJ")
    a("s_cmp_eq_u32 s%d, 2" % sROLE); a("s_cbranch_scc1 " + lD)
    a("s_cmp_eq_u32 s%d, 1" % sROLE); a("s_cbranch_scc1 " + lC)
    if par is None: a("s_lshl_b32 s%d, s%d, 1" % (sT, sG))
    else: a("s_lshr_b32 s%d, s%d, 1" % (sT, sG)); a("s_lshl_b32 s%d, s%d, 2" % (sT, sT))
    a("s_add_u32 s%d, s%d, s%d" % (sCI, sT, sKB))
    for b in (sR1_, sR2_): a("s_mov_b64 %s, %s" % (sp(b), sp(sWOp))); a("s_mov_b32 s%d, 0x400000" % (b+2))
    a("s_mov_b32 s%d, 8192" % sWST); a("s_mov_b32 s%d, 32768" % sWH)
    a("s_lshl_b32 s%d, s%d, 18" % (sT, sCI)); a("s_lshl_b32 s%d, s%d, 16" % (sT2, sW)); a("s_add_u32 s%d, s%d, s%d" % (sT, sT, sT2)); a("s_lshl_b32 s%d, s%d, 7" % (sT2, sCB)); a("s_add_u32 s%d, s%d, s%d" % (sT, sT, sT2))
    a("v_lshl_add_u32 v%d, v%d, 10, v%d" % (vAd[5], vT[4], vT[6])); a("v_add_u32 v%d, s%d, v%d" % (vAd[5], sT, vAd[5]))
    a("s_lshl_b32 s%d, s%d, 11" % (sT, sCI)); a("s_lshl_b32 s%d, s%d, 8" % (sT2, sCB)); a("s_add_u32 s%d, s%d, s%d" % (sT, sT, sT2)); a("s_lshl_b32 s%d, s%d, 6" % (sT2, sW)); a("s_add_u32 s%d, s%d, s%d" % (sT, sT, sT2)); a("s_add_u32 s%d, s%d, 0x%x" % (sT, sT, AX))
    a("v_lshl_add_u32 v%d, v%d, 4, s%d" % (vT[7], vT[3], sT)); a("v_cmp_gt_u32 vcc, 4, v%d" % vT[3]); a("v_mov_b32 v%d, 0x%x" % (vT[8], OOB)); nop(1)
    a("v_cndmask_b32 v%d, v%d, v%d, vcc" % (vT[7], vT[8], vT[7]))
    a("s_branch " + lJ)
    g.lab(lC)
    if par is None: a("s_mul_i32 s%d, s%d, 14" % (sCI, sG)); a("s_add_u32 s%d, s%d, s%d" % (sCI, sCI, sS)); a("s_sub_u32 s%d, s%d, 16" % (sCI, sCI))
    else: a("s_lshr_b32 s%d, s%d, 1" % (sT, sG)); a("s_mul_i32 s%d, s%d, 28" % (sCI, sT)); a("s_add_u32 s%d, s%d, s%d" % (sCI, sCI, sS))
    a("s_mov_b64 %s, %s" % (sp(sR1_), sp(sWGp))); a("s_mov_b64 %s, %s" % (sp(sR2_), sp(sWUp)))
    for b in (sR1_, sR2_): a("s_mov_b32 s%d, %d" % (b+2, 512*3584))
    a("s_mov_b32 s%d, %d" % (sWST, 32*3584)); a("s_mov_b32 s%d, 0" % sWH)
    a("v_lshrrev_b32 v%d, 1, v%d" % (vT[7], vL)); a("v_mul_u32_u24 v%d, 3584, v%d" % (vT[7], vT[7])); a("v_lshl_add_u32 v%d, v%d, 4, v%d" % (vT[7], vT[5], vT[7]))
    a("s_mul_i32 s%d, s%d, %d" % (sT, sW, 128*3584)); a("s_lshl_b32 s%d, s%d, 5" % (sT2, sCI)); a("s_add_u32 s%d, s%d, s%d" % (sT, sT, sT2)); a("v_add_u32 v%d, s%d, v%d" % (vAd[5], sT, vT[7]))
    a("s_lshl_b32 s%d, s%d, 11" % (sT, sCI)); a("s_lshl_b32 s%d, s%d, 9" % (sT2, sW)); a("s_add_u32 s%d, s%d, s%d" % (sT, sT, sT2)); a("s_add_u32 s%d, s%d, 0x%x" % (sT, sT, DX))
    a("v_lshl_add_u32 v%d, v%d, 4, s%d" % (vT[7], vT[3], sT))
    a("s_branch " + lJ)
    g.lab(lD)
    if par is None: a("s_lshl_b32 s%d, s%d, 1" % (sCI, sG)); a("s_add_u32 s%d, s%d, s%d" % (sCI, sCI, sS)); a("s_sub_u32 s%d, s%d, 30" % (sCI, sCI))
    else: a("s_lshr_b32 s%d, s%d, 1" % (sT, sG)); a("s_lshl_b32 s%d, s%d, 2" % (sCI, sT)); a("s_add_u32 s%d, s%d, s%d" % (sCI, sCI, sS)); a("s_sub_u32 s%d, s%d, 28" % (sCI, sCI))
    for b in (sR1_, sR2_): a("s_mov_b64 %s, %s" % (sp(b), sp(sWOp))); a("s_mov_b32 s%d, 0" % (b+2))
    a("s_mov_b32 s%d, 0" % sWST); a("s_mov_b32 s%d, 0" % sWH)
    a("v_mov_b32 v%d, 0" % vAd[5]); a("v_mov_b32 v%d, 0x%x" % (vT[7], OOB))
    g.lab(lJ)
    a("v_cmp_gt_u32 vcc, 32, v%d" % vL)
    assert qmap or not qrot
    if qmap:
        a("s_and_b32 s%d, s%d, 1" % (sT, sG)); a("s_lshl_b32 s%d, s%d, 2" % (sT, sT)); a("s_add_u32 s%d, s%d, s%d" % (sT, sT, sKB)); a("s_lshl_b32 s%d, s%d, 2" % (sT, sT)); a("s_add_u32 s%d, s%d, s%d" % (sT, sT, sKQ))
        a("s_lshl_b32 s%d, s%d, 3" % (sT, sT)); a("s_add_u32 s%d, s%d, s%d" % (sT, sT, sCQ)); a("s_lshl_b32 s%d, s%d, 8" % (sT, sT)); a("s_add_u32 s%d, s%d, 0x%x" % (sT, sT, QX))
    else:
        if qpar is None: a("s_lshl_b32 s%d, s%d, 13" % (sT, sG))
        else: a("s_and_b32 s%d, s%d, 6" % (sT, sG)); a("s_lshl_b32 s%d, s%d, 13" % (sT, sT))
        a("s_lshl_b32 s%d, s%d, 8" % (sT2, sS)); a("s_add_u32 s%d, s%d, s%d" % (sT, sT, sT2)); a("s_add_u32 s%d, s%d, 0x%x" % (sT, sT, QX))
    if qpar is not None: a("s_and_b32 s%d, s%d, 1" % (sT2, sG)); a("s_cmp_eq_u32 s%d, %d" % (sT2, qpar)); a("s_cselect_b32 s%d, s%d, 0x%x" % (sT, sT, OOB))
    a("v_cndmask_b32 v%d, v%d, v%d, vcc" % (vT[7], vT[7], vAd[8]))
    if "clr" not in abl: g.vm("buffer_store_dwordx4 %s, v%d, %s, 0 offen sc1" % (r(vSen, 4), vT[7], srd(sWS)), "clr0")
    a("v_lshl_add_u32 v%d, v%d, 2, s%d" % (vAd[9], vL, sT))
    a("s_lshl_b32 s%d, s%d, 6" % (sT2, sW)); a("s_add_u32 s%d, s%d, s%d" % (sT, sT, sT2)); a("v_lshl_add_u32 v%d, v%d, 4, s%d" % (vT[8], vL, sT))
    if qpar is not None:
        a("v_add_u32 v%d, 0x%x, v%d" % (vT[10], 0x2000 - 128, vT[8])); a("v_cmp_gt_u32 vcc, 8, v%d" % vL); nop(2); a("v_cndmask_b32 v%d, v%d, v%d, vcc" % (vT[10], vT[10], vT[8]))
    wg_lin(sT); a("s_lshl_b32 s%d, s%d, 7" % (sT, sT)); a("s_add_u32 s%d, s%d, %d" % (sT, sT, SX - 64)); a("s_cmp_eq_u32 s%d, 0" % sW); a("s_cselect_b32 s%d, s%d, 0x%x" % (sT, sT, OOB))
    a("v_lshl_add_u32 v%d, v%d, 4, s%d" % (vT[9], vL, sT)); a("v_cmp_gt_u32 vcc, 4, v%d" % vL); nop(2)
    a("v_cndmask_b32 v%d, v%d, v%d, vcc" % (vT[8], vT[9], vT[8]))
    if qpar is not None: a("v_cmp_gt_u32 vcc, 8, v%d" % vL); nop(2); a("v_cndmask_b32 v%d, v%d, v%d, vcc" % (vT[8], vT[10], vT[8]))
    if n_t:
        a("s_lshl_b32 s%d, s%d, 7" % (sT, sG)); a("s_add_u32 s%d, s%d, 0x%x" % (sT, sT, TX)); a("v_mov_b32 v%d, s%d" % (vTX, sT)); a("v_cmp_eq_u32 vcc, 6, v%d" % vL); nop(2)
        a("v_cndmask_b32 v%d, v%d, v%d, vcc" % (vT[8], vT[8], vTX))
    a("s_mov_b64 exec, %s" % ("0x7f" if n_t else "63" if qpar is None else "0xf3f"))
    if "clr" not in abl: g.vm("buffer_store_dwordx4 %s, v%d, %s, 0 offen sc1" % (r(vSen, 4), vT[8], srd(sWS)), "clr1")
    a("s_mov_b64 exec, -1")
    for n in range(K0, D0): issue(n)
    g.vm("buffer_load_dwordx2 %s, v%d, %s, 0 offen" % (r(vXr, 2), vAd[1], srd(sX)), "x")
    a("v_lshlrev_b32 v%d, 4, v%d" % (vT[0], vL)); g.vm("buffer_load_dwordx4 %s, v%d, %s, 0 offen" % (r(vXf, 4), vT[0], srd(sX)), "xf")
    a("s_lshl_b32 s%d, s%d, 2" % (sT, sKQ)); a("s_add_u32 s%d, s%d, s%d" % (sT, sT, sW)); a("s_lshl_b32 s%d, s%d, 6" % (sT, sT)); a("v_lshl_add_u32 v%d, v%d, 3, s%d" % (vT[0], vT[2], sT))
    g.vm("buffer_load_dwordx2 %s, v%d, %s, 0 offen" % (r(vXa, 2), vT[0], srd(sX)), "xa0"); g.vm("buffer_load_dwordx2 %s, v%d, %s, 0 offen offset:32" % (r(vXa+2, 2), vT[0], srd(sX)), "xa1")
    NQ = 1 if qpar is None else 2
    assert NQ == 1
    def wq_load(i):
        a("s_lshl_b32 s%d, s%d, 12" % (sT, sW)); a("s_add_u32 m0, s%d, %d" % (sT, LWQ + i*1024)); a("s_mov_b32 s%d, %d" % (sT2, (i & 3)*65536 + (i >> 2)*1024))
        if "wq" not in abl: g.vm("buffer_load_dwordx4 v%d, %s, s%d offen %s lds" % (vAd[2], srd(sWQ), sT2, wpol), "wq%d" % i)
    if wqpf is not None and qmap:
        a("s_lshl_b32 s%d, s%d, 5" % (sT, sKQ)); a("s_add_u32 s%d, s%d, s%d" % (sT, sT, sS)); a("s_lshl_b32 s%d, s%d, 2" % (sT, sT)); a("s_add_u32 s%d, s%d, s%d" % (sT, sT, sW)); a("s_lshl_b32 s%d, s%d, 1" % (sT, sT))
        a("s_and_b32 s%d, s%d, 1" % (sT2, sG)); a("s_add_u32 s%d, s%d, s%d" % (sT, sT, sT2)); a("s_lshl_b32 s%d, s%d, 12" % (sT, sT))
        a("v_lshlrev_b32 v%d, 7, v%d" % (vT[0], vL))
        a("s_mov_b64 exec, 0xffffffff"); g.vm("buffer_load_dword v%d, v%d, %s, s%d offen %s" % (vMx, vT[0], srd(sWQ), sT, wqpf), "wqpf"); a("s_mov_b64 exec, -1")
    elif wqpf is not None:
        a("s_lshl_b32 s%d, s%d, 2" % (sT, sS)); a("s_add_u32 s%d, s%d, s%d" % (sT, sT, sW)); a("s_lshl_b32 s%d, s%d, 15" % (sT, sT)); a("s_lshl_b32 s%d, s%d, 10" % (sT2, sG)); a("s_add_u32 s%d, s%d, s%d" % (sT, sT, sT2))
        a("v_lshrrev_b32 v%d, 3, v%d" % (vT[0], vL)); a("v_lshlrev_b32 v%d, 13, v%d" % (vT[0], vT[0])); a("v_and_b32 v%d, 7, v%d" % (vT[1], vL)); a("v_lshl_add_u32 v%d, v%d, 7, v%d" % (vT[0], vT[1], vT[0]))
        a("s_mov_b64 exec, 0xffffffff"); g.vm("buffer_load_dword v%d, v%d, %s, s%d offen %s" % (vMx, vT[0], srd(sWQ), sT, wqpf), "wqpf"); a("s_mov_b64 exec, -1")
    if wq_at is None and wq_first is None:
        for i in range(4*NQ): wq_load(i)
    if dbgst: stamp('issD')
    a("s_mov_b32 s%d, 0x%x" % (sL2E, LOG2E)); a("s_mov_b32 s%d, 0x%x" % (sSC, SCALE))
    for m, bit in ((sB0, 1), (sB1, 2), (sR1, 16), (sR2, 32)):
        a("v_and_b32 v%d, %d, v%d" % (vT[0], bit, vL)); a("v_cmp_ne_u32 %s, 0, v%d" % (sp(m), vT[0]))
    a("v_mov_b32 v%d, 0xffff" % vT[0]); a("v_mov_b32 v%d, 0xffff0000" % vT[1])
    cnd(vT[0], "v%d" % vT[0], "v%d" % vT[1], sp(sB0)); cnd(vM0, "v%d" % vT[0], "0", sp(sB1)); cnd(vM1, "0", "v%d" % vT[0], sp(sB1))
    for i in range(8): a("v_mov_b32 v%d, 0" % (vO + i))

    work = []; nxt = [D0]; qk_done = [0]
    def at(n, f): work.append((n, len(work), f))
    def pump(k=1):
        for _ in range(k):
            n = nxt[0]
            if n >= 128: return
            if n >= 64: assert qk_done[0] > (n - 64)//4 or "qk" in abl, "V load would overwrite unread K"
            d = D
            for st_, dd in (Dseg or ()):
                if n >= st_: d = dd
            if half and n % 2: d += 1
            if n >= d: g.wait("n%d" % (n - d))
            issue(n); nxt[0] += 1
    def barrier():
        pump(); a("s_waitcnt lgkmcnt(0)"); a("s_barrier")
    def sel_tile(d, b):
        cnd(d, "v%d" % b, "v%d" % (b+4), sp(sR1)); cnd(vT[1], "v%d" % (b+8), "v%d" % (b+12), sp(sR1)); cnd(d, "v%d" % d, "v%d" % vT[1], sp(sR2))
    def red64(x, t):
        red32(x, t); red_swap("v_add_f32", x, t, 32)

    def c_x0():
        g.wait("wq%d" % (4*NQ - 1)); g.wait("xa1")
        stamp("x0in")
        a("s_lshl_b32 s%d, s%d, 12" % (sT, sW)); a("v_lshrrev_b32 v%d, 5, v%d" % (vT[0], vL)); a("v_lshlrev_b32 v%d, 10, v%d" % (vT[0], vT[0]))
        a("v_and_b32 v%d, 31, v%d" % (vT[1], vL)); a("v_lshl_add_u32 v%d, v%d, 3, v%d" % (vT[0], vT[1], vT[0])); a("v_add_u32 v%d, s%d, v%d" % (vT[3], sT, vT[0]))
        a("v_add_u32 v%d, 0x%x, v%d" % (vT[3], LWQ, vT[3]))
        for qq in range(NQ):
            for c in range(4):
                for rr in range(2): a("ds_read_b64_tr_b16 %s, v%d offset:%d" % (r(vW + 16*qq + 4*c + 2*rr, 2), vT[3], qq*4096 + 2*rr*1024 + c*256))
        unpack4(vX, vXr); unpack4(vD, vXf); unpack4(vD+4, vXf+2)
        a("v_pk_add_f32 %s, %s, %s" % (r(vD+8, 2), r(vD, 2), r(vD+2, 2))); a("v_pk_add_f32 %s, %s, %s" % (r(vD+10, 2), r(vD+4, 2), r(vD+6, 2)))
        a("v_pk_add_f32 %s, %s, %s" % (r(vD+8, 2), r(vD+8, 2), r(vD+10, 2))); a("v_add_f32 v%d, v%d, v%d" % (vT[0], vD+8, vD+9))
        pump()
        red64(vT[0], vT[1])
        a("v_mul_f32 v%d, 0x3b000000, v%d" % (vT[0], vT[0]))
        for e in range(8): a("v_sub_f32 v%d, v%d, v%d" % (vD+e, vD+e, vT[0]))
        a("v_mul_f32 v%d, v%d, v%d" % (vT[2], vD, vD))
        for e in range(1, 8): a("v_fmac_f32 v%d, v%d, v%d" % (vT[2], vD+e, vD+e))
        pump()
        red64(vT[2], vT[1])
        a("v_mul_f32 v%d, 0x3b000000, v%d" % (vT[2], vT[2]))
        rbf2(vT[0], vT[2], vT[0], vT[2], vT[1])
        a("v_add_f32 v%d, 0x%x, v%d" % (vT[2], EPS, vT[2])); rbf(vT[2], vT[2]); a("v_sqrt_f32 v%d, v%d" % (vT[2], vT[2]))
        unpack4(vD, vXa); unpack4(vD+4, vXa+2)
        rbf(vT[2], vT[2]); a("v_rcp_f32 v%d, v%d" % (vT[2], vT[2]))
        pump()
        for e in range(8): a("v_sub_f32 v%d, v%d, v%d" % (vD+e, vD+e, vT[0]))
        for e in range(0, 8, 2): rbf2(vD+e, vD+e+1, vD+e, vD+e+1, vT[1])
        for e in range(8): a("v_mul_f32 v%d, v%d, v%d" % (vD+e, vD+e, vT[2]))
        for e in range(4): a("v_cvt_pk_bf16_f32 v%d, v%d, v%d" % (vA+e, vD+2*e, vD+2*e+1))
        a("s_lshl_b32 s%d, s%d, 2" % (sT, sW)); a("v_lshl_add_u32 v%d, v%d, 4, s%d" % (vT[9], vL, sT))
        a("s_waitcnt lgkmcnt(0)")
        for qq in range(NQ):
            for c in range(4): a("v_mfma_f32_16x16x32_bf16 %s, %s, %s, 0" % (r((vG if qq else vD) + 4*c, 4), r(vA, 4), r(vW + 16*qq + 4*c, 4)))
        pump(); nop(8)
        for qq in range(NQ):
            sel_tile(vT[0], vG if qq else vD)
            a("ds_write_b32 v%d, v%d offset:%d" % (vT[9], vT[0], LRED + qq*1024))
        a("v_mov_b32 v%d, 0x3f803f80" % vT[2]); a("v_lshlrev_b32 v%d, 2, v%d" % (vT[3], vL)); a("ds_write_b32 v%d, v%d offset:%d" % (vT[3], vT[2], LONE))
        barrier()
        l2, l3 = g.newlab("L_nosig"), g.newlab("L_noq")
        a("s_cmp_lg_u32 s%d, 3" % sW); a("s_cbranch_scc1 " + l2)
        if n_sig: pass
        elif ssig:
            a("s_and_b32 s%d, s2, 63" % sT); a("s_lshl_b32 s%d, s%d, 2" % (sT, sT)); a("s_mov_b32 s%d, 1" % sCNT)
            a("s_atomic_add s%d, %s, s%d" % (sCNT, sp(sDBG), sT))
        elif "sig" not in abl:
            a("s_and_b32 s%d, s2, 63" % sT); a("s_lshl_b32 s%d, s%d, 2" % (sT, sT)); a("v_mov_b32 v%d, s%d" % (vT[0], sT)); a("v_mov_b32 v%d, 1" % vT[1])
            a("s_mov_b64 exec, 1"); a("buffer_atomic_add v%d, v%d, %s, 0 offen sc1" % (vT[1], vT[0], srd(sDBG))); a("s_mov_b64 exec, -1")
        g.lab(l2)
        a("s_cmp_lg_u32 s%d, 0" % sW); a("s_cbranch_scc1 " + l3)
        a("v_lshlrev_b32 v%d, 4, v%d" % (vT[0], vL))
        for qq in range(NQ): a("ds_read_b128 %s, v%d offset:%d" % (r(vD + 4*qq, 4), vT[0], LRED + qq*1024))
        a("s_movk_i32 s%d, 0x2000" % sT); a("s_waitcnt lgkmcnt(0)")
        for qq in range(NQ):
            sum4(vD + 4*qq)
            a("buffer_store_dword v%d, v%d, %s, %s offen sc1" % (vD + 4*qq, vAd[9], srd(sWS), "s%d" % sT if qq else "0"))
        g.lab(l3)
        if not dbgst and not dmerge: stamp("qpub")
    if wq_at is not None:
        for i in range(4): at(wq_at[0] + i*wq_at[1], (lambda i: lambda: wq_load(i))(i))
    def c_sig():
        l2 = g.newlab("L_nosig")
        g.wait("clr1"); barrier()
        a("s_cmp_lg_u32 s%d, 3" % sW); a("s_cbranch_scc1 " + l2)
        a("s_and_b32 s%d, s2, 63" % sT); a("s_lshl_b32 s%d, s%d, 2" % (sT, sT)); a("s_mov_b32 s%d, 1" % sCNT)
        a("s_atomic_add s%d, %s, s%d" % (sCNT, sp(sDBG), sT))
        g.lab(l2)
    if n_sig: at(n_sig, c_sig)
    if 'x0' not in abl: at(n_x0, c_x0)
    else: at(n_x0, lambda: stamp('x0in')); at(n_x0+2, lambda: None if dmerge else stamp('qpub'))

    def retry(check, reload):
        if "poll" in abl: return
        lp, ok = g.newlab("L_retry"), g.newlab("L_ok")
        check()
        a("s_cbranch_vccz " + ok)
        a("s_mov_b32 s%d, 0" % sCNT)
        g.lab(lp)
        a("s_mov_b64 exec, vcc")
        reload()
        a("s_mov_b64 exec, -1")
        a("s_waitcnt vmcnt(0)")
        check()
        a("s_add_u32 s%d, s%d, 1" % (sCNT, sCNT)); a("s_cmp_ge_u32 s%d, %d" % (sCNT, spin)); a("s_cbranch_scc1 " + ok)
        a("s_cbranch_vccnz " + lp)
        g.lab(ok)
    def chk_sen(base, n):
        def f():
            t = vT[0]
            if n == 4:
                a("v_max3_u32 v%d, v%d, v%d, v%d" % (t, base, base+1, base+2)); a("v_max_u32 v%d, v%d, v%d" % (t, t, base+3))
            else:
                t2 = vT[1]; h = n//2
                a("v_max_u32 v%d, v%d, v%d" % (t, base, base+1)); a("v_max_u32 v%d, v%d, v%d" % (t2, base+h, base+h+1))
                for i in range(2, h, 2):
                    a("v_max3_u32 v%d, v%d, v%d, v%d" % (t, t, base+i, base+i+1)); a("v_max3_u32 v%d, v%d, v%d, v%d" % (t2, t2, base+h+i, base+h+i+1))
                a("v_max_u32 v%d, v%d, v%d" % (t, t, t2))
            a("v_cmp_eq_u32 vcc, -1, v%d" % t)
        return f
    MK = [8, 10, 12, 14, 24, 26, 48, 50]
    SO = [20, 21, 22, 23, 44, 45, 46, 47]
    def gather(n, addr, offs, pre=None, delay=0, post=None, later=False):
        if "exit" in abl: g.waitall(); return lambda: None
        ld = lambda i: "buffer_load_dwordx4 %s, v%d, %s, s%d offen sc1" % (r(vG + 4*i, 4), addr, srd(sWS), SO[i])
        top, lp, ok, done = g.newlab("L_gather"), g.newlab("L_retry"), g.newlab("L_ok"), g.newlab("L_done")
        for i in range(n): a("s_mov_b32 s%d, 0x%x" % (SO[i], offs[i]))
        a("s_mov_b32 s%d, 0" % sCNT)
        if post: a("s_mov_b32 s%d, %d" % (sRP, repub_at))
        if delay: a("s_sleep %d" % delay)
        if pre:
            for i in range(n): g.vm(ld(i), "g%d" % i)
            pre()
            a("s_branch %s_w" % top)
        g.lab(top)
        for i in range(n): a(ld(i))
        g.lab(top + "_w")
        chk = lambda i: a("v_cmp_eq_u32 %s, -1, v%d" % (sp(MK[i]), vG + 4*i))
        def anym():
            a("s_or_b64 vcc, %s, %s" % (sp(MK[0]), sp(MK[1])))
            for i in range(2, n): a("s_or_b64 vcc, vcc, %s" % sp(MK[i]))
        g.waitall()
        g.lab(top + "_c")
        def quick_test():
            w = [vG + 4*i for i in range(n)]
            a("v_max3_u32 v%d, v%d, v%d, v%d" % (vE, w[0], w[1], w[2]))
            k = 3
            while k + 1 < n: a("v_max3_u32 v%d, v%d, v%d, v%d" % (vE, vE, w[k], w[k+1])); k += 2
            if k < n: a("v_max_u32 v%d, v%d, v%d" % (vE, vE, w[k]))
            a("v_cmp_eq_u32 vcc, -1, v%d" % vE); a("s_cbranch_vccz " + ok)
        if quick:
            quick_test()
            g.lab(lp)
            for i in range(n): chk(i)
        else:
            for i in range(n): chk(i)
            anym(); a("s_cbranch_scc0 " + ok)
            g.lab(lp)
        if psleep: a("s_sleep %d" % psleep)
        if post:
            a("s_cmp_lt_u32 s%d, s%d" % (sCNT, sRP)); a("s_cbranch_scc1 %s_n" % lp); post(); a("s_mov_b32 s%d, -1" % sRP); g.lab(lp + "_n")
        for i in range(n):
            a("s_mov_b64 exec, %s" % sp(MK[i])); a(ld(i))
        a("s_mov_b64 exec, -1")
        a("s_add_u32 s%d, s%d, 1" % (sCNT, sCNT)); a("s_cmp_ge_u32 s%d, %d" % (sCNT, spin))
        a("s_waitcnt vmcnt(0)")
        a("s_cbranch_scc1 " + ok)
        if quick: quick_test(); a("s_branch " + lp)
        else:
            for i in range(n): chk(i)
            anym(); a("s_cbranch_scc1 " + lp)
        g.lab(ok)
        sum_g(n)
        def nan_check():
            a("v_cmp_u_f32 vcc, v%d, v%d" % (vG, vG+1)); a("v_cmp_u_f32 %s, v%d, v%d" % (sp(MK[0]), vG+2, vG+3))
            a("s_add_u32 s%d, s%d, 1" % (sCNT, sCNT)); a("s_cmp_ge_u32 s%d, %d" % (sCNT, spin)); a("s_cbranch_scc1 " + done)
            a("s_or_b64 vcc, vcc, %s" % sp(MK[0])); a("s_cbranch_scc1 " + top)
            g.lab(done)
        if later and defer: return nan_check
        nan_check()
        return lambda: None
    def sum_g(n):
        st = 1
        while st < n:
            for i in range(0, n, 2*st):
                if i + st < n:
                    for h in range(2): a("v_pk_add_f32 %s, %s, %s" % (r(vG+4*i+2*h, 2), r(vG+4*i+2*h, 2), r(vG+4*(i+st)+2*h, 2)))
            st *= 2
    G4 = [vG+i for i in range(4)]; G4b = [vG+4+i for i in range(4)]

    ld_cnt = lambda: "buffer_load_dword v%d, v%d, %s, 0 offen sc1" % (vCn, vAd[3], srd(sDBG))
    def c_cnt():
        a("v_lshlrev_b32 v%d, 2, v%d" % (vAd[3], vL)); g.vm(ld_cnt(), "cnt")
    def ld_q(emit):
        for i in range(2): emit("buffer_load_dwordx4 %s, v%d, %s, s%d offen sc1" % (r(vG + 4*i, 4), vAd[6], srd(sWS), sT2 if i == 0 else sT), "q%d" % i)
    def q_base():
        a("s_lshl_b32 s%d, s%d, 13" % (sT2, sG)); a("s_add_u32 s%d, s%d, 0x%x" % (sT2, sT2, QX)); a("s_add_u32 s%d, s%d, 4096" % (sT, sT2))
    def c_qld():
        g.wait("cnt")
        if "cnt" not in abl: retry(lambda: a("v_cmp_gt_u32 vcc, 4, v%d" % vCn), lambda: a(ld_cnt()))
        a("s_lshl_b32 s%d, s%d, 9" % (sT, sW)); a("v_lshrrev_b32 v%d, 5, v%d" % (vT[0], vL)); a("v_and_b32 v%d, 31, v%d" % (vT[1], vL))
        a("v_lshlrev_b32 v%d, 11, v%d" % (vT[0], vT[0])); a("v_lshl_add_u32 v%d, v%d, 4, v%d" % (vT[0], vT[1], vT[0])); a("v_add_u32 v%d, s%d, v%d" % (vAd[6], sT, vT[0]))
        q_base(); ld_q(g.vm)
    def c_qchk():
        g.wait("q1"); q_base()
        retry(chk_sen(vG, 8), lambda: ld_q(lambda t, tag: a(t)))
        sum_g(2); red_swap_n("v_add_f32", G4, G4b, 32)
        a("v_cvt_pk_bf16_f32 v%d, v%d, v%d" % (vT[4], vG, vG+1)); a("v_cvt_pk_bf16_f32 v%d, v%d, v%d" % (vT[5], vG+2, vG+3))
        a("ds_write_b64 v%d, %s offset:%d" % (vAd[1], r(vT[4], 2), LQ))
        barrier()
        a("ds_read_b128 %s, v%d offset:%d" % (r(vQ, 4), vAd[0], LQ)); a("s_waitcnt lgkmcnt(0)")
        if not dbgst: stamp("qok")
    if 'qg' not in abl: at(n_cnt, c_cnt); at(n_q, c_qld); at(n_qk, c_qchk)
    else: at(n_qk, lambda: stamp('qok'))

    def qk_step(T):
        def f():
            g.wait("n%d" % (4*T + 3))
            for u in range(4):
                a("v_mfma_f32_16x16x32_bf16 %s, %s, %s, 0" % (r(vD + 4*u, 4), ar(16*T + 4*u, 4), r(vQ, 4)))
            nop(8)
            Dv = lambda u, j: vD + 4*u + j
            for rr in (3, 2, 1, 0):
                X = [Dv(aa ^ rr, aa) for aa in range(4)]
                cnd(vT[4], "v%d" % X[0], "v%d" % X[1], sp(sB0)); cnd(vT[5], "v%d" % X[2], "v%d" % X[3], sp(sB0)); cnd(vT[rr], "v%d" % vT[4], "v%d" % vT[5], sp(sB1))
            dpp("v_add_f32", vT[2], vT[3], vT[2], "quad_perm:[1,0,3,2]"); nop(1)
            dpp("v_add_f32", vT[0], vT[1], vT[0], "quad_perm:[1,0,3,2]"); nop(2)
            dpp("v_add_f32", vT[0], vT[2], vT[0], "quad_perm:[2,3,0,1]")
            rbf(vT[0], vT[0]); a("v_mul_f32 v%d, s%d, v%d" % (vT[0], sSC, vT[0])); rbf(vS + T, vT[0])
            qk_done[0] += 1
        return f
    nq = n_qk + 2
    for T in range(16):
        nq = max(nq, 4*T + 3 + D)
        assert nq < 64 + 4*T
        if 'qk' not in abl: at(nq, qk_step(T))
        nq += 1
    n_st = nq

    def red_hs(op, x, t):
        red_quad(op, x); red_swap(op, x, t, 16); red_swap(op, x, t, 32)
    def c_stat1():
        if not dbgst: stamp("qkdone")
        a("v_max3_f32 v%d, v%d, v%d, v%d" % (vMx, vS, vS+1, vS+2))
        for i in range(3, 15, 2): a("v_max3_f32 v%d, v%d, v%d, v%d" % (vMx, vMx, vS+i, vS+i+1))
        a("v_max_f32 v%d, v%d, v%d" % (vMx, vMx, vS+15))
        red_hs("v_max_f32", vMx, vT[0])
    def c_stat2():
        for i in range(16):
            expsub(vD + i, vS + i, vMx)
            if i == 9: pump()
        nop(1)
        for st in (8, 4, 2, 1):
            for i in range(st): a("v_add_f32 v%d, v%d, v%d" % (vD+i, vD+i, vD+i+st))
        pump()
        red_hs("v_add_f32", vD, vT[0])
        a("v_mov_b32 v%d, v%d" % (vT[4], vMx)); a("v_mov_b32 v%d, v%d" % (vT[5], vD))
        a("v_bfe_u32 v%d, v%d, 2, 2" % (vT[0], vL)); a("s_lshl_b32 s%d, s%d, 3" % (sT, sW)); a("s_add_u32 s%d, s%d, %d" % (sT, sT, LS2))
        a("v_lshl_add_u32 v%d, v%d, 5, s%d" % (vT[1], vT[0], sT))
        a("s_mov_b64 exec, 0x1111"); a("ds_write_b64 v%d, %s" % (vT[1], r(vT[4], 2))); a("s_mov_b64 exec, -1")
        barrier()
        l2 = g.newlab("L_nost")
        a("s_cmp_lg_u32 s%d, 0" % sW); a("s_cbranch_scc1 " + l2)
        a("s_mov_b64 exec, 0x1111")
        a("v_lshlrev_b32 v%d, 5, v%d" % (vT[1], vT[0]))
        a("ds_read_b128 %s, v%d offset:%d" % (r(vD, 4), vT[1], LS2)); a("ds_read_b128 %s, v%d offset:%d" % (r(vD+4, 4), vT[1], LS2+16))
        wg_lin(sT); a("s_lshl_b32 s%d, s%d, 7" % (sT, sT)); a("s_add_u32 s%d, s%d, 0x%x" % (sT, sT, SX))
        a("v_lshlrev_b32 v%d, 3, v%d" % (vT[1], vT[0]))
        a("s_waitcnt lgkmcnt(0)")
        a("v_max3_f32 v%d, v%d, v%d, v%d" % (vT[4], vD, vD+2, vD+4)); a("v_max_f32 v%d, v%d, v%d" % (vT[4], vT[4], vD+6))
        for i in range(4): expsub(vD + 2*i, vD + 2*i, vT[4])
        nop(1)
        a("v_mul_f32 v%d, v%d, v%d" % (vT[5], vD, vD+1))
        for i in range(1, 4): a("v_fmac_f32 v%d, v%d, v%d" % (vT[5], vD+2*i, vD+2*i+1))
        a("buffer_store_dwordx2 %s, v%d, %s, s%d offen sc1" % (r(vT[4], 2), vT[1], srd(sWS), sT))
        a("s_mov_b64 exec, -1")
        g.lab(l2)
    if 'stat' not in abl: at(n_st, c_stat1); at(n_st+1, c_stat2)
    else: at(n_st, lambda: stamp('qkdone')); pass
    assert n_sg > n_st + 1
    def ld_sg(emit):
        emit("buffer_load_dwordx2 %s, v%d, %s, s%d offen sc1" % (r(vSG, 2), vAd[4], srd(sWS), sT2), "sg0")
        emit("buffer_load_dwordx2 %s, v%d, %s, s%d offen offset:2048 sc1" % (r(vSG+2, 2), vAd[4], srd(sWS), sT2), "sg1")
    def sg_base(): a("s_lshl_b32 s%d, s%d, 12" % (sT2, sG)); a("s_add_u32 s%d, s%d, 0x%x" % (sT2, sT2, SX))
    def c_sg():
        a("v_lshrrev_b32 v%d, 4, v%d" % (vT[0], vL)); a("v_and_b32 v%d, 3, v%d" % (vT[1], vL)); a("v_lshl_add_u32 v%d, v%d, 2, v%d" % (vT[0], vT[0], vT[1]))
        a("v_bfe_u32 v%d, v%d, 2, 2" % (vT[1], vL)); a("v_lshlrev_b32 v%d, 3, v%d" % (vT[1], vT[1])); a("v_lshl_add_u32 v%d, v%d, 7, v%d" % (vAd[4], vT[0], vT[1]))
        sg_base(); ld_sg(g.vm)
    def c_p():
        g.wait("sg1"); sg_base()
        retry(chk_sen(vSG, 4), lambda: ld_sg(lambda t, tag: a(t)))
        stamp("sgok")
        a("v_max_f32 v%d, v%d, v%d" % (vMx, vSG, vSG+2)); red_hs("v_max_f32", vMx, vT[0])
        pump()
        expsub(vSG, vSG, vMx); expsub(vSG+2, vSG+2, vMx); nop(1)
        a("v_mul_f32 v%d, v%d, v%d" % (vRl, vSG, vSG+1)); a("v_fmac_f32 v%d, v%d, v%d" % (vRl, vSG+2, vSG+3))
        red_hs("v_add_f32", vRl, vT[0]); a("v_rcp_f32 v%d, v%d" % (vRl, vRl))
    def c_p2():
        for i in range(16):
            expsub(vS + i, vS + i, vMx)
            if i == 9: pump()
        pump()
        for i in range(16): a("v_mul_f32 v%d, v%d, v%d" % (vS+i, vS+i, vRl))
        for i in range(16): a("v_cvt_pk_bf16_f32 v%d, v%d, v%d" % (vS+i, vS+i, vS+i))
        nop(2)
    if 'stat' not in abl: at(n_sg, c_sg); at(n_pv, c_p); at(n_pv+1, c_p2)
    else: at(n_pv, lambda: stamp('sgok'))

    pvn = [0]
    def pv_prep(j):
        if "pv" in abl: return
        T, u = divmod(j, 4); tp = vTP + 2*(j % 4)
        ctl = "quad_perm:[%d,%d,%d,%d]" % (u, u, u, u)
        dpp("v_and_b32", tp, vS + T, vM0, ctl); dpp("v_and_b32", tp+1, vS + T, vM1, ctl)
    def pv_mma(j):
        if "pv" in abl: return
        tp = vTP + 2*(j % 4)
        a("v_mfma_f32_16x16x16_bf16 %s, %s, %s, %s" % (r(vO, 4), r(tp, 2), ar(4*j, 2), r(vO, 4)))
        a("v_mfma_f32_16x16x16_bf16 %s, %s, %s, %s" % (r(vO+4, 4), r(tp, 2), ar(4*j+2, 2), r(vO+4, 4)))
    def pv_upto(jmax):
        while pvn[0] < jmax:
            j = pvn[0]
            if j == 0: pv_prep(0)
            if j + 1 < 64: pv_prep(j + 1)
            else: nop(1)
            g.wait("n%d" % (64 + j))
            pv_mma(j); pvn[0] += 1
    for n in range(n_pv + 5, 128):
        at(n, lambda: pv_upto(min(pvn[0] + pv_rate, nxt[0] - D - 64)))

    def w_load(i, kind="wo"):
        def f():
            if kind in abl: return
            a("s_lshl_b32 s%d, s%d, 13" % (sT, sW)); a("s_add_u32 m0, s%d, %d" % (sT, LW + i*1024))
            a("s_mul_i32 s%d, s%d, %d" % (sT2, sWST, i & 3))
            if i >= 4: a("s_add_u32 s%d, s%d, s%d" % (sT2, sT2, sWH))
            g.vm("buffer_load_dwordx4 v%d, %s, s%d offen %s lds" % (vAd[5], srd(sR1_ if i < 4 else sR2_), sT2, wpol), "w%d" % i)
        return f
    def c_pf():
        if "pf" in abl: return
        a("s_cmp_lt_u32 s%d, 2" % sW); a("s_cselect_b64 %s, %s, %s" % (sp(sPF), sp(sWGp), sp(sWUp)))
        a("s_mov_b32 s%d, %d" % (sPF+2, 512*3584)); a("s_mov_b32 s%d, 0x20000" % (sPF+3))
        a("s_lshl_b32 s%d, s%d, 1" % (sT, sS)); a("s_and_b32 s%d, s%d, 1" % (sT2, sW)); a("s_add_u32 s%d, s%d, s%d" % (sT, sT, sT2))
        if par is not None:
            a("s_mul_i32 s%d, s%d, %d" % (sT, sT, 8*3584)); a("s_lshr_b32 s%d, s%d, 1" % (sT2, sG)); a("s_mul_i32 s%d, s%d, 896" % (sT2, sT2)); sh, msk = 3, "0x7f7f7f7f"
        elif pf_role:
            a("s_sub_u32 s%d, s%d, 32" % (sT, sT)); a("s_mul_i32 s%d, s%d, %d" % (sT, sT, 16*3584)); a("s_mul_i32 s%d, s%d, 448" % (sT2, sG)); a("s_and_b32 s%d, s%d, 0xffffff80" % (sT2, sT2)); sh, msk = 2, None
        else:
            a("s_mul_i32 s%d, s%d, %d" % (sT, sT, 8*3584)); a("s_mul_i32 s%d, s%d, 448" % (sT2, sG)); a("s_and_b32 s%d, s%d, 0xffffff80" % (sT2, sT2)); sh, msk = 2, "lo"
        a("s_add_u32 s%d, s%d, s%d" % (sT, sT, sT2))
        a("v_lshrrev_b32 v%d, %d, v%d" % (vT[0], sh, vL)); a("v_mul_u32_u24 v%d, 3584, v%d" % (vT[0], vT[0])); a("v_and_b32 v%d, %d, v%d" % (vT[1], (1 << sh) - 1, vL))
        a("v_lshl_add_u32 v%d, v%d, 7, v%d" % (vT[0], vT[1], vT[0]))
        if msk == "lo": a("s_mov_b64 exec, 0xffffffff")
        elif msk: a("s_mov_b32 exec_lo, %s" % msk); a("s_mov_b32 exec_hi, %s" % msk)
        g.vm("buffer_load_dword v%d, v%d, %s, s%d offen %s" % (vCn, vT[0], srd(sPF), sT, pfpol), "pf")
        a("s_mov_b64 exec, -1")
    if par is not None: assert n_pf is None
    def c_tsig():
        l2 = g.newlab("L_notsig")
        a("s_cmp_lg_u32 s%d, 0" % sW); a("s_cbranch_scc1 " + l2)
        a("v_mov_b32 v%d, 1" % vT[1]); a("s_mov_b64 exec, 1"); a("buffer_atomic_add v%d, v%d, %s, 0 offen sc1" % (vT[1], vTX, srd(sWS))); a("s_mov_b64 exec, -1")
        g.lab(l2)
    if n_t: at(n_t, c_tsig)
    ld_t = lambda: "buffer_load_dword v%d, v%d, %s, 0 offen sc1" % (vTv, vTX, srd(sWS))
    def t_wait():
        lp, ok = g.newlab("L_twait"), g.newlab("L_tok")
        g.wait("tv"); a("s_mov_b32 s%d, 0" % sCNT)
        g.lab(lp)
        a("v_cmp_gt_i32 vcc, 31, v%d" % vTv); a("s_add_u32 s%d, s%d, 1" % (sCNT, sCNT)); a("s_cbranch_vccz " + ok)
        a("s_cmp_ge_u32 s%d, %d" % (sCNT, spin)); a("s_cbranch_scc1 " + ok)
        a("s_sleep %d" % tsleep); a(ld_t()); a("s_waitcnt vmcnt(0)"); a("s_branch " + lp)
        g.lab(ok)
    if n_pf is not None: at(n_pf, c_pf)
    def wo_early(i):
        def f():
            l2 = g.newlab("L_nowo"); a("s_cmp_lg_u32 s%d, 0" % sROLE); a("s_cbranch_scc1 " + l2); q0 = list(g.q); w_load(i)(); g.q = q0; g.lab(l2)
        return f
    if wo_at:
        for i in range(8): at(wo_at[0] + i*wo_at[1], wo_early(i))

    work.sort(key=lambda x: x[:2])
    while nxt[0] < 128 or work:
        pump()
        while work and work[0][0] <= nxt[0] - 1:
            work.pop(0)[2]()
    stamp("lastissue")
    LB, LC, LD = "L_roleB", "L_roleC", "L_roleD"
    if "tail" in abl:
        pv_upto(64); stamp("pvdone"); stamp("opub"); a("s_branch L_fin"); nst[0] -= 2; del stn[-2:]
    a("s_cmp_eq_u32 s%d, 2" % sROLE); a("s_cbranch_scc1 " + LD)
    a("s_cmp_eq_u32 s%d, 1" % sROLE); a("s_cbranch_scc1 " + LC)
    q_save = list(g.q); pv_save = pvn[0]; nst_save = nst[0]

    def republish(role):
        if fast1 and (par is None or role == "B"):
            a("s_mov_b64 exec, 0xffffffff"); a("buffer_store_dwordx4 %s, v%d, %s, 0 offen sc1" % (r(vO, 4), vAd[8], srd(sWS))); a("s_mov_b64 exec, -1")
    def drain_publish(extra=(), role="C"):
        a("s_lshl_b32 s%d, s%d, 11" % (sT, sW)); a("v_lshl_add_u32 v%d, v%d, 5, s%d" % (vT[10], vL, sT))
        a("s_lshl_b32 s%d, s%d, 9" % (sT, sW)); a("v_and_b32 v%d, 31, v%d" % (vT[11], vL)); a("v_lshl_add_u32 v%d, v%d, 4, s%d" % (vT[11], vT[11], sT))
        extra = list(extra); k = 0
        while pvn[0] < 64:
            pv_upto(pvn[0] + 1); k += 1
            if extra and k > ex_at and pvn[0] < 64: extra.pop(0)()
        assert not extra or 'tail' in abl
        stamp("pvdone")
        nop(7)
        a("ds_write_b128 v%d, %s offset:%d" % (vT[10], r(vO, 4), LO)); a("ds_write_b128 v%d, %s offset:%d" % (vT[10], r(vO+4, 4), LO + 16))
        a("s_mov_b64 exec, 0xffffffff")
        a("s_waitcnt lgkmcnt(0)"); a("s_barrier")
        for w in range(4): a("ds_read_b128 %s, v%d offset:%d" % (r(vD + 4*w, 4), vT[11], LO + 2048*w))
        a("s_waitcnt lgkmcnt(2)")
        for h in range(2): a("v_pk_add_f32 %s, %s, %s" % (r(vD+2*h, 2), r(vD+2*h, 2), r(vD+4+2*h, 2)))
        a("s_waitcnt lgkmcnt(0)")
        for h in range(2): a("v_pk_add_f32 %s, %s, %s" % (r(vD+8+2*h, 2), r(vD+8+2*h, 2), r(vD+12+2*h, 2)))
        for h in range(2): a("v_pk_add_f32 %s, %s, %s" % (r(vD+2*h, 2), r(vD+2*h, 2), r(vD+8+2*h, 2)))
        if fast1 and (par is None or role == "B"):
            a("buffer_store_dwordx4 %s, v%d, %s, 0 offen" % (r(vD, 4), vAd[8], srd(sWS)))
            for i in range(4): a("v_mov_b32 v%d, v%d" % (vO + i, vD + i))
        else:
            a("buffer_store_dwordx4 %s, v%d, %s, 0 offen sc1" % (r(vD, 4), vAd[8], srd(sWS)))
        a("s_mov_b64 exec, -1")
        stamp("opub")
    def finish(role):
        if skewprobe is not None:
            a("s_waitcnt lgkmcnt(0)"); a("s_lshl_b32 s%d, s2, 2" % sT); a("s_add_u32 s%d, s%d, 0x70000" % (sT, sT)); a("v_mov_b32 v%d, s%d" % (vT[0], sT)); a("v_mov_b32 v%d, s%d" % (vT[1], sST))
            a("s_mov_b64 exec, 1"); a("buffer_store_dword v%d, v%d, %s, 0 offen sc1" % (vT[1], vT[0], srd(sWS))); a("s_mov_b64 exec, -1"); a("s_waitcnt vmcnt(0)")
            if role == "C":
                lq, lp, l0 = g.newlab("L_nsk"), g.newlab("L_sk"), g.newlab("L_sk0")
                a("s_cmp_lg_u32 s2, 1"); a("s_cbranch_scc1 " + lq); a("s_cmp_lg_u32 s%d, 0" % sW); a("s_cbranch_scc1 " + lq)
                g.lab(l0)
                a("s_memrealtime s[54:55]"); a("s_waitcnt lgkmcnt(0)"); a("s_sub_u32 s%d, s54, s%d" % (sT2, sST)); a("s_cmp_lt_u32 s%d, 3300" % sT2); a("s_cbranch_scc1 " + l0)
                a("v_lshlrev_b32 v%d, 4, v%d" % (vT[0], vL)); a("s_mov_b32 s%d, 0x70000" % sT)
                a("buffer_load_dwordx4 %s, v%d, %s, s%d offen sc1" % (r(vG, 4), vT[0], srd(sWS), sT)); a("s_waitcnt vmcnt(0)")
                for i in range(4): a("v_subrev_u32 v%d, s%d, v%d" % (vG+i, sST, vG+i)); a("v_add_u32 v%d, 1000, v%d" % (vG+i, vG+i))
                a("v_min3_u32 v%d, v%d, v%d, v%d" % (vT[0], vG, vG+1, vG+2)); a("v_min_u32 v%d, v%d, v%d" % (vT[0], vT[0], vG+3))
                a("v_max3_u32 v%d, v%d, v%d, v%d" % (vT[1], vG, vG+1, vG+2)); a("v_max_u32 v%d, v%d, v%d" % (vT[1], vT[1], vG+3))
                for op, x in (("v_min_u32", vT[0]), ("v_max_u32", vT[1])):
                    red_quad(op, x); nop(2); dpp(op, x, x, x, "row_half_mirror"); nop(2); dpp(op, x, x, x, "row_mirror"); red_swap(op, x, vT[2], 16); red_swap(op, x, vT[2], 32)
                nop(2)
                a("v_readfirstlane_b32 s56, v%d" % vT[0]); a("v_readfirstlane_b32 s57, v%d" % vT[1])
                if skewprobe == "all": a("s_sub_u32 s%d, s57, s56" % sT)
                else:
                    a("v_readlane_b32 s58, v%d, %d" % (vG + skewprobe % 4, skewprobe // 4)); a("s_sub_u32 s%d, s57, s58" % sT)
                a("s_mul_i32 s%d, s%d, 10" % (sT, sT)); a("s_min_u32 s%d, s%d, 20000" % (sT, sT)); a("s_add_u32 s%d, s%d, 4000" % (sT, sT)); a("s_add_u32 s%d, s%d, s57" % (sT, sT)); a("s_sub_u32 s%d, s%d, 1000" % (sT, sT))
                g.lab(lp)
                a("s_memrealtime s[54:55]"); a("s_waitcnt lgkmcnt(0)"); a("s_sub_u32 s%d, s54, s%d" % (sT2, sST)); a("s_cmp_lt_u32 s%d, s%d" % (sT2, sT)); a("s_cbranch_scc1 " + lp)
                g.lab(lq)
        if probe and role in probe[0]:
            ia, ib = stn.index(probe[1]), stn.index(probe[2]); lp = g.newlab("L_probe"); lq = g.newlab("L_noprobe")
            if len(probe) > 4: a("s_and_b32 s%d, s2, %d" % (sT, probe[4])); a("s_cmp_lg_u32 s%d, %d" % (sT, probe[5])); a("s_cbranch_scc1 " + lq)
            a("s_waitcnt lgkmcnt(0)")
            a("s_sub_u32 s%d, s%d, s%d" % (sT, sST + 2*ib, sST + 2*ia)); a("s_mul_i32 s%d, s%d, %d" % (sT, sT, probe[3]))
            a("s_min_u32 s%d, s%d, 100000" % (sT, sT)); a("s_add_u32 s%d, s%d, %d" % (sT, sT, probe_base))
            g.lab(lp)
            a("s_memrealtime s[54:55]"); a("s_waitcnt lgkmcnt(0)"); a("s_sub_u32 s%d, s54, s%d" % (sT2, sST))
            a("s_cmp_lt_u32 s%d, s%d" % (sT2, sT)); a("s_cbranch_scc1 " + lp)
            g.lab(lq)
        if stamps:
            a("s_waitcnt lgkmcnt(0)")
            a("s_lshl_b32 s%d, s2, 2" % sT); a("s_add_u32 s%d, s%d, s%d" % (sT, sT, sW)); a("s_lshl_b32 s%d, s%d, 6" % (sT, sT)); a("s_add_u32 s%d, s%d, 0x%x" % (sT, sT, STAMP))
            a("s_mov_b64 exec, 1"); a("v_mov_b32 v%d, s%d" % (vT[0], sT))
            for i in range(16):
                a("v_mov_b32 v%d, %s" % (vG + i, ("s%d" % (sST + 2*i)) if i < nst[0] else "0"))
            for i in range(4): a("buffer_store_dwordx4 %s, v%d, %s, 0 offen offset:%d" % (r(vG+4*i, 4), vT[0], srd(sWS), 16*i))
        a("s_endpgm")
    def attn_to_hpk(x, p):
        red_swap_n("v_add_f32", G4, G4b, 32)
        if not lean: rbf2(vG, vG+1, vG, vG+1, vT[0]); rbf2(vG+2, vG+3, vG+2, vG+3, vT[1])
        for h in range(2): a("v_pk_add_f32 %s, %s, %s" % (r(vG+2*h, 2), r(vG+2*h, 2), r(x+2*h, 2)))
        a("v_cvt_pk_bf16_f32 v%d, v%d, v%d" % (p, vG, vG+1)); a("v_cvt_pk_bf16_f32 v%d, v%d, v%d" % (p+1, vG+2, vG+3))

    g.lab(LB)
    a("s_lshr_b32 s%d, s%d, 1" % (sT, sCI)); a("s_lshl_b32 s%d, s%d, 16" % (sT, sT)); a("s_and_b32 s%d, s%d, 1" % (sT2, sCI)); a("s_lshl_b32 s%d, s%d, 10" % (sT2, sT2)); a("s_add_u32 s%d, s%d, s%d" % (sT, sT, sT2))
    a("s_lshl_b32 s%d, s%d, 8" % (sT2, sW)); a("s_add_u32 s%d, s%d, s%d" % (sT, sT, sT2))
    a("v_lshrrev_b32 v%d, 4, v%d" % (vT[2], vL)); a("v_and_b32 v%d, 15, v%d" % (vT[4], vL))
    a("v_lshlrev_b32 v%d, 11, v%d" % (vT[0], vT[2])); a("v_lshl_add_u32 v%d, v%d, 4, v%d" % (vT[0], vT[4], vT[0])); a("v_add_u32 v%d, s%d, v%d" % (vAd[6], sT, vT[0]))
    a("s_lshl_b32 s%d, s%d, 13" % (sT, sW))
    a("v_lshrrev_b32 v%d, 5, v%d" % (vT[0], vL)); a("v_lshlrev_b32 v%d, 10, v%d" % (vT[0], vT[0]))
    a("v_and_b32 v%d, 31, v%d" % (vT[1], vL)); a("v_lshl_add_u32 v%d, v%d, 3, v%d" % (vT[0], vT[1], vT[0])); a("v_add_u32 v%d, s%d, v%d" % (vT[3], sT, vT[0]))
    if brow:
        a("s_lshl_b32 s%d, s%d, 9" % (sT, sW)); a("v_lshl_add_u32 v%d, v%d, 3, s%d" % (vAd[2], vL, sT))
        a("s_add_u32 s%d, s%d, %d" % (sT, sT, LBR)); a("v_and_b32 v%d, 3, v%d" % (vT[0], vL)); a("v_lshl_add_u32 v%d, v%d, 7, s%d" % (vT[0], vT[0], sT)); a("v_lshl_add_u32 v%d, v%d, 3, v%d" % (vAd[3], vT[2], vT[0]))
    else:
        a("s_lshl_b32 s%d, s%d, 8" % (sT, sW)); a("v_lshl_add_u32 v%d, v%d, 3, s%d" % (vAd[2], vT[4], sT))
        a("s_add_u32 s%d, s%d, %d" % (sT, sT, LACT2)); a("v_lshl_add_u32 v%d, v%d, 3, s%d" % (vAd[3], vT[2], sT))
    a("s_lshl_b32 s%d, s%d, 2" % (sT, sW)); a("v_lshl_add_u32 v%d, v%d, 4, s%d" % (vAd[4], vL, sT))
    a("s_lshl_b32 s%d, s%d, 11" % (sT, sCI)); a("s_lshl_b32 s%d, s%d, 8" % (sT2, sCB)); a("s_add_u32 s%d, s%d, s%d" % (sT, sT, sT2)); a("s_add_u32 s%d, s%d, 0x%x" % (sT, sT, AX))
    a("v_lshl_add_u32 v%d, v%d, 2, s%d" % (vAd[7], vL, sT)); a("v_lshlrev_b32 v%d, 4, v%d" % (vAd[9], vL))
    if wo_at or wo_late: drain_publish(role='B')
    elif D > 8 + ex_at: drain_publish([w_load(i) for i in range(8)], 'B')
    else:
        for i in range(9 + ex_at - D): w_load(i)()
        drain_publish([w_load(i) for i in range(9 + ex_at - D, 8)], 'B')
    def b_pre():
        if wo_late:
            if wo_late == 2: g.wait("g7")
            for i in range(8): w_load(i)()
        g.wait("w7")
        for ks in range(2):
            for c in range(4):
                for rr in range(2):
                    a("ds_read_b64_tr_b16 %s, v%d offset:%d" % (r(vW + 16*ks + 4*c + 2*rr, 2), vT[3], LW + (4*ks + 2*rr)*1024 + c*256))
    nc = gather(8, vAd[6], [OX + 4*i*2048 for i in range(8)], b_pre, post=(lambda: republish('B')) if fast1 else None, later=True)
    stamp("x1ok")
    if not brow: red_swap_n("v_add_f32", G4, G4b, 16); red_swap_n("v_add_f32", G4, G4b, 32)
    a("v_cvt_pk_bf16_f32 v%d, v%d, v%d" % (vT[4], vG, vG+1)); a("v_cvt_pk_bf16_f32 v%d, v%d, v%d" % (vT[5], vG+2, vG+3))
    a("ds_write_b64 v%d, %s offset:%d" % (vAd[2], r(vT[4], 2), LBR if brow else LACT2))
    for ks in range(2): a("ds_read2_b64 %s, v%d offset0:%d offset1:%d" % (r(vA + 4*ks, 4), vAd[3], ks*8, ks*8 + 4))
    nc()
    for ks in range(2):
        a("s_waitcnt lgkmcnt(%d)" % (1 - ks))
        for c in range(4):
            a("v_mfma_f32_16x16x32_bf16 %s, %s, %s, %s" % (r(vD + 4*c, 4), r(vA + 4*ks, 4), r(vW + 16*ks + 4*c, 4), r(vD + 4*c, 4) if ks else "0"))
    if brow:
        nop(5)
        for c in range(4): a("v_pk_add_f32 %s, %s, %s" % (r(vD+4*c, 2), r(vD+4*c, 2), r(vD+4*c+2, 2)))
        for c in range(4): a("v_add_f32 v%d, v%d, v%d" % (vD+4*c, vD+4*c, vD+4*c+1))
    else: nop(7)
    sel_tile(vT[0], vD)
    a("ds_write_b32 v%d, v%d offset:%d" % (vAd[4], vT[0], LRED2))
    lb = g.newlab("L_bdone")
    a("s_cmp_lg_u32 s%d, 0" % sW)
    a("s_waitcnt lgkmcnt(0)"); a("s_barrier")
    a("s_cbranch_scc1 " + lb)
    a("ds_read_b128 %s, v%d offset:%d" % (r(vD, 4), vAd[9], LRED2)); a("s_waitcnt lgkmcnt(0)")
    sum4(vD)
    a("buffer_store_dword v%d, v%d, %s, 0 offen sc1" % (vD, vAd[7], srd(sWS)))
    g.lab(lb)
    republish("B")
    stamp("bpub")
    finish("B")
    stB = list(stn)

    def final_stage(lred, dly):
        l3, l4 = g.newlab("L_d3"), g.newlab("L_d4")
        a("s_cmp_ge_u32 s%d, 2" % sW); a("s_cbranch_scc1 " + l3)
        gather(4, vAd[5], [DX + 32*i*2048 for i in range(4)], delay=dly)
        a("s_branch " + l4)
        g.lab(l3)
        gather(3, vAd[5], [DX + 32*i*2048 for i in range(3)], delay=dly)
        g.lab(l4)
        stamp("x3ok")
        nop(1)
        for i in range(4): dpp("v_add_f32", vG+i, vG+i, vG+i, "row_ror:8")
        red_swap_n("v_add_f32", G4, G4b, 16); red_swap_n("v_add_f32", G4, G4b, 32)
        a("s_mov_b64 exec, 0xff"); a("ds_write_b128 v%d, %s offset:%d" % (vAd[4], r(vG, 4), lred))
        ld = g.newlab("L_ddone")
        a("s_cmp_lg_u32 s%d, 0" % sW)
        a("s_waitcnt lgkmcnt(0)"); a("s_barrier")
        a("s_cbranch_scc1 " + ld)
        for w in range(4): a("ds_read_b128 %s, v%d offset:%d" % (r(vG + 4*w, 4), vAd[9], lred + 128*w))
        a("s_waitcnt lgkmcnt(0)")
        sum_g(4)
        if not lean: rbf2(vG, vG+1, vG, vG+1, vT[0]); rbf2(vG+2, vG+3, vG+2, vG+3, vT[1])
        for h in range(2): a("v_pk_add_f32 %s, %s, %s" % (r(vG+2*h, 2), r(vG+2*h, 2), r(vH+2*h, 2)))
        a("v_cvt_pk_bf16_f32 v%d, v%d, v%d" % (vT[4], vG, vG+1)); a("v_cvt_pk_bf16_f32 v%d, v%d, v%d" % (vT[5], vG+2, vG+3))
        a("buffer_store_dwordx2 %s, v%d, %s, 0 offen" % (r(vT[4], 2), vAd[7], srd(sOUT)) + (" " + outpol if outpol else ""))
        g.lab(ld)
        a("s_mov_b64 exec, -1")
        stamp("out")

    g.lab(LC); g.q = list(q_save); pvn[0] = pv_save; nst[0] = nst_save; del stn[nst_save:]
    a("v_lshrrev_b32 v%d, 4, v%d" % (vT[2], vL)); a("v_and_b32 v%d, 15, v%d" % (vT[4], vL))
    a("s_lshl_b32 s%d, s%d, 14" % (sT, sCI)); a("s_lshl_b32 s%d, s%d, 8" % (sT2, sW)); a("s_add_u32 s%d, s%d, s%d" % (sT, sT, sT2))
    a("v_lshlrev_b32 v%d, 12, v%d" % (vT[0], vT[2])); a("v_lshl_add_u32 v%d, v%d, 4, v%d" % (vT[0], vT[4], vT[0])); a("v_add_u32 v%d, s%d, v%d" % (vAd[7], sT, vT[0]))
    def wd_load(t):
        return lambda: None if "wd" in abl else g.vm("buffer_load_dwordx4 %s, v%d, %s, 0 offen offset:%d %s" % (r(vWD + 4*t, 4), vAd[7], srd(sWD), t*1024, wpol), "wd%d" % t)
    wdl = [wd_load(t) for t in range(4)]
    if pf_k is not None:
        ex = (wdl + [lambda: None]*8)[:pf_k] + [c_pf] + wdl[pf_k:]
        drain_publish(ex[:max(pf_k + 1, 5)])
    elif cw_late:
        drain_publish(wdl if wd_pos == 'drain' else ()); c_pf()
    else:
        c_pf(); drain_publish(wdl if wd_pos == 'drain' else ())
    if wd_pos == 'before':
        for f in wdl: f()
    for i in range(8): w_load(i, 'cw')()
    if wd_pos == 'after':
        for f in wdl: f()
    a("v_and_b32 v%d, 4, v%d" % (vT[0], vL)); a("v_cmp_ne_u32 vcc, 0, v%d" % vT[0])
    a("s_lshl_b32 s%d, s%d, 13" % (sT, sW)); a("v_lshl_add_u32 v%d, v%d, 3, s%d" % (vT[3], vL, sT))
    cnd(vP, "v%d" % vM0, "0", "vcc"); cnd(vP+1, "v%d" % vM1, "0", "vcc"); cnd(vP+2, "0", "v%d" % vM0, "vcc"); cnd(vP+3, "0", "v%d" % vM1, "vcc")
    a("s_lshl_b32 s%d, s%d, 8" % (sT, sW)); a("s_add_u32 s%d, s%d, %d" % (sT, sT, LACT2)); a("v_lshl_add_u32 v%d, v%d, 3, s%d" % (vAd[3], vT[2], sT))
    a("v_mov_b32 v%d, %d" % (vT[0], LONE)); cnd(vAd[3], "v%d" % vAd[3], "v%d" % vT[0], sp(sB0))
    a("v_and_b32 v%d, 31, v%d" % (vT[0], vL)); a("s_lshl_b32 s%d, s%d, 2" % (sT, sW)); a("v_lshl_add_u32 v%d, v%d, 4, s%d" % (vAd[4], vT[0], sT))
    a("v_and_b32 v%d, 3, v%d" % (vT[1], vL)); a("v_lshl_add_u32 v%d, v%d, 2, v%d" % (vT[0], vT[2], vT[1])); a("v_lshlrev_b32 v%d, 4, v%d" % (vAd[9], vT[0]))
    a("s_lshl_b32 s%d, s%d, 11" % (sT, sCI)); a("s_lshl_b32 s%d, s%d, 9" % (sT2, sW)); a("s_add_u32 s%d, s%d, s%d" % (sT, sT, sT2)); a("s_add_u32 s%d, s%d, 0x%x" % (sT, sT, DX))
    a("v_bfe_u32 v%d, v%d, 4, 1" % (vT[1], vL)); a("v_lshlrev_b32 v%d, 5, v%d" % (vT[0], vT[4])); a("v_lshl_add_u32 v%d, v%d, 4, v%d" % (vT[0], vT[1], vT[0])); a("v_add_u32 v%d, s%d, v%d" % (vAd[2], sT, vT[0]))
    a("s_lshl_b32 s%d, s%d, 2" % (sT, sW)); a("s_add_u32 s%d, s%d, %d" % (sT, sT, LST2)); a("v_mov_b32 v%d, s%d" % (vAd[0], sT)); a("v_mov_b32 v%d, %d" % (vAd[5], LST2))
    def c_pre():
        g.wait("w7")
        for mi in range(2):
            for ks in range(4):
                for rr in range(2):
                    a("ds_read_b64_tr_b16 %s, v%d offset:%d" % (r(vW + 16*mi + 4*ks + 2*rr, 2), vT[3], LW + mi*4096 + ks*1024 + rr*512))
        stamp("cwok")
        republish("C")
        if wd_pos == 'late':
            for f in wdl: f()
    if ax_early: nc = gather(8, vAd[6], [AX + 2*i*2048 for i in range(8)], c_pre, later=True)
    else: c_pre(); nc = gather(8, vAd[6], [AX + 2*i*2048 for i in range(8)], later=True)
    stamp("x2ok")
    attn_to_hpk(vX, vT[4])
    a("ds_write_b64 v%d, %s offset:%d" % (vAd[1], r(vT[4], 2), LACT2))
    for ks in range(4): a("ds_read2_b64 %s, v%d offset0:%d offset1:%d" % (r(vA + 4*ks, 4), vAd[3], ks*8, ks*8 + 4))
    nc()
    unpack4(vH, vT[4])
    a("v_pk_mul_f32 %s, %s, %s" % (r(vG, 2), r(vH, 2), r(vH, 2))); a("v_pk_add_f32 %s, %s, %s" % (r(vG+2, 2), r(vH, 2), r(vH+2, 2)))
    a("v_pk_fma_f32 %s, %s, %s, %s" % (r(vG, 2), r(vH+2, 2), r(vH+2, 2), r(vG, 2)))
    a("v_add_f32 v%d, v%d, v%d" % (vT[6], vG+2, vG+3)); a("v_add_f32 v%d, v%d, v%d" % (vT[7], vG, vG+1))
    for ks in range(4):
        a("s_waitcnt lgkmcnt(%d)" % (3 - ks))
        for mi in range(2):
            a("v_mfma_f32_16x16x32_bf16 %s, %s, %s, %s" % (r(vD + 4*mi, 4), r(vA + 4*ks, 4), r(vW + 16*mi + 4*ks, 4), r(vD + 4*mi, 4) if ks else "0"))
    red32x2(vT[6], vT[7], vT[0], vT[1])
    cnd(vT[0], "v%d" % vD, "v%d" % (vD+4), sp(sR1)); cnd(vT[1], "v%d" % (vD+1), "v%d" % (vD+5), sp(sR1))
    a("ds_write2st64_b32 v%d, v%d, v%d offset0:%d offset1:%d" % (vAd[4], vT[0], vT[1], LRED2//256, LRED2//256 + 2))
    a("s_mov_b64 exec, 1"); a("ds_write2_b32 v%d, v%d, v%d offset0:0 offset1:4" % (vAd[0], vT[6], vT[7])); a("s_mov_b64 exec, -1")
    a("s_waitcnt lgkmcnt(0)"); a("s_barrier")
    a("ds_read_b128 %s, v%d" % (r(vG, 4), vAd[5])); a("ds_read_b128 %s, v%d offset:16" % (r(vG+4, 4), vAd[5]))
    for i in range(4): a("ds_read_b128 %s, v%d offset:%d" % (r(vD + 4*i, 4), vAd[9], LRED2 + 256*i))
    a("s_waitcnt lgkmcnt(4)")
    a("v_pk_add_f32 %s, %s, %s" % (r(vG, 2), r(vG, 2), r(vG+2, 2))); a("v_pk_add_f32 %s, %s, %s" % (r(vG+4, 2), r(vG+4, 2), r(vG+6, 2)))
    a("v_add_f32 v%d, v%d, v%d" % (vG, vG, vG+1)); a("v_add_f32 v%d, v%d, v%d" % (vG+4, vG+4, vG+5))
    a("v_mul_f32 v%d, 0x3b000000, v%d" % (vG, vG)); a("v_mul_f32 v%d, 0x3b000000, v%d" % (vG+4, vG+4))
    a("v_fma_f32 v%d, -v%d, v%d, v%d" % (vG+4, vG, vG, vG+4)); a("v_max_f32 v%d, 0, v%d" % (vG+4, vG+4))
    if exactLN and not lean:
        rbf2(vG, vG+4, vG, vG+4, vT[1]); a("v_add_f32 v%d, 0x%x, v%d" % (vG+4, EPS, vG+4)); rbf(vG+4, vG+4); a("v_sqrt_f32 v%d, v%d" % (vG+4, vG+4))
        a("s_waitcnt lgkmcnt(0)")
        a("v_pk_add_f32 %s, %s, %s" % (r(vD, 2), r(vD, 2), r(vD+2, 2)))
        rbf(vG+4, vG+4); a("v_rcp_f32 v%d, v%d" % (vG+4, vG+4))
    else:
        a("v_add_f32 v%d, 0x%x, v%d" % (vG+4, EPS, vG+4)); a("v_rsq_f32 v%d, v%d" % (vG+4, vG+4))
        a("s_waitcnt lgkmcnt(0)")
        a("v_pk_add_f32 %s, %s, %s" % (r(vD, 2), r(vD, 2), r(vD+2, 2)))
    for i in range(1, 4): a("v_pk_add_f32 %s, %s, %s" % (r(vD+4*i, 2), r(vD+4*i, 2), r(vD+4*i+2, 2)))
    for i in range(4): a("v_add_f32 v%d, v%d, v%d" % (vD+4*i, vD+4*i, vD+4*i+1))
    a("v_fma_f32 v%d, -v%d, v%d, v%d" % (vD, vG, vD+8, vD)); a("v_fma_f32 v%d, -v%d, v%d, v%d" % (vD+4, vG, vD+12, vD+4))
    if lean:
        a("v_mul_f32 v%d, s%d, v%d" % (vT[2], sL2E, vG+4)); a("v_mul_f32 v%d, v%d, v%d" % (vT[1], vD+4, vG+4)); a("v_mul_f32 v%d, v%d, v%d" % (vT[0], vD, vT[2]))
        a("v_exp_f32 v%d, -v%d" % (vT[0], vT[0])); nop(1)
        a("v_add_f32 v%d, 1.0, v%d" % (vT[0], vT[0])); a("v_rcp_f32 v%d, v%d" % (vT[0], vT[0])); nop(1)
        a("v_mul_f32 v%d, v%d, v%d" % (vT[0], vT[0], vT[1])); a("v_cvt_pk_bf16_f32 v%d, v%d, v%d" % (vT[0], vT[0], vT[0])); nop(2)
    else:
        a("v_mul_f32 v%d, v%d, v%d" % (vD, vD, vG+4)); a("v_mul_f32 v%d, v%d, v%d" % (vD+4, vD+4, vG+4))
        rbf2(vT[0], vT[1], vD, vD+4, vT[2])
        a("v_mul_f32 v%d, s%d, v%d" % (vT[0], sL2E, vT[0])); a("v_exp_f32 v%d, -v%d" % (vT[0], vT[0])); nop(1)
        a("v_add_f32 v%d, 1.0, v%d" % (vT[0], vT[0])); a("v_rcp_f32 v%d, v%d" % (vT[0], vT[0])); nop(1)
        rbf(vT[0], vT[0]); a("v_mul_f32 v%d, v%d, v%d" % (vT[0], vT[0], vT[1])); a("v_cvt_pk_bf16_f32 v%d, v%d, v%d" % (vT[0], vT[0], vT[0])); nop(2)
    for t in range(4):
        for j in range(4): dpp("v_and_b32", vA + 4*t + j, vT[0], vP + j, "quad_perm:[%d,%d,%d,%d]" % (t, t, t, t))
        if t >= 1: a("v_mfma_f32_16x16x32_bf16 %s, %s, %s, %s" % (r(vD, 4), r(vA + 4*(t-1), 4), r(vWD + 4*(t-1), 4), r(vD, 4) if t > 1 else "0"))
    nop(1)
    a("v_mfma_f32_16x16x32_bf16 %s, %s, %s, %s" % (r(vD, 4), r(vA + 12, 4), r(vWD + 12, 4), r(vD, 4)))
    nop(7)
    a("s_mov_b64 exec, 0xffffffff")
    a("buffer_store_dwordx4 %s, v%d, %s, 0 offen sc1" % (r(vD, 4), vAd[2], srd(sWS)))
    a("s_mov_b64 exec, -1")
    stamp("cpub")
    if dmerge:
        lq = g.newlab("L_nofinal")
        a("s_mul_i32 s%d, s%d, 147" % (sT, sCI)); a("s_lshr_b32 s%d, s%d, 10" % (sT, sT)); a("s_mul_i32 s%d, s%d, 7" % (sT2, sT)); a("s_cmp_lg_u32 s%d, s%d" % (sT2, sCI)); a("s_cbranch_scc1 " + lq)
        a("s_mov_b32 s%d, s%d" % (sCI, sT))
        a("v_and_b32 v%d, 7, v%d" % (vT[4], vL)); a("s_lshl_b32 s%d, s%d, 6" % (sT, sCI)); a("v_lshl_add_u32 v%d, v%d, 3, s%d" % (vAd[7], vT[4], sT))
        a("ds_read_b64 %s, v%d offset:%d" % (r(vXr, 2), vAd[7], LACT2))
        a("s_lshl_b32 s%d, s%d, 7" % (sT, sCI)); a("s_lshl_b32 s%d, s%d, 14" % (sT2, sW)); a("s_add_u32 s%d, s%d, s%d" % (sT, sT, sT2))
        a("v_lshrrev_b32 v%d, 3, v%d" % (vT[0], vL)); a("v_lshlrev_b32 v%d, 11, v%d" % (vT[0], vT[0])); a("v_lshl_add_u32 v%d, v%d, 4, v%d" % (vT[0], vT[4], vT[0])); a("v_add_u32 v%d, s%d, v%d" % (vAd[5], sT, vT[0]))
        a("s_lshl_b32 s%d, s%d, 7" % (sT, sW)); a("v_lshl_add_u32 v%d, v%d, 4, s%d" % (vAd[4], vT[4], sT)); a("v_lshlrev_b32 v%d, 4, v%d" % (vAd[9], vT[4]))
        a("s_waitcnt lgkmcnt(0)"); unpack4(vH, vXr)
        if dwait >= 1: a("s_waitcnt vmcnt(0)")
        if dwait >= 2: a("s_barrier")
        final_stage(LRED, 0)
        g.lab(lq)
    finish("C")
    stC = list(stn)

    g.lab(LD); g.q = list(q_save); pvn[0] = pv_save; nst[0] = nst_save; del stn[nst_save:]
    if not dmerge:
        a("v_and_b32 v%d, 7, v%d" % (vT[4], vL)); a("s_lshl_b32 s%d, s%d, 6" % (sT, sCI)); a("v_lshl_add_u32 v%d, v%d, 3, s%d" % (vAd[7], vT[4], sT))
        g.vm("buffer_load_dwordx2 %s, v%d, %s, 0 offen" % (r(vXr, 2), vAd[7], srd(sX)), "x2")
        a("s_lshl_b32 s%d, s%d, 7" % (sT, sCI)); a("v_lshrrev_b32 v%d, 5, v%d" % (vT[0], vL)); a("v_lshlrev_b32 v%d, 11, v%d" % (vT[0], vT[0]))
        a("v_lshl_add_u32 v%d, v%d, 4, v%d" % (vT[0], vT[4], vT[0])); a("v_add_u32 v%d, s%d, v%d" % (vAd[6], sT, vT[0]))
        a("s_lshl_b32 s%d, s%d, 14" % (sT2, sW)); a("s_add_u32 s%d, s%d, s%d" % (sT, sT, sT2))
        a("v_lshrrev_b32 v%d, 3, v%d" % (vT[0], vL)); a("v_lshlrev_b32 v%d, 11, v%d" % (vT[0], vT[0])); a("v_lshl_add_u32 v%d, v%d, 4, v%d" % (vT[0], vT[4], vT[0])); a("v_add_u32 v%d, s%d, v%d" % (vAd[5], sT, vT[0]))
        a("s_lshl_b32 s%d, s%d, 7" % (sT, sW)); a("v_lshl_add_u32 v%d, v%d, 4, s%d" % (vAd[4], vT[4], sT)); a("v_lshlrev_b32 v%d, 4, v%d" % (vAd[9], vT[4]))
    if pf_k is not None:
        drain_publish([lambda: None]*pf_k + [c_pf])
    elif cw_late:
        drain_publish(); c_pf()
    else:
        c_pf(); drain_publish()
    if not dmerge:
        if fast1 and par is None: gather(8, vAd[6], [AX + 2*i*2048 for i in range(8)], post=lambda: republish("D")); republish("D")
        else: gather(8, vAd[6], [AX + 2*i*2048 for i in range(8)])
        stamp("x2ok")
        unpack4(vX, vXr)
        attn_to_hpk(vX, vT[4]); unpack4(vH, vT[4])
        final_stage(LRED2, d3)
    g.lab("L_fin")
    finish("D")
    stD = list(stn)
    g.lab("L_end"); a("s_endpgm")

    import numpy as np
    gg, ss = np.arange(256) & 7, np.arange(256) >> 3
    roles = {"B": ss < 16, "C": (ss >= 16) & (ss < 30), "D": ss >= 30} if par is None else {"B": (gg & 1) == par, "C": ((gg & 1) != par) & (ss < 28), "D": ((gg & 1) != par) & (ss >= 28)}
    if dmerge:
        ci = (gg >> 1)*28 + ss if par is not None else 14*gg + ss - 16
        roles = {"B": roles["B"], "C": roles["C"], "D": roles["C"] & (ci % 7 == 0)}; stD = stC; stC = stC[:-2]
    hdr = """; Fused decode layer: LN -> q proj -> GQA attention over the KV cache -> out proj -> LN -> GLU MLP, one persistent launch.
; 256 workgroups (one per CU) x 4 waves. Hand-offs through d_ws carry self-validating words (cleared at entry, clears counted in d_debug).
; @launch grid=(256,1,1) block=(256,1,1) lds=%d
.amdgcn_target "amdgcn-amd-amdhsa--gfx950"
.text
.globl %s_kernel
.p2align 8
.type %s_kernel,@function
%s_kernel:
""" % (LDS_SIZE, KN, KN, KN)
    ftr = """
.section .rodata,"a"
.p2align 6
.amdhsa_kernel %s_kernel
  .amdhsa_next_free_vgpr 512
  .amdhsa_next_free_sgpr 102
  .amdhsa_accum_offset 256
  .amdhsa_group_segment_fixed_size 0
  .amdhsa_kernarg_size 96
  .amdhsa_user_sgpr_count 2
  .amdhsa_user_sgpr_kernarg_segment_ptr 1
  .amdhsa_system_sgpr_workgroup_id_x 1
  .amdhsa_float_denorm_mode_32 3
.end_amdhsa_kernel
""" % KN
    return hdr + "\n".join(g.L) + ftr, dict(B=stB, C=stC, D=stD, nv=g.vn, roles=roles)

if __name__ == "__main__":
    kw = eval("dict(%s)" % (sys.argv[2] if len(sys.argv) > 2 else ""))
    src, info = gen(**kw)
    open(sys.argv[1], "w").write(src); print(len(src))
```
